```python
import torch

def _softmax(x, axis=-1):
    return torch.softmax(x, dim=axis)
def _gelu(x):
    return torch.nn.functional.gelu(x, approximate="tanh")
def _silu(x):
    return torch.nn.functional.silu(x)
def _sigmoid(x):
    return torch.sigmoid(x)
def _layernorm(x, axis=-1, eps=1e-5):
    m = x.mean(dim=axis, keepdim=True)
    v = x.var(dim=axis, keepdim=True, unbiased=False)
    return (x - m) / torch.sqrt(v + eps)
def _scatter_add(tgt, idx, src, axis=0):
    return tgt.clone().index_add_(axis, idx, src)
def _segment_sum(src, seg, n):
    out = torch.zeros((n,) + src.shape[1:], dtype=src.dtype)
    return out.index_add_(0, seg, src)
def _pad(x, pw):
    flat = tuple(v for pair in reversed(pw) for v in pair)
    return torch.nn.functional.pad(x, flat)

kernel_name = 'recurrent_scan__ssm_conv_s4d__swiglu_ffn__prompt'

def setup_inputs():

    _w = (lambda a: (lambda t: t.to(torch.bfloat16) if t.is_floating_point() else t)(torch.as_tensor(a)))
    def _A_setup():
        Bsz, L, D, N = 1, 2048, 512, 128
        return {
            "u": _w((lambda *s: torch.randn(*s, dtype=torch.bfloat16) * 0.05)(Bsz, L, D)),
            "log_A_real": _w((lambda *s: torch.randn(*s, dtype=torch.bfloat16) * 6.4)(D, N) * 0.5),
            "A_imag": _w((lambda *s: torch.randn(*s, dtype=torch.bfloat16) * 0.05)(D, N) * 3.14),
            "C_real": _w((lambda *s: torch.randn(*s, dtype=torch.bfloat16) * 0.05)(D, N) / N ** 0.5),
            "C_imag": _w((lambda *s: torch.randn(*s, dtype=torch.bfloat16) * 0.05)(D, N) / N ** 0.5),
            "log_dt": _w((lambda *s: torch.randn(*s, dtype=torch.bfloat16) * 0.05)(D) * 0.5 - 4.0),
            "D_skip": _w((lambda *s: torch.randn(*s, dtype=torch.bfloat16) * 0.05)(D)),
        }
    _A_in = _A_setup()

    def _B_setup():
        B, S, D, F = 1, 2048, 512, 1376
        return {
            "x": _w((lambda *s: torch.randn(*s, dtype=torch.bfloat16) * 0.05)(B, S, D)),
            "w_gate": _w((lambda *s: torch.randn(*s, dtype=torch.bfloat16) * 0.05)(D, F)),
            "w_up": _w((lambda *s: torch.randn(*s, dtype=torch.bfloat16) * 0.05)(D, F)),
            "w_down": _w((lambda *s: torch.randn(*s, dtype=torch.bfloat16) * 0.05)(F, D)),
        }
    _B_in = _B_setup()

    return {
        "A_u": _A_in["u"],
        "A_log_A_real": _A_in["log_A_real"],
        "A_A_imag": _A_in["A_imag"],
        "A_C_real": _A_in["C_real"],
        "A_C_imag": _A_in["C_imag"],
        "A_log_dt": _A_in["log_dt"],
        "A_D_skip": _A_in["D_skip"],
        "B_x": _B_in["x"],
        "B_w_gate": _B_in["w_gate"],
        "B_w_up": _B_in["w_up"],
        "B_w_down": _B_in["w_down"],
    }

def reference(A_u, A_log_A_real, A_A_imag, A_C_real, A_C_imag, A_log_dt, A_D_skip, B_x, B_w_gate, B_w_up, B_w_down):
    def _A_ref(u, log_A_real, A_imag, C_real, C_imag, log_dt, D_skip):
        L = u.shape[1]
        dt = torch.exp(log_dt)
        A = -torch.exp(log_A_real) + 1j * A_imag
        C = (C_real + 1j * C_imag) * dt[:, None]
        pos = (lambda x, dt: x.to(dt))(torch.arange(L), log_dt.dtype)
        P = torch.exp((A * dt[:, None])[:, :, None] * pos[None, None, :])
        K = 2.0 * torch.einsum("dn,dnl->dl", C, P).real
        L2 = 2 * L
        u_t = (lambda x, *d: x.permute(*d))(u, 0, 2, 1)
        Kf = (lambda x, *a, **k: torch.fft.rfft(x.float(), *a, **k))(K, L2)
        Uf = (lambda x, *a, **k: torch.fft.rfft(x.float(), *a, **k))(u_t, L2)
        y = (lambda x, *a, **k: torch.fft.irfft(x, *a, **k).to(torch.bfloat16))(Uf * Kf[None, :, :], L2)[:, :, :L]
        y = (lambda x, *d: x.permute(*d))(y, 0, 2, 1)
        return y + u * D_skip[None, None, :]

    def _B_ref(x, w_gate, w_up, w_down):
        g = _silu(x @ w_gate)
        u = x @ w_up
        return (g * u) @ w_down

    x = A_u
    xn = _layernorm(x, axis=-1)
    s = _A_ref(xn, A_log_A_real, A_A_imag, A_C_real, A_C_imag, A_log_dt, A_D_skip)
    g = _silu(_B_ref(xn, B_w_gate, B_w_up, B_w_down))
    return x + s * g
```

```python
import re

def regs_of(tok):
    tok = tok.strip()
    tok = tok.lstrip('-')
    if tok.startswith('abs(') or tok.startswith('|'):
        tok = tok.replace('abs(', '').replace(')', '').replace('|', '')
    m = re.fullmatch(r'([vsa])(\d+)', tok)
    if m: return {(m.group(1), int(m.group(2)))}
    m = re.fullmatch(r'([vsa])\[(\d+):(\d+)\]', tok)
    if m: return {(m.group(1), i) for i in range(int(m.group(2)), int(m.group(3)) + 1)}
    if tok in ('vcc', 'vcc_lo', 'vcc_hi'): return {('x', 'vcc')}
    if tok in ('exec', 'exec_lo', 'exec_hi'): return {('x', 'exec')}
    if tok == 'm0': return {('x', 'm0')}
    return set()

TRANS = ('v_exp_f32', 'v_log_f32', 'v_rcp_f32', 'v_rsq_f32', 'v_sqrt_f32', 'v_sin_f32', 'v_cos_f32')

class Ins:
    def __init__(self, line):
        self.line = line
        s = line.split(';')[0].strip()
        self.op = s.split()[0] if s else ''
        rest = s[len(self.op):].strip()
        ops = []; depth = 0; cur = ''
        for ch in rest:
            if ch == '[': depth += 1
            if ch == ']': depth -= 1
            if ch == ',' and depth == 0: ops.append(cur.strip()); cur = ''
            else: cur += ch
        if cur.strip(): ops.append(cur.strip())
        self.mods = ''
        if ops:
            parts = ops[-1].split(None, 1)
            ops[-1] = parts[0]
            if len(parts) > 1: self.mods = parts[1]
        self.ops = ops
        op = self.op
        self.is_mfma = op.startswith('v_mfma')
        self.is_valu = op.startswith('v_') and not self.is_mfma
        self.is_salu = op.startswith('s_')
        self.is_ds = op.startswith('ds_')
        self.is_vmem = op.startswith('buffer_') or op.startswith('global_')
        self.is_trans = any(op.startswith(t) for t in TRANS)
        self.is_dot = op.startswith('v_dot')
        self.is_dpp = '_dpp' in op or 'row_' in self.mods or 'quad_perm' in self.mods or 'wave_' in self.mods
        self.is_perml = op.startswith('v_permlane')
        self.is_rdlane = op.startswith('v_readlane') or op.startswith('v_readfirstlane')
        self.is_ldsdma = self.is_vmem and (re.search(r'\blds\b', self.mods) is not None or 'load_lds' in op)
        self.w = set(); self.r = set()
        R = [regs_of(o) for o in ops]
        if self.is_mfma:
            self.w = R[0]; self.a = R[1]; self.b = R[2]; self.c = R[3]; self.r = R[1] | R[2] | R[3]
            self.passes = 8 if '32x32x16' in op else 4
        elif self.is_valu:
            if op.startswith('v_cmp'):
                self.w = R[0]; self.r = set().union(*R[1:])
            elif self.is_perml and 'swap' in op:
                self.w = R[0] | R[1]; self.r = R[0] | R[1]
            elif op.startswith('v_add_co') or op.startswith('v_addc_co') or op.startswith('v_sub_co'):
                self.w = R[0] | R[1]; self.r = set().union(*R[2:])
            elif op == 'v_nop':
                pass
            else:
                self.w = R[0]; self.r = set().union(*R[1:]) if len(R) > 1 else set()
                if op.startswith('v_fmac') or op.startswith('v_pk_fmac') or op.startswith('v_dot2c') or self.is_dpp or op.startswith('v_writelane'):
                    self.r |= R[0]
                if op.startswith('v_cndmask') and len(ops) == 3: self.r.add(('x', 'vcc'))
        elif self.is_ds:
            if op.startswith('ds_read') or op.startswith('ds_bpermute') or op.startswith('ds_swizzle') or '_rtn' in op:
                self.w = R[0]; self.r = set().union(*R[1:]) if len(R) > 1 else set()
            else:
                self.r = set().union(*R)
        elif self.is_vmem:
            if op.startswith('buffer_wbl2') or op.startswith('buffer_inv'):
                pass
            elif self.is_ldsdma:
                self.r = set().union(*R) | {('x', 'm0')}
            elif 'load' in op:
                self.w = R[0]; self.r = set().union(*R[1:])
                if 'd16' in op: self.r |= R[0]
            else:
                self.r = set().union(*R)
                if op.startswith('buffer_store'): self.data = R[0]
                else: self.data = R[1]
                self.wide = 'x3' in op or 'x4' in op
        elif self.is_salu:
            if op.startswith('s_cmp') or op.startswith('s_cbranch') or op in ('s_branch', 's_waitcnt', 's_barrier', 's_nop', 's_sleep', 's_endpgm', 's_setprio', 's_bitcmp1_b32', 's_bitcmp0_b32'):
                self.r = set().union(*R) if R else set()
                if 'vcc' in op: self.r.add(('x', 'vcc'))
            else:
                self.w = R[0] if R else set(); self.r = set().union(*R[1:]) if len(R) > 1 else set()
                if 'saveexec' in op: self.w = self.w | {('x', 'exec')}
    def states(self):
        if self.op == 's_nop': return int(self.ops[0], 0) + 1
        return 1

def need(p, c):
    n = 0
    vw = {x for x in p.w if x[0] in 'va'}
    sw = {x for x in p.w if x[0] == 's' or x == ('x', 'vcc')}
    if p.is_valu:
        if c.is_mfma and (vw & c.r): n = max(n, 3 if p.is_dot else 2)
        if c.is_rdlane and (vw & c.r): n = max(n, 1)
        if c.is_valu and c.is_dpp and (vw & c.r): n = max(n, 2)
        if c.is_perml and (vw & c.r): n = max(n, 2)
        if p.is_trans and (c.is_valu or c.is_mfma) and not c.is_trans and (vw & c.r): n = max(n, 1)
        if p.is_trans and (c.is_vmem or c.is_ds) and (vw & c.r): n = max(n, 1)
        if c.is_valu and (sw & c.r): n = max(n, 4 if (c.is_rdlane or c.op.startswith('v_writelane')) else 2)
        if c.is_vmem and (sw & c.r): n = max(n, 5)
        if c.is_salu and (sw & c.r): n = max(n, 1)
        if c.op.startswith('s_cbranch_vcc') and ('x', 'vcc') in p.w: n = max(n, 1)
        if ('x', 'exec') in p.w:
            if c.is_dpp: n = max(n, 5)
            if c.is_mfma or c.is_rdlane or c.is_perml: n = max(n, 4)
        if p.is_dot:
            same = c.op == p.op
            if (vw & (c.r | c.w)):
                if same and len(c.ops) == 4 and not (vw & (regs_of(c.ops[1]) | regs_of(c.ops[2]))): pass
                else: n = max(n, 3)
        if 'op_sel' in p.mods and not p.op.startswith('v_pk_') and c.is_valu and (vw & c.r): n = max(n, 1)
    if p.is_mfma:
        big = {4: 8, 8: 12}[p.passes]
        if c.is_mfma:
            if p.w & (c.a | c.b): n = max(n, big)
            if p.w & c.c:
                if not (c.c == p.w and c.passes == p.passes): n = max(n, {4: 6, 8: 10}[p.passes])
            elif p.w & c.w: n = max(n, big)
        elif (c.is_valu or c.is_vmem or c.is_ds) and (p.w & (c.r | c.w)): n = max(n, big)
        if c.is_valu and (p.c & c.w): n = max(n, {4: 3, 8: 7}[p.passes])
    if p.is_salu and ('x', 'm0') in p.w and (c.is_ldsdma or 'addtid' in c.op): n = max(n, 1)
    if p.is_salu and ('x', 'exec') in p.w and c.is_dpp: n = max(n, 1)
    if p.is_vmem and getattr(p, 'wide', False) and (p.data & c.w): n = max(n, 2)
    return n

def is_code(line):
    s = line.split(';')[0].strip()
    return bool(s) and not s.endswith(':') and not s.startswith('.')

def fix(lines, verbose=False):
    W = 24
    out = []
    hist = []
    def required(hist, ins):
        dist = 0; add = 0
        for p in reversed(hist[-W:]):
            n = need(p, ins)
            if n - dist > add: add = n - dist
            dist += p.states()
            if dist >= 20: break
        return add
    for line in lines:
        if not is_code(line):
            out.append(line); continue
        ins = Ins(line)
        add = required(hist, ins)
        if add > 0:
            if verbose: print("nop", add, "before", line.strip())
            nop = f"    s_nop {add-1}"
            out.append(nop); hist.append(Ins(nop))
        out.append(line); hist.append(ins)
        if ins.op in ('s_branch', 's_endpgm'): hist = [ins] if False else hist
    labels = {l.strip()[:-1]: i for i, l in enumerate(out) if l.strip().endswith(':') and not l.strip().startswith(';')}
    problems = []
    for i, l in enumerate(out):
        if not is_code(l): continue
        ins = Ins(l)
        if ins.op.startswith('s_cbranch') or ins.op == 's_branch':
            tgt = ins.ops[0]
            if tgt not in labels: continue
            h = [Ins(x) for x in out[max(0, i - W):i + 1] if is_code(x)]
            j = labels[tgt]; cnt = 0
            while j < len(out) and cnt < 20:
                if is_code(out[j]):
                    c = Ins(out[j])
                    add = required(h, c)
                    if add > 0: problems.append((l.strip(), out[j].strip(), add))
                    h.append(c); cnt += c.states()
                    if c.op in ('s_branch', 's_endpgm'): break
                j += 1
    return out, problems
```

```python
import sys, argparse
sys.path.insert(0, "gen")
import hz

KN = "recurrent_scan__ssm_conv_s4d__swiglu_ffn__prompt_kernel"
WS_EPOCH = 0x0
WS_FLN   = 0x1000
WS_FHL   = 0x2000
WS_FHG   = 0x3000
WS_FS    = 0x4000
WS_STATS = 0x8000
WS_XNT   = 0x10000
WS_ST    = 0x210000
WS_H     = 0x410000
WS_STAMP = 0x1000000
WS_BYTES = 268435456
SLOT = 40960
L_CONV = 3 * SLOT
CONV_SZ = 16896
L_FLAGS = L_CONV + 2 * CONV_SZ
LDS_BYTES = L_FLAGS + 64
F_FULL, F_FREE, F_NONCE, F_XR = 0, 16, 32, 48
WBYTES = 512 * 1376 * 2
LOG2E = 0x3FB8AA3B

class G:
    def __init__(self, o):
        self.o = o; self.L = []; self.n = 0; self.nst = 0
    def __call__(self, s):
        for l in s.strip("\n").split("\n"):
            l = l.strip()
            if not l: continue
            self.L.append(l if l.endswith(":") or l.startswith(".") else "    " + l)
    def lab(self, p="L"):
        self.n += 1; return f"{p}{self.n}"
    def srd(self, d, b, nbytes):
        self(f"s_mov_b32 s{d}, s{b}\ns_and_b32 s{d+1}, s{b+1}, 0xffff\ns_mov_b32 s{d+2}, {nbytes}\ns_mov_b32 s{d+3}, 0x00020000")
    def stamp(self, i):
        if self.o.stamps: self(f"s_memrealtime s[{68+2*i}:{69+2*i}]")
    def put_stamps(self):
        if not self.o.stamps: return
        self(f"""s_waitcnt vmcnt(0) lgkmcnt(0)
s_lshl_b32 s64, s2, 3
s_add_u32 s64, s64, s3
s_lshl_b32 s64, s64, 7
s_add_u32 s64, s64, {WS_STAMP}
s_mov_b64 exec, 1
v_mov_b32 v2, 0""")
        for i in range(16):
            self(f"v_mov_b32 v4, s{68+2*i}\nv_mov_b32 v5, s{69+2*i}\nbuffer_store_dwordx2 v[4:5], v2, s[40:43], s64 offen offset:{8*i}\ns_nop 1")
        self("s_waitcnt vmcnt(0)")
    def tmo(self, back):
        self(f"s_sub_u32 s55, s55, 1\ns_max_i32 s55, s55, 0\ns_cmp_lg_u32 s55, 0\ns_cbranch_scc1 {back}")

def prologue(A):
    o = A.o
    A(f"""s_cmp_ge_u32 s2, 256
s_cbranch_scc1 L_exit
s_load_dwordx16 s[8:23], s[0:1], 0
s_load_dwordx8 s[24:31], s[0:1], 64
s_load_dwordx4 s[32:35], s[0:1], 96""")
    A.stamp(0)
    A(f"""v_lshrrev_b32 v1, 6, v0
v_and_b32 v0, 63, v0
s_and_b32 s4, s2, 7
v_readfirstlane_b32 s3, v1
s_lshr_b32 s5, s2, 3
s_and_b32 s6, s5, 1
s_lshl_b32 s7, s4, 1
s_add_u32 s6, s6, s7
s_lshr_b32 s7, s5, 1
s_mov_b32 s55, {o.tmo}
v_mov_b32 v15, {L_FLAGS}
s_cmp_lg_u32 s3, 0
s_cbranch_scc1 L_noinit
v_mov_b32 v2, 0
v_lshl_add_u32 v3, v0, 2, v15
s_mov_b64 exec, 0xffff
ds_write_b32 v3, v2""")
    if o.codepf:
        A(f"""s_getpc_b64 s[56:57]
L_pc:
s_lshl_b32 s58, s5, 10
v_lshl_add_u32 v3, v0, 7, s58
v_min_u32 v3, L_codeend-L_pc-4, v3
s_mov_b64 exec, 0xff
global_load_dword v255, v3, s[56:57]""")
    A(f"""s_mov_b64 exec, -1
s_waitcnt lgkmcnt(0)
L_noinit:
s_barrier
s_getreg_b32 s53, hwreg(HW_REG_XCC_ID, 0, 4)
s_waitcnt lgkmcnt(0)""")
    A.srd(36, 8, 2097152)
    A.srd(40, 34, WS_BYTES)
    A.stamp(1)
    A(f"""s_cmp_ge_u32 s3, 6
s_cbranch_scc1 L_loader
s_cmp_ge_u32 s3, 4
s_cbranch_scc1 L_conv""")

def get_nonce(A):
    l = A.lab("Lnc")
    A(f"""{l}:
ds_read_b32 v16, v15 offset:{F_NONCE}
s_waitcnt lgkmcnt(0)
v_readfirstlane_b32 s52, v16
s_cmp_lg_u32 s52, 0
s_cbranch_scc1 {l}d""")
    A.tmo(l)
    A(f"{l}d:")

def loader(A):
    o = A.o
    A(f"""L_loader:
s_sub_u32 s54, s3, 6
s_cmp_eq_u32 s54, 1
s_cselect_b32 s24, s26, s24
s_cselect_b32 s25, s27, s25""")
    A.srd(44, 24, WBYTES)
    A(f"""v_lshrrev_b32 v1, 3, v0
v_lshlrev_b32 v2, 10, v1
v_and_b32 v5, 7, v0
v_lshrrev_b32 v6, 4, v0
s_lshl_b32 s56, s54, 2
v_add_u32 v6, s56, v6
v_and_b32 v6, 7, v6
v_xor_b32 v6, v5, v6
v_lshl_add_u32 v6, v6, 4, v2
v_lshrrev_b32 v3, 2, v0
v_mul_u32_u24 v3, 2752, v3
v_and_b32 v7, 3, v0
s_lshl_b32 s56, s54, 1
v_xor_b32 v7, s56, v7
v_lshl_add_u32 v7, v7, 4, v3
v_and_b32 v8, 2, v1
v_lshlrev_b32 v8, 1, v8
v_xor_b32 v8, v5, v8
v_lshl_add_u32 v8, v8, 4, v2
s_lshl_b32 s56, s54, 2
v_add_u32 v9, s56, v15
s_lshl_b32 s57, s6, 17
s_lshl_b32 s56, s54, 13
s_add_u32 s57, s57, s56
s_mul_i32 s58, s7, 192
s_lshl_b32 s59, s54, 10
s_mul_i32 s60, s54, 12288
s_add_u32 s60, s60, 16384
s_mov_b32 s61, 0
s_mov_b32 s62, 0""")
    A.srd(48, 28, WBYTES)
    if o.rot == 0: A("s_mov_b32 s63, 0")
    else:
        A("s_and_b32 s63, s5, 1\ns_lshl_b32 s63, s63, 2\ns_add_u32 s63, s63, s4\ns_add_u32 s63, s63, s7\ns_and_b32 s63, s63, 7")
    A(f"""s_cmp_lt_u32 s7, 15
s_cbranch_scc1 L_ld_st
s_mov_b32 s61, 8
s_mov_b32 s62, {2*SLOT}
s_branch L_ld_wd""")
    def wait_free():
        l = A.lab("Lfw")
        A(f"""s_cmp_lt_u32 s61, 3
s_cbranch_scc1 {l}d
{l}:
ds_read_b128 v[16:19], v15 offset:{F_FREE}
s_waitcnt lgkmcnt(0)
v_min_u32 v16, v16, v17
v_min3_u32 v16, v16, v18, v19
v_readfirstlane_b32 s64, v16
s_add_u32 s64, s64, 2
s_cmp_ge_u32 s64, s61
s_cbranch_scc1 {l}d
s_sleep 1""")
        A.tmo(l)
        A(f"{l}d:")
    def signal(n):
        A(f"s_waitcnt vmcnt({n})\nv_mov_b32 v10, s61\nds_write_b32 v9, v10")
    def advance():
        A(f"""s_add_u32 s61, s61, 1
s_add_u32 s62, s62, {SLOT}
s_cmp_eq_u32 s62, {3*SLOT}
s_cselect_b32 s62, 0, s62""")
    A("L_ld_st:")
    wait_free()
    A(f"""s_lshl_b32 s64, s63, 7
s_add_u32 s64, s64, s57
s_mul_i32 s65, s63, {64*2752}
s_add_u32 s65, s65, s58
s_add_u32 s66, s62, s59
s_add_u32 s67, s62, s60""")
    items = []
    for kg in range(4):
        items += [("x", 2*kg), ("x", 2*kg+1)] + [("w", kg, jj) for jj in range(3)]
    if o.ldorder == 1:
        items = [("x", t) for t in range(8)] + [("w", kg, jj) for kg in range(4) for jj in range(3)]
    for n, it in enumerate(items):
        if n == o.sigat: signal(n)
        if it[0] == "x":
            t = it[1]
            A(f"s_add_u32 m0, s66, {t*2048}\ns_add_u32 s56, s64, {t*16384}\nbuffer_load_dwordx4 v6, s[36:39], s56 offen lds")
        else:
            _, kg, jj = it
            A(f"s_add_u32 m0, s67, {jj*4096+kg*1024}\ns_add_u32 s56, s65, {kg*16*2752+jj*64}\nbuffer_load_dwordx4 v7, s[44:47], s56 offen lds")
    A("s_add_u32 s63, s63, 1\ns_and_b32 s63, s63, 7")
    advance()
    A("s_cmp_lt_u32 s61, 8\ns_cbranch_scc1 L_ld_st")
    A.stamp(2)
    A(f"""L_ld_wd:
s_lshr_b32 s57, s5, 2
s_lshl_b32 s57, s57, 7
s_mul_i32 s58, s54, {43*16*1024}
s_add_u32 s57, s57, s58
s_mul_i32 s59, s54, 20480""")
    rot2(A, 63, 64)
    def kblock(i):
        A(f"""s_lshl_b32 s56, s63, 14
s_add_u32 s56, s56, s57
s_add_u32 m0, s66, {i*2048}
s_add_u32 s63, s63, 1
buffer_load_dwordx4 v8, s[48:51], s56 offen lds
s_add_u32 m0, s66, {i*2048+1024}
s_add_u32 s56, s56, 8192
buffer_load_dwordx4 v8, s[48:51], s56 offen lds
s_cmp_eq_u32 s63, 43
s_cselect_b32 s63, 0, s63""")
    A("L_ld_wc:")
    wait_free()
    A("s_add_u32 s66, s62, s59")
    for i in range(3): kblock(i)
    A("s_cmp_eq_u32 s61, 12\ns_cbranch_scc1 L_ld_last")
    for i in range(3, 10):
        if 2*i == (o.sigat // 2) * 2: signal(2*i)
        kblock(i)
    advance()
    A("s_branch L_ld_wc\nL_ld_last:")
    signal(6)
    A("s_add_u32 s61, s61, 1")
    signal(0)
    A("s_waitcnt lgkmcnt(0)")
    A.stamp(3)
    A.put_stamps()
    A("s_endpgm")

def rot2(A, d, t):
    if A.o.rot2 == 0:
        A(f"s_mov_b32 s{d}, 0"); return
    A(f"""s_and_b32 s{d}, s5, 3
s_mul_i32 s{d}, s{d}, 11
s_lshr_b32 s{t}, s5, 2
s_add_u32 s{t}, s{t}, s4
s_and_b32 s{t}, s{t}, 7
s_mul_i32 s{t}, s{t}, 5
s_add_u32 s{d}, s{d}, s{t}
s_cmp_ge_u32 s{d}, 43
s_cselect_b32 s{t}, 43, 0
s_sub_u32 s{d}, s{d}, s{t}""")

def ln_t(A):
    A(f"""s_lshl_b32 s56, s4, 5
s_add_u32 s56, s56, s5
s_lshl_b32 s57, s56, 13
v_lshlrev_b32 v2, 4, v0
v_mov_b32 v3, 0
buffer_load_dword v4, v3, s[40:43], 0 offen sc1""")
    for r in range(8):
        A(f"s_add_u32 s58, s57, {r*1024}\nbuffer_load_dwordx4 v[{128+4*r}:{131+4*r}], v2, s[36:39], s58 offen")
    A(f"""v_mov_b32 v14, 0x3f803f80
v_mov_b32 v12, 0x00003f80
v_mov_b32 v13, 0x3f800000
s_waitcnt vmcnt(8)
v_readfirstlane_b32 s52, v4
s_mul_i32 s52, s52, 0x9E3779B1
s_add_u32 s52, s52, 0x7F4A7C15
s_mov_b32 s67, s52
s_and_b32 s52, s52, 0xfffffff0
s_or_b32 s52, s52, 0x10000
v_mov_b32 v4, s52
v_mov_b32 v5, s67
ds_write_b64 v15, v[4:5] offset:{F_NONCE}""")
    for r in range(8):
        A(f"s_waitcnt vmcnt({7-r})")
        for i in range(4):
            c1 = "0" if i == 0 else f"v{160+r}"; c2 = "0" if i == 0 else f"v{168+r}"
            A(f"v_dot2_f32_bf16 v{160+r}, v{128+4*r+i}, v14, {c1}\nv_dot2_f32_bf16 v{168+r}, v{128+4*r+i}, v{128+4*r+i}, {c2}")
    for base in (160, 168):
        for r in range(4): A(f"v_permlane32_swap_b32 v{base+r}, v{base+r+4}")
    for base in (160, 168):
        for r in range(4): A(f"v_add_f32 v{base+r}, v{base+r}, v{base+r+4}")
    for base in (160, 168):
        for r in range(2): A(f"v_permlane16_swap_b32 v{base+r}, v{base+r+2}")
    for base in (160, 168):
        for r in range(2): A(f"v_add_f32 v{base+r}, v{base+r}, v{base+r+2}")
    for sh in (8, 4, 2, 1):
        for reg in (160, 161, 168, 169):
            A(f"v_add_f32_dpp v{reg}, v{reg}, v{reg} row_ror:{sh} row_mask:0xf bank_mask:0xf")
    A("s_mov_b32 s58, 0x3b000000\ns_mov_b32 s59, 0x3727c5ac")
    for p in range(2):
        A(f"v_mul_f32 v{160+p}, s58, v{160+p}\nv_mul_f32 v{168+p}, s58, v{168+p}")
    for p in range(2):
        A(f"v_fma_f32 v{168+p}, -v{160+p}, v{160+p}, v{168+p}")
    for p in range(2):
        A(f"v_max_f32 v{168+p}, 0, v{168+p}\nv_cvt_pk_bf16_f32 v{162+2*p}, -v{160+p}, -v{160+p}")
    A("v_cvt_pk_bf16_f32 v170, v168, v169\nv_lshlrev_b32 v168, 16, v170\nv_and_b32 v169, 0xffff0000, v170")
    A("v_add_f32 v168, s59, v168\nv_add_f32 v169, s59, v169")
    A("v_cvt_pk_bf16_f32 v170, v168, v169\nv_lshlrev_b32 v168, 16, v170\nv_and_b32 v169, 0xffff0000, v170")
    A("v_sqrt_f32 v168, v168\nv_sqrt_f32 v169, v169")
    A("v_cvt_pk_bf16_f32 v170, v168, v169\nv_lshlrev_b32 v168, 16, v170\nv_and_b32 v169, 0xffff0000, v170")
    A("v_rcp_f32 v163, v168\nv_rcp_f32 v165, v169")
    A("v_and_b32 v160, 0xffff0000, v162\nv_and_b32 v161, 0xffff0000, v164")
    A(f"""s_lshl_b32 s58, s56, 6
s_add_u32 s58, s58, {WS_STATS}
s_mov_b32 exec_lo, 0x00010001
s_mov_b32 exec_hi, 0x00010001
buffer_store_dwordx4 v[162:165], v0, s[40:43], s58 offen sc1
s_mov_b64 exec, -1""")
    for r in range(8):
        p, q = r & 1, r >> 1
        A(f"v_readlane_b32 s{8+r}, v{160+p}, {16*q}\nv_readlane_b32 s{16+r}, v{163+2*p}, {16*q}")
    A(f"""s_lshl_b32 s58, s56, 4
s_add_u32 s58, s58, {WS_XNT}
v_lshlrev_b32 v2, 15, v0""")
    for c in range(8):
        sel = "v12" if c % 2 == 0 else "v13"
        t0 = 176 + 8 * (c % 2); d0 = 192 + 4 * (c % 4)
        for r in range(8):
            A(f"v_dot2_f32_bf16 v{t0+r}, v{128+4*r+c//2}, {sel}, s{8+r}")
        for rp in range(4):
            A(f"v_pk_mul_f32 v[{t0+2*rp}:{t0+2*rp+1}], v[{t0+2*rp}:{t0+2*rp+1}], s[{16+2*rp}:{17+2*rp}]")
        for rp in range(4):
            A(f"v_cvt_pk_bf16_f32 v{d0+rp}, v{t0+2*rp}, v{t0+2*rp+1}")
        A(f"s_add_u32 s59, s58, {c*4096}\nbuffer_store_dwordx4 v[{d0}:{d0+3}], v2, s[40:43], s59 offen sc1")

def ln_flag(A):
    A(f"""s_lshl_b32 s56, s4, 5
s_add_u32 s56, s56, s5
s_lshl_b32 s56, s56, 2
s_add_u32 s56, s56, {WS_FLN}
s_or_b32 s57, s52, s53
v_mov_b32 v16, s57
v_mov_b32 v17, 0
s_waitcnt vmcnt(0)
s_mov_b64 exec, 1
buffer_store_dword v16, v17, s[40:43], s56 offen sc1
s_mov_b64 exec, -1""")

ACC = 32
def acc(i, j): return ACC + 16 * (3 * i + j)
BUF = (128, 148)
def rd_frags(A, buf, ks):
    b = BUF[buf]
    for i in range(2):
        A(f"ds_read_b128 v[{b+4*i}:{b+4*i+3}], v{2+ks} offset:{i*4096}")
    for j in range(3):
        for t in range(2):
            A(f"ds_read_b64_tr_b16 v[{b+8+4*j+2*t}:{b+8+4*j+2*t+1}], v{6+j} offset:{ks*1024+t*256}")
def mfmas(A, buf):
    b = BUF[buf]
    k = 0
    for j in range(3):
        for i in range(2):
            a = acc(i, j)
            A(f"v_mfma_f32_32x32x16_bf16 v[{a}:{a+15}], v[{b+8+4*j}:{b+8+4*j+3}], v[{b+4*i}:{b+4*i+3}], v[{a}:{a+15}]")
            for u in range(2):
                A(f"v_dot2_f32_bf16 v{9+j}, v{b+8+4*j+2*i+u}, v14, v{9+j}")

def gemm(A):
    o = A.o
    A("s_and_b32 s60, s3, 1\ns_lshr_b32 s61, s3, 1")
    A(f"s_cmp_lg_u32 s3, {o.lnwave}\ns_cbranch_scc1 L_noln")
    ln_t(A)
    A.stamp(2)
    if not o.lnlate: ln_flag(A)
    A("L_noln:")
    if o.prio: A("s_setprio 2")
    A(f"""v_and_b32 v16, 31, v0
v_lshrrev_b32 v17, 5, v0
v_lshrrev_b32 v18, 1, v16
v_and_b32 v18, 7, v18
v_xor_b32 v18, v17, v18
s_lshl_b32 s56, s60, 6
v_add_u32 v16, s56, v16
v_lshlrev_b32 v16, 7, v16
v_lshl_add_u32 v2, v18, 4, v16
v_xor_b32 v3, 32, v2
v_xor_b32 v4, 64, v2
v_xor_b32 v5, 96, v2
v_bfe_u32 v16, v0, 4, 1
v_mul_u32_u24 v18, 12288, v16
v_lshlrev_b32 v16, 5, v16
v_add_u32 v18, v18, v16
v_lshl_add_u32 v18, v17, 9, v18
v_bfe_u32 v16, v0, 2, 2
v_lshl_add_u32 v18, v16, 6, v18
v_and_b32 v16, 3, v0
v_lshl_add_u32 v18, v16, 3, v18
v_add_u32 v18, 16384, v18""")
    for j in range(3):
        A(f"""s_mul_i32 s56, s61, 3
s_add_u32 s56, s56, {j}
s_and_b32 s57, s56, 1
s_lshl_b32 s57, s57, 5
s_lshr_b32 s56, s56, 1
s_lshl_b32 s56, s56, 12
v_xor_b32 v{6+j}, s57, v18
v_add_u32 v{6+j}, s56, v{6+j}""")
    A(f"""v_mov_b32 v14, 0x3f803f80
v_mov_b32 v9, 0
v_mov_b32 v10, 0
v_mov_b32 v11, 0
s_lshl_b32 s56, s3, 2
v_add_u32 v13, s56, v15""")
    for r in range(96): A(f"v_mov_b32 v{ACC+r}, 0")
    A(f"""s_mov_b32 s62, 0
s_mov_b32 s63, 0
s_mov_b32 s64, {SLOT}
s_mov_b32 s65, {-2*SLOT & 0xffffffff}
s_cmp_lt_u32 s7, 15
s_cbranch_scc1 L_g1_go
v_mov_b32 v12, 8
ds_write_b32 v13, v12 offset:{F_FREE}""")
    if o.lnlate:
        A(f"s_cmp_lg_u32 s3, {o.lnwave}\ns_cbranch_scc1 L_g2")
        ln_flag(A)
    A("s_branch L_g2\nL_g1_go:")
    def poll_full(lbl):
        A(f"""{lbl}:
ds_read_b64 v[16:17], v15 offset:{F_FULL}
s_waitcnt lgkmcnt(0)
v_min_u32 v16, v16, v17
v_readfirstlane_b32 s56, v16
s_cmp_gt_u32 s56, s62
s_cbranch_scc1 {lbl}d""")
        A.tmo(lbl)
        A(f"{lbl}d:")
    poll_full("L_g1_p0")
    A.stamp(3)
    rd_frags(A, 0, 0)
    A(".p2align 3\nL_g1_loop:")
    rd_frags(A, 1, 1); A("s_waitcnt lgkmcnt(8)"); mfmas(A, 0)
    rd_frags(A, 0, 2); A("s_waitcnt lgkmcnt(8)"); mfmas(A, 1)
    rd_frags(A, 1, 3); A(f"ds_read_b64 v[16:17], v15 offset:{F_FULL}\ns_waitcnt lgkmcnt(9)"); mfmas(A, 0)
    A(f"""s_add_u32 s62, s62, 1
v_mov_b32 v12, s62
s_add_u32 s63, s63, {SLOT}
s_cmp_eq_u32 s63, {3*SLOT}
s_cselect_b32 s57, s65, s64
s_cselect_b32 s63, 0, s63
s_waitcnt lgkmcnt(0)
ds_write_b32 v13, v12 offset:{F_FREE}
v_min_u32 v16, v16, v17""")
    for r in range(2, 9): A(f"v_add_u32 v{r}, s57, v{r}")
    A(f"""v_readfirstlane_b32 s56, v16
s_cmp_eq_u32 s62, 8
s_cbranch_scc1 L_g1_end
s_cmp_gt_u32 s56, s62
s_cbranch_scc0 L_g1_slow""")
    rd_frags(A, 0, 0); mfmas(A, 1)
    A("L_g1_join:")
    if o.lnlate:
        A(f"s_cmp_lg_u32 s62, 1\ns_cbranch_scc1 L_g1_j2\ns_cmp_lg_u32 s3, {o.lnwave}\ns_cbranch_scc1 L_g1_j2")
        ln_flag(A)
        A("L_g1_j2:")
    A("s_branch L_g1_loop\nL_g1_slow:")
    mfmas(A, 1)
    poll_full("L_g1_p1")
    rd_frags(A, 0, 0)
    A("s_branch L_g1_join\nL_g1_end:")
    mfmas(A, 1)
    A.stamp(4)
    get_nonce(A)
    A(f"""v_and_b32 v18, 31, v0
v_lshlrev_b32 v19, 2, v18
s_lshl_b32 s56, s4, 7
s_add_u32 s56, s56, {WS_FLN}
L_g1_fl:
buffer_load_dword v16, v19, s[40:43], s56 offen sc1
s_waitcnt vmcnt(0)
v_and_b32 v17, 0xfffffff0, v16
v_cmp_ne_u32 vcc, s52, v17
s_cbranch_vccz L_g1_fld""")
    A.tmo("L_g1_fl")
    A(f"""L_g1_fld:
s_or_b32 s57, s52, s53
v_cmp_ne_u32 vcc, s57, v16
s_lshl_b32 s56, s6, 1
s_add_u32 s56, s56, s60
s_lshl_b32 s58, s56, 9
s_add_u32 s58, s58, {WS_STATS}
v_lshlrev_b32 v19, 3, v18
s_or_b32 s54, vcc_lo, vcc_hi
buffer_load_dwordx2 v[20:21], v19, s[40:43], s58 offen sc1
buffer_load_dwordx2 v[22:23], v19, s[40:43], s58 offen offset:256 sc1""")
    for r in range(128, 148): A(f"v_mov_b32 v{r}, 0")
    for j in range(3):
        A(f"""v_cvt_pk_bf16_f32 v16, v{9+j}, v{9+j}
v_and_b32 v16, 0xffff0000, v16
v_sub_f32 v17, v{9+j}, v16
v_cvt_pk_bf16_f32 v{136+4*j}, v16, v17""")
    A("s_waitcnt vmcnt(0)\nv_mov_b32 v128, v20\nv_mov_b32 v132, v22")
    for i in range(2):
        for j in range(3):
            a = acc(i, j)
            A(f"v_mfma_f32_32x32x16_bf16 v[{a}:{a+15}], v[{136+4*j}:{139+4*j}], v[{128+4*i}:{131+4*i}], v[{a}:{a+15}]")
    A(f"s_mov_b32 s57, {LOG2E ^ 0x80000000}")
    for i in range(2):
        r = 21 + 2*i; b = 24 + 4*i
        A(f"v_mul_f32 v{b}, s57, v{r}\nv_mul_f32 v{b+2}, v{r}, v{r}")
    A(f"""s_lshl_b32 s57, s56, 1
s_mul_i32 s57, s57, {86*1024}
s_mul_i32 s58, s7, 6
s_mul_i32 s59, s61, 3
s_add_u32 s58, s58, s59
s_lshl_b32 s59, s58, 10
s_add_u32 s57, s57, s59
s_add_u32 s57, s57, {WS_H}
v_lshlrev_b32 v2, 4, v0""")
    T = 148
    for j in range(3):
        for i in range(2):
            a = acc(i, j); b = 24 + 4*i
            d = 168 + 4 * ((2*j+i) % 3)
            for p in range(4):
                A(f"v_pk_mul_f32 v[{T+2*p}:{T+2*p+1}], v[{a+2*p}:{a+2*p+1}], v[{b}:{b+1}] op_sel_hi:[1,0]")
            for e in range(8): A(f"v_exp_f32 v{T+e}, v{T+e}")
            for p in range(4):
                A(f"v_pk_mul_f32 v[{T+8+2*p}:{T+9+2*p}], v[{a+2*p}:{a+2*p+1}], v[{a+8+2*p}:{a+9+2*p}]")
            for p in range(4):
                A(f"v_pk_add_f32 v[{T+2*p}:{T+2*p+1}], v[{T+2*p}:{T+2*p+1}], 1.0 op_sel_hi:[1,0]")
            for e in range(8): A(f"v_rcp_f32 v{T+e}, v{T+e}")
            for p in range(4):
                A(f"v_pk_mul_f32 v[{T+8+2*p}:{T+9+2*p}], v[{T+8+2*p}:{T+9+2*p}], v[{b+2}:{b+3}] op_sel_hi:[1,0]")
            for p in range(4):
                A(f"v_pk_mul_f32 v[{T+8+2*p}:{T+9+2*p}], v[{T+8+2*p}:{T+9+2*p}], v[{T+2*p}:{T+2*p+1}]")
            for p in range(4):
                A(f"v_cvt_pk_bf16_f32 v{d+p}, v{T+8+2*p}, v{T+9+2*p}")
            l = A.lab("Lhs")
            A(f"""s_add_u32 s59, s58, {j}
s_cmp_ge_u32 s59, 86
s_cbranch_scc1 {l}
s_add_u32 s59, s57, {i*86*1024+j*1024}
buffer_store_dwordx4 v[{d}:{d+3}], v2, s[40:43], s59 offen{o.hst}
{l}:""")
    A.stamp(5)
    A(f"""s_lshl_b32 s57, s56, 5
s_lshl_b32 s58, s7, 1
s_add_u32 s57, s57, s58
s_add_u32 s57, s57, s61
s_lshl_b32 s57, s57, 2
s_add_u32 s57, s57, {WS_FHL}
s_or_b32 s58, s52, s53
v_mov_b32 v16, s58
v_mov_b32 v17, 0
v_mov_b32 v18, s52
s_waitcnt vmcnt(0)
s_mov_b64 exec, 1
buffer_store_dword v16, v17, s[40:43], s57 offen
s_cmp_eq_u32 s54, 0
s_cbranch_scc1 L_g1_fast""")
    if "sc1" not in o.hst:
        A("buffer_wbl2 sc1\ns_waitcnt vmcnt(0)")
    A(f"""s_add_u32 s57, s57, {WS_FHG-WS_FHL}
buffer_store_dword v18, v17, s[40:43], s57 offen sc1
L_g1_fast:
s_mov_b64 exec, -1""")
    A.stamp(6)
    gemm2(A)

H0 = 64; WF = 236
def gemm2(A):
    o = A.o
    A("L_g2:")
    get_nonce(A)
    A.srd(44, 30, 2097152)
    A(f"""s_and_b32 s56, s5, 3
s_lshl_b32 s57, s4, 2
s_add_u32 s56, s56, s57
s_lshr_b32 s57, s5, 2""")
    A(f"""v_and_b32 v16, 31, v0
v_lshrrev_b32 v17, 5, v0
v_lshlrev_b32 v12, 10, v16
v_lshl_add_u32 v12, v17, 3, v12
s_lshl_b32 s58, s56, 1
s_add_u32 s58, s58, s60
s_lshl_b32 s62, s58, 15
s_lshl_b32 s59, s57, 7
s_add_u32 s62, s62, s59
s_lshl_b32 s59, s61, 6
s_add_u32 s62, s62, s59""")
    for q in range(4):
        A(f"buffer_load_dwordx2 v[{24+2*q}:{25+2*q}], v12, s[36:39], s62 offen offset:{16*q}")
    A(f"""v_bfe_u32 v18, v0, 2, 2
v_lshl_add_u32 v18, v17, 2, v18
v_lshlrev_b32 v2, 7, v18
v_bfe_u32 v18, v0, 3, 1
v_lshl_add_u32 v2, v18, 6, v2
v_bfe_u32 v18, v0, 4, 1
v_lshl_add_u32 v2, v18, 5, v2
v_and_b32 v18, 3, v0
v_lshl_add_u32 v2, v18, 3, v2
s_mul_i32 s59, s61, 20480
s_add_u32 s59, s59, {2*SLOT}
v_add_u32 v2, s59, v2
v_xor_b32 v3, 64, v2
s_lshl_b32 s59, s61, 2
v_add_u32 v4, s59, v15
v_lshlrev_b32 v5, 4, v0""")
    for r in range(32): A(f"v_mov_b32 v{32+r}, 0")
    A(f"""v_min_u32 v18, 28, v16
v_lshlrev_b32 v18, 2, v18
v_lshl_add_u32 v18, v17, 12, v18
s_or_b32 s59, s52, s53
v_mov_b32 v19, s59
v_mov_b32 v20, s52
v_cmp_eq_u32 vcc, 1, v17
v_cndmask_b32 v19, v19, v20, vcc
s_lshl_b32 s59, s56, 7
s_add_u32 s59, s59, {WS_FHL}
s_mul_i32 s63, s58, {86*1024}
s_mul_i32 s64, s61, {43*1024}
s_add_u32 s63, s63, s64
s_add_u32 s63, s63, {WS_H}""")
    rot2(A, 64, 65)
    A(f"""L_g2_fl:
buffer_load_dword v20, v18, s[40:43], s59 offen sc1
s_waitcnt vmcnt(0)
v_cmp_eq_u32 vcc, v19, v20
s_or_b32 s65, vcc_lo, vcc_hi
s_cmp_eq_u32 s65, -1
s_cbranch_scc1 L_g2_fld""")
    A.tmo("L_g2_fl")
    A("L_g2_fld:")
    A.stamp(7)
    for i in range(43):
        A(f"""s_lshl_b32 s65, s64, 10
s_add_u32 s65, s65, s63
s_add_u32 s64, s64, 1
buffer_load_dwordx4 v[{H0+4*i}:{H0+4*i+3}], v5, s[40:43], s65 offen{o.hld}
s_cmp_eq_u32 s64, 43
s_cselect_b32 s64, 0, s64""")
    A.stamp(8)
    def rdw(i):
        b = WF + 8 * (i % 2); ii = i % 10
        for nt in range(2):
            for t in range(2):
                A(f"ds_read_b64_tr_b16 v[{b+4*nt+2*t}:{b+4*nt+2*t+1}], v{2+nt} offset:{ii*2048+t*1024}")
    def chunk_start(c):
        l = A.lab("Lg2c")
        A(f"""{l}:
ds_read_b32 v16, v4 offset:{F_FULL}
s_waitcnt lgkmcnt(0)
v_readfirstlane_b32 s65, v16
s_cmp_gt_u32 s65, {8+c}
s_cbranch_scc1 {l}d""")
        A.tmo(l)
        A(f"{l}d:")
    chunk_start(0)
    rdw(0)
    for i in range(43):
        b = WF + 8 * (i % 2)
        nxt = i + 1
        if nxt < 43 and nxt % 10 != 0:
            rdw(nxt); A(f"s_waitcnt vmcnt({42-i}) lgkmcnt(4)")
        else:
            A(f"s_waitcnt vmcnt({42-i}) lgkmcnt(0)")
            if nxt < 43:
                c = nxt // 10
                delta = SLOT if (8 + c) % 3 != 0 else -2 * SLOT
                A(f"""v_mov_b32 v16, {8+c}
ds_write_b32 v13, v16 offset:{F_FREE}
v_add_u32 v2, {delta & 0xffffffff}, v2
v_add_u32 v3, {delta & 0xffffffff}, v3""")
        for nt in range(2):
            A(f"v_mfma_f32_32x32x16_bf16 v[{32+16*nt}:{47+16*nt}], v[{b+4*nt}:{b+4*nt+3}], v[{H0+4*i}:{H0+4*i+3}], v[{32+16*nt}:{47+16*nt}]")
        if nxt < 43 and nxt % 10 == 0:
            chunk_start(nxt // 10); rdw(nxt)
    A.stamp(9)
    A(f"""v_and_b32 v16, 31, v0
v_lshrrev_b32 v17, 5, v0
v_lshlrev_b32 v18, 2, v16
s_lshl_b32 s58, s57, 1
s_add_u32 s58, s58, s61
s_lshl_b32 s59, s58, 7
s_add_u32 s59, s59, {WS_FS}
buffer_load_dword v20, v18, s[40:43], s59 offen sc1""")
    A(f"""s_mul_i32 s63, s61, 20480
s_lshl_b32 s64, s60, 12
s_add_u32 s64, s64, 6144
s_add_u32 s63, s63, s64
v_add_u32 v6, s63, v5
s_xor_b32 s63, s61, 1
s_mul_i32 s63, s63, 20480
s_add_u32 s63, s63, s64
v_add_u32 v7, s63, v5
s_xor_b32 s63, s3, 2
s_lshl_b32 s63, s63, 2
v_add_u32 v8, s63, v15
v_mov_b32 v9, 1
s_cmp_eq_u32 s61, 0
s_cbranch_scc1 L_x0""")
    for q in range(4): A(f"ds_write_b128 v6, v[{32+4*q}:{35+4*q}] offset:{q*1024}")
    for r in range(16): A(f"v_mov_b32 v{32+r}, v{48+r}")
    A("s_branch L_x1\nL_x0:")
    for q in range(4): A(f"ds_write_b128 v6, v[{48+4*q}:{51+4*q}] offset:{q*1024}")
    A(f"""L_x1:
s_waitcnt lgkmcnt(0)
ds_write_b32 v13, v9 offset:{F_XR}""")
    A(f"""v_lshlrev_b32 v19, 14, v17
v_lshl_add_u32 v19, v16, 1, v19
s_lshl_b32 s63, s58, 17
s_lshl_b32 s64, s56, 1
s_add_u32 s64, s64, s60
s_lshl_b32 s64, s64, 6
s_add_u32 s63, s63, s64
s_add_u32 s63, s63, {WS_ST}""")
    for r in range(16): A(f"v_mov_b32 v{64+r}, 0")
    A(f"""L_s_fl:
s_waitcnt vmcnt(0)
v_cmp_ne_u32 vcc, s52, v20
s_cbranch_vccz L_s_fld
buffer_load_dword v20, v18, s[40:43], s59 offen sc1""")
    A.tmo("L_s_fl")
    A("L_s_fld:")
    A.stamp(10)
    for q in range(4):
        for r in range(4):
            A(f"s_add_u32 s64, s63, {(8*q+r)*4096}\nbuffer_load_short_d16_hi v{64+4*q+r}, v19, s[40:43], s64 offen sc1")
    A(f"""L_x_w:
ds_read_b32 v16, v8 offset:{F_XR}
s_waitcnt lgkmcnt(0)
v_readfirstlane_b32 s65, v16
s_cmp_lg_u32 s65, 0
s_cbranch_scc1 L_x_wd""")
    A.tmo("L_x_w")
    A("L_x_wd:")
    for q in range(4): A(f"ds_read_b128 v[{48+4*q}:{51+4*q}], v7 offset:{q*1024}")
    A(f"s_mov_b32 s64, {LOG2E ^ 0x80000000}\ns_mov_b32 s65, s64")
    for q in range(4):
        A(f"s_waitcnt lgkmcnt({3-q})")
        for p in range(2):
            a = 32 + 4*q + 2*p
            A(f"v_pk_add_f32 v[{a}:{a+1}], v[{a}:{a+1}], v[{a+16}:{a+17}]")
    for p in range(8): A(f"v_pk_mul_f32 v[{48+2*p}:{49+2*p}], v[{32+2*p}:{33+2*p}], s[64:65]")
    for e in range(16): A(f"v_exp_f32 v{48+e}, v{48+e}")
    for p in range(8): A(f"v_pk_add_f32 v[{48+2*p}:{49+2*p}], v[{48+2*p}:{49+2*p}], 1.0 op_sel_hi:[1,0]")
    for e in range(16): A(f"v_rcp_f32 v{48+e}, v{48+e}")
    for p in range(8):
        A(f"v_lshlrev_b32 v{80+2*p}, 16, v{24+p}\nv_and_b32 v{81+2*p}, 0xffff0000, v{24+p}")
    for p in range(8): A(f"v_pk_mul_f32 v[{32+2*p}:{33+2*p}], v[{32+2*p}:{33+2*p}], v[{48+2*p}:{49+2*p}]")
    A("s_waitcnt vmcnt(0)")
    A.stamp(11)
    for p in range(8): A(f"v_pk_fma_f32 v[{32+2*p}:{33+2*p}], v[{32+2*p}:{33+2*p}], v[{64+2*p}:{65+2*p}], v[{80+2*p}:{81+2*p}]")
    for p in range(8): A(f"v_cvt_pk_bf16_f32 v{48+p}, v{32+2*p}, v{33+2*p}")
    for q in range(4):
        A(f"buffer_store_dwordx2 v[{48+2*q}:{49+2*q}], v12, s[44:47], s62 offen offset:{16*q}")
    A.stamp(12)
    A.put_stamps()
    A("s_endpgm")

def cmul(A, d, a, z):
    raise NotImplementedError

def conv(A):
    o = A.o
    A(f"""L_conv:
s_sub_u32 s54, s3, 4
s_lshl_b32 s56, s4, 5
s_add_u32 s56, s56, s5
s_lshl_b32 s56, s56, 1
s_add_u32 s56, s56, s54
s_lshl_b32 s57, s56, 8
v_lshl_add_u32 v2, v0, 2, s57
s_lshl_b32 s57, s56, 1
v_mov_b32 v3, s57
global_load_dword v4, v2, s[10:11]
global_load_ushort v8, v3, s[18:19]
global_load_dword v5, v2, s[12:13]
global_load_dword v6, v2, s[14:15]
global_load_dword v7, v2, s[16:17]
global_load_ushort v9, v3, s[20:21]
s_mul_i32 s58, s54, {CONV_SZ}
s_add_u32 s58, s58, {L_CONV}
v_lshl_add_u32 v10, v0, 3, s58
v_and_b32 v11, 31, v0
v_mul_u32_u24 v11, 528, v11
v_lshrrev_b32 v12, 5, v0
v_lshl_add_u32 v11, v12, 4, v11
v_add_u32 v11, s58, v11
s_mov_b32 s59, {LOG2E}
s_mov_b32 s60, 0x3e22f983
s_waitcnt vmcnt(4)""")
    A("""v_lshlrev_b32 v16, 16, v4
v_and_b32 v17, 0xffff0000, v4
v_lshlrev_b32 v8, 16, v8
v_mul_f32 v16, s59, v16
v_mul_f32 v17, s59, v17
v_mul_f32 v8, s59, v8
v_exp_f32 v16, v16
v_exp_f32 v17, v17
v_exp_f32 v8, v8
v_cvt_pk_bf16_f32 v16, v16, v17
v_cvt_pk_bf16_f32 v8, v8, v8
v_and_b32 v17, 0xffff0000, v16
v_lshlrev_b32 v16, 16, v16
v_and_b32 v8, 0xffff0000, v8
v_mul_f32 v16, v16, v8
v_mul_f32 v17, v17, v8
v_mul_f32 v16, s59, v16
v_mul_f32 v17, s59, v17
s_waitcnt vmcnt(3)
v_lshlrev_b32 v18, 16, v5
v_and_b32 v19, 0xffff0000, v5
v_mul_f32 v18, v18, v8
v_mul_f32 v19, v19, v8
v_mul_f32 v18, s60, v18
v_mul_f32 v19, s60, v19""")
    for (dst, p) in ((36, 8.0), (32, 1.0), (40, 256.0)):
        import struct
        pf = struct.unpack("<I", struct.pack("<f", p))[0]
        npf = pf ^ 0x80000000
        for m in range(2):
            A(f"v_mul_f32 v{20+m}, {hex(npf)}, v{16+m}\nv_mul_f32 v{22+m}, {hex(pf)}, v{18+m}")
        for m in range(2):
            A(f"v_exp_f32 v{20+m}, v{20+m}\nv_fract_f32 v{22+m}, v{22+m}")
        for m in range(2):
            A(f"v_cos_f32 v{dst+2*m}, v{22+m}\nv_sin_f32 v{dst+2*m+1}, v{22+m}")
        for m in range(2):
            A(f"v_mul_f32 v{dst+2*m}, v{dst+2*m}, v{20+m}\nv_mul_f32 v{dst+2*m+1}, v{dst+2*m+1}, v{20+m}")
    def cm2(d, a, z):
        for m in range(2):
            A(f"v_pk_mul_f32 v[{24+2*m}:{25+2*m}], v[{a+2*m}:{a+2*m+1}], v[{z+2*m}:{z+2*m+1}] op_sel:[0,0] op_sel_hi:[0,1]")
        for m in range(2):
            A(f"v_pk_fma_f32 v[{d+2*m}:{d+2*m+1}], v[{a+2*m}:{a+2*m+1}], v[{z+2*m}:{z+2*m+1}], v[{24+2*m}:{25+2*m}] op_sel:[1,1,0] op_sel_hi:[1,0,1] neg_lo:[1,0,0]")
    pk = [0]
    def put(src, rows, neg):
        t = 28 + 2 * (pk[0] % 2); pk[0] += 1
        n = "-" if neg else ""
        A(f"v_cvt_pk_bf16_f32 v{t}, v{src}, {n}v{src+1}\nv_cvt_pk_bf16_f32 v{t+1}, v{src+2}, {n}v{src+3}")
        for row in rows: A(f"ds_write_b64 v10, v[{t}:{t+1}] offset:{row*528}")
    A("v_mov_b32 v28, 0x3f80\nv_mov_b32 v29, 0x3f80\nds_write_b64 v10, v[28:29]")
    pk[0] = 1
    put(36, [1], False)
    cur = 36
    for j in range(2, 32):
        d = 44 + 4 * (j % 2)
        cm2(d, cur, 36); put(d, [j], False); cur = d
    A.stamp(2)
    E = 52
    A(f"""s_waitcnt vmcnt(0)
v_add_f32 v8, v8, v8
v_lshlrev_b32 v{E}, 16, v6
v_lshlrev_b32 v{E+1}, 16, v7
v_and_b32 v{E+2}, 0xffff0000, v6
v_and_b32 v{E+3}, 0xffff0000, v7""")
    for k in range(4): A(f"v_mul_f32 v{E+k}, v{E+k}, v8")
    get_nonce(A)
    A(f"""v_lshlrev_b32 v2, 4, v0
s_mov_b32 s61, {WS_FLN}""")
    RF = 128; LF = 192
    for s in range(16): A(f"ds_read_b128 v[{RF+4*s}:{RF+4*s+3}], v11 offset:{32*s}")
    def row(reg, hf): return 8 * (reg >> 2) + 4 * hf + (reg & 3)
    for i in range(1, 9): cm2(E + 4*i, E + 4*(i-1), 32)
    A("s_waitcnt lgkmcnt(0)")
    for i in range(9): put(E + 4*i, [row(i, 0)], True)
    dup = {0: [0, 1], 2: [2], 4: [3, 4, 5], 6: [6], 8: [7, 8]}
    for i in (0, 2, 4, 6, 8):
        cm2(E + 4*i, E + 4*i, 40); put(E + 4*i, [row(r, 1) for r in dup[i]], True)
    A("buffer_load_dwordx4 v[4:7], v2, s[40:43], s61 offen sc1")
    for hf in range(2):
        for n, i in enumerate((0, 4, 8)):
            cm2(E + 4*i, E + 4*i, 40); put(E + 4*i, [row(9 + n, hf)], True)
    for blk in range(4):
        for n, i in enumerate((0, 8)):
            cm2(E + 4*i, E + 4*i, 40); put(E + 4*i, [row(12 + 2*(blk >> 1) + n, blk & 1)], True)
    A("s_waitcnt lgkmcnt(0)")
    for s in range(16): A(f"ds_read_b128 v[{LF+4*s}:{LF+4*s+3}], v11 offset:{32*s}")
    A.stamp(3)
    A(f"""L_c_fl:
s_waitcnt vmcnt(0)
v_xor_b32 v4, s52, v4
v_xor_b32 v5, s52, v5
v_xor_b32 v6, s52, v6
v_xor_b32 v7, s52, v7
v_or3_b32 v4, v4, v5, v6
v_or_b32 v4, v4, v7
v_cmp_lt_u32 vcc, 15, v4
s_cbranch_vccz L_c_fld
buffer_load_dwordx4 v[4:7], v2, s[40:43], s61 offen sc1""")
    A.tmo("L_c_fl")
    A(f"""L_c_fld:
s_lshl_b32 s61, s56, 12
s_add_u32 s62, s61, {WS_XNT}""")
    A.stamp(4)
    for k in range(4): A(f"buffer_load_dwordx4 v[{96+4*k}:{99+4*k}], v2, s[40:43], s62 offen offset:{k*1024} sc1")
    A(f"""s_cmp_lg_u32 s56, 0
s_cbranch_scc1 L_c_nb
ds_read_b32 v4, v15 offset:{F_NONCE+4}
v_mov_b32 v5, 0
s_waitcnt lgkmcnt(0)
s_mov_b64 exec, 1
buffer_store_dword v4, v5, s[40:43], 0 offen sc1
s_mov_b64 exec, -1
L_c_nb:""")
    D = 32
    for s in range(16):
        A(f"s_waitcnt lgkmcnt({15-s})")
        c = "0" if s == 0 else f"v[{D}:{D+15}]"
        A(f"v_mfma_f32_32x32x16_bf16 v[{D}:{D+15}], v[{LF+4*s}:{LF+4*s+3}], v[{RF+4*s}:{RF+4*s+3}], {c}")
    A(f"""v_lshlrev_b32 v9, 16, v9
v_cmp_eq_u32 vcc, 0, v0
v_cndmask_b32 v9, 0, v9, vcc
v_lshlrev_b32 v12, 4, v0
v_sub_u32 v12, {4080-3072}, v12
v_add_u32 v12, s58, v12
v_and_b32 v13, 1, v0
v_cmp_eq_u32 vcc, 1, v13
v_mov_b32 v16, 0
v_mov_b32 v17, 0
v_mov_b32 v18, 0
v_mov_b32 v19, 0
v_add_u32 v14, s58, v2
v_add_f32 v{D}, v{D}, v9""")
    def wr(grp, k):
        t = 48 + 8 * (grp % 2)
        for u in range(4): A(f"v_cvt_pk_bf16_f32 v{t+u}, v{k[7-2*u]}, v{k[6-2*u]}")
        for u in range(4): A(f"v_cvt_pk_bf16_f32 v{t+4+u}, v{k[8-2*u]}, v{k[7-2*u]}")
        A(f"ds_write_b128 v12, v[{t}:{t+3}] offset:{3072-1024*grp}\nds_write_b128 v12, v[{t+4}:{t+7}] offset:{3072-1024*grp+4160}")
    wr(0, [D+i for i in range(9)])
    a, b, c = D+9, D+10, D+11
    wr(1, [a, a, a, b, b, b, c, c, c])
    for grp in (2, 3):
        a, b = D + 12 + 2*(grp-2), D + 13 + 2*(grp-2)
        A(f"v_cndmask_b32 v20, v{a}, v{b}, vcc")
        wr(grp, [a, a, a, a, 20, b, b, b, b])
    A(f"""s_mov_b64 exec, 0xf
ds_write_b128 v14, v[16:19] offset:4096
s_mov_b32 exec_lo, -1
ds_write_b128 v14, v[16:19] offset:8320
s_mov_b64 exec, 1
v_cvt_pk_bf16_f32 v16, v{D}, 0
s_mov_b64 exec, 0xf
ds_write_b128 v14, v[16:19] offset:{4096+4160}
s_mov_b64 exec, -1""")
    A(f"""v_and_b32 v16, 15, v0
v_lshrrev_b32 v17, 4, v0
v_sub_u32 v18, 2032, v16
v_lshrrev_b32 v18, 1, v18
v_lshl_add_u32 v18, v17, 2, v18
v_lshlrev_b32 v18, 2, v18
v_mov_b32 v19, 4160
v_cndmask_b32 v19, v19, 0, vcc
v_add3_u32 v18, v18, v19, s58""")
    for p in range(4): A(f"v_subrev_u32 v{4+p}, {4*(128*(2*p+1)+16)}, v18")
    A(f"""v_lshlrev_b32 v8, 5, v16
v_lshl_add_u32 v8, v17, 4, v8
v_add_u32 v8, s58, v8
v_add_u32 v8, {8320+512-32-64}, v8
s_waitcnt vmcnt(0)""")
    for k in range(4): A(f"ds_write_b128 v14, v[{96+4*k}:{99+4*k}] offset:{8320+512+k*1024}")
    for r in range(32): A(f"v_mov_b32 v{D+r}, 0")
    A("s_waitcnt lgkmcnt(0)")
    A.stamp(5)
    KB = (64, 128); UB = (96, 160)
    def reads(buf, cc):
        L = []
        for a in range(8):
            off = 128 * (1 - (a & 1)) + 16 * (1 - cc)
            for h in range(2):
                L.append(f"ds_read2_b32 v[{KB[buf]+4*a+2*h}:{KB[buf]+4*a+2*h+1}], v{4+a//2} offset0:{off+2*h} offset1:{off+2*h+1}")
            L.append(f"ds_read_b128 v[{UB[buf]+4*a}:{UB[buf]+4*a+3}], v8 offset:{512*a+64*(1-cc)}")
        return L
    def mm(buf, fill):
        fill = list(fill)
        for a in range(8):
            for p in range(8 - a):
                q = D + 4 * (a + p)
                A(f"v_mfma_f32_16x16x32_bf16 v[{q}:{q+3}], v[{KB[buf]+4*a}:{KB[buf]+4*a+3}], v[{UB[buf]+4*p}:{UB[buf]+4*p+3}], v[{q}:{q+3}]")
                if fill: A(fill.pop(0))
        assert not fill
    for x in reads(0, 0): A(x)
    A("s_mov_b32 s63, 0\n.p2align 3\nL_c_loop:\ns_waitcnt lgkmcnt(0)")
    mm(0, reads(1, 1) + [f"v_subrev_u32 v{4+p}, 128, v{4+p}" for p in range(5)])
    A("s_waitcnt lgkmcnt(0)\ns_add_u32 s63, s63, 1\ns_cmp_eq_u32 s63, 4\ns_cbranch_scc1 L_c_last")
    mm(1, reads(0, 0))
    A("s_branch L_c_loop\nL_c_last:")
    mm(1, [])
    A.stamp(6)
    A(f"""v_lshlrev_b32 v2, 5, v16
v_lshl_add_u32 v2, v17, 3, v2
s_add_u32 s62, s61, {WS_ST}""")
    for q in range(8):
        A(f"v_cvt_pk_bf16_f32 v{64+2*q}, v{D+4*q}, v{D+4*q+1}\nv_cvt_pk_bf16_f32 v{65+2*q}, v{D+4*q+2}, v{D+4*q+3}")
        A(f"buffer_store_dwordx2 v[{64+2*q}:{65+2*q}], v2, s[40:43], s62 offen offset:{512*q} sc1")
    A(f"""s_lshl_b32 s62, s56, 2
s_add_u32 s62, s62, {WS_FS}
v_mov_b32 v4, s52
v_mov_b32 v5, 0
s_waitcnt vmcnt(0)
s_mov_b64 exec, 1
buffer_store_dword v4, v5, s[40:43], s62 offen sc1""")
    A.stamp(7)
    A.put_stamps()
    A("s_endpgm")

HEADER = open("recurrent_scan__ssm_conv_s4d__swiglu_ffn__prompt.s.ref").read().split("; Override launch")[0]

def build(o):
    A = G(o)
    prologue(A)
    gemm(A)
    conv(A)
    loader(A)
    A("L_exit:\ns_endpgm\nL_codeend:")
    lines, probs = hz.fix(A.L, o.verbose)
    for p in probs: print("HAZARD at branch:", p, file=sys.stderr)
    txt = HEADER + f"; @launch grid=(256,1,1) block=(512,1,1) lds={LDS_BYTES}\n"
    txt += f'.amdgcn_target "amdgcn-amd-amdhsa--gfx950"\n.text\n.globl {KN}\n.p2align 8\n.type {KN},@function\n{KN}:\n'
    txt += "\n".join(lines) + "\n"
    txt += f""".section .rodata,"a"
.p2align 6
.amdhsa_kernel {KN}
  .amdhsa_next_free_vgpr 256
  .amdhsa_next_free_sgpr 102
  .amdhsa_accum_offset 256
  .amdhsa_group_segment_fixed_size 0
  .amdhsa_kernarg_size 112
  .amdhsa_user_sgpr_count 2
  .amdhsa_user_sgpr_kernarg_segment_ptr 1
  .amdhsa_system_sgpr_workgroup_id_x 1
  .amdhsa_float_denorm_mode_32 3
.end_amdhsa_kernel
"""
    return txt

if __name__ == "__main__":
    ap = argparse.ArgumentParser()
    ap.add_argument("-o", default="recurrent_scan__ssm_conv_s4d__swiglu_ffn__prompt.s")
    ap.add_argument("--stamps", action="store_true")
    ap.add_argument("--verbose", action="store_true")
    ap.add_argument("--tmo", type=int, default=200000)
    ap.add_argument("--codepf", type=int, default=1)
    ap.add_argument("--rot", type=int, default=1)
    ap.add_argument("--rot2", type=int, default=1)
    ap.add_argument("--sigat", type=int, default=10)
    ap.add_argument("--ldorder", type=int, default=0)
    ap.add_argument("--lnwave", type=int, default=3)
    ap.add_argument("--lnlate", type=int, default=0)
    ap.add_argument("--prio", type=int, default=1)
    ap.add_argument("--hst", default=" sc1")
    ap.add_argument("--hld", default=" sc1")
    o = ap.parse_args()
    open(o.o, "w").write(build(o))
```

```python
import sys, argparse, struct
sys.path.insert(0, "gen")
import hz

KN = "recurrent_scan__ssm_conv_s4d__swiglu_ffn__prompt_kernel"
WS_EPOCH = 0x0
WS_FLL   = 0x1000
WS_FLG   = 0x2000
WS_FHL   = 0x3000
WS_FHG   = 0x4000
WS_FS    = 0x5000
WS_XN    = 0x10000
WS_XNT   = 0x210000
WS_ST    = 0x410000
WS_H     = 0x610000
WS_STAMP = 0x1000000
WS_BYTES = 268435456
SLOT = 40960
L_CONV = 3 * SLOT
CONV_SZ = 16896
L_FLAGS = L_CONV + 2 * CONV_SZ
LDS_BYTES = L_FLAGS + 128
F_FULL, F_FREE, F_NONCE, F_LN, F_KD, F_KR, F_CA, F_CB, F_XR = 0, 16, 32, 48, 64, 72, 80, 96, 112
KT_O, U_OFF = 4160, 8320
WBYTES = 512 * 1376 * 2
LOG2E = 0x3FB8AA3B

class G:
    def __init__(self, o):
        self.o = o; self.L = []; self.n = 0
    def __call__(self, s):
        for l in s.strip("\n").split("\n"):
            l = l.strip()
            if not l: continue
            self.L.append(l if l.endswith(":") or l.startswith(".") else "    " + l)
    def lab(self, p="L"):
        self.n += 1; return f"{p}{self.n}"
    def srd(self, d, b, nbytes):
        self(f"s_mov_b32 s{d}, s{b}\ns_and_b32 s{d+1}, s{b+1}, 0xffff\ns_mov_b32 s{d+2}, {nbytes}\ns_mov_b32 s{d+3}, 0x00020000")
    def stamp(self, i):
        if self.o.stamps: self(f"{'s_memtime' if self.o.cyc else 's_memrealtime'} s[{68+2*i}:{69+2*i}]")
    def put_stamps(self):
        if not self.o.stamps: return
        self(f"""s_waitcnt vmcnt(0) lgkmcnt(0)
s_lshl_b32 s64, s2, 3
s_add_u32 s64, s64, s3
s_lshl_b32 s64, s64, 7
s_add_u32 s64, s64, {WS_STAMP}
s_mov_b64 exec, 1
v_mov_b32 v2, 0""")
        for i in range(16):
            self(f"v_mov_b32 v4, s{68+2*i}\nv_mov_b32 v5, s{69+2*i}\nbuffer_store_dwordx2 v[4:5], v2, s[40:43], s64 offen offset:{8*i}\ns_nop 1")
        self("s_waitcnt vmcnt(0)")
    def tmo(self, back):
        self(f"s_sub_u32 s55, s55, 1\ns_max_i32 s55, s55, 0\ns_cmp_lg_u32 s55, 0\ns_cbranch_scc1 {back}")
    def lds_wait(self, addr, off, n, cmp, val, sleep=0, t=16):
        l = self.lab("Lw")
        rd = {1: f"ds_read_b32 v{t}", 2: f"ds_read_b64 v[{t}:{t+1}]", 4: f"ds_read_b128 v[{t}:{t+3}]"}[n]
        self(f"{l}:\n{rd}, {addr} offset:{off}\ns_waitcnt lgkmcnt(0)")
        if n >= 2: self(f"v_min_u32 v{t}, v{t}, v{t+1}")
        if n == 4: self(f"v_min3_u32 v{t}, v{t}, v{t+2}, v{t+3}")
        self(f"v_readfirstlane_b32 s67, v{t}\ns_cmp_{cmp}_u32 s67, {val}\ns_cbranch_scc1 {l}d")
        if sleep: self(f"s_sleep {sleep}")
        self.tmo(l)
        self(f"{l}d:")
    def flag_wait(self, vloc, vglob, soff, tries, sleep=0, t=20):
        l = self.lab("Lf")
        self(f"""s_mov_b32 s66, 0
{l}:
buffer_load_dword v{t}, {vloc}, s[40:43], {soff} offen sc1
s_add_u32 s66, s66, 1
s_cmp_le_u32 s66, {tries}
s_cbranch_scc1 {l}a
buffer_load_dword v{t+1}, {vglob}, s[40:43], {soff} offen sc1
s_waitcnt vmcnt(0)
v_cmp_eq_u32 vcc, s52, v{t+1}
v_cndmask_b32 v{t}, v{t}, v{t+1}, vcc
{l}a:
s_waitcnt vmcnt(0)
v_cmp_ne_u32 vcc, s52, v{t}
s_cbranch_vccz {l}d""")
        if sleep: self(f"s_sleep {sleep}")
        self.tmo(l)
        self(f"{l}d:")

def prologue(A):
    o = A.o
    A(f"""s_cmp_ge_u32 s2, 256
s_cbranch_scc1 L_exit
s_load_dwordx16 s[8:23], s[0:1], 0
s_load_dwordx8 s[24:31], s[0:1], 64
s_load_dwordx4 s[32:35], s[0:1], 96""")
    A.stamp(0)
    A(f"""v_lshrrev_b32 v1, 6, v0
v_and_b32 v0, 63, v0
s_and_b32 s4, s2, 7
v_readfirstlane_b32 s3, v1
s_lshr_b32 s5, s2, 3
s_and_b32 s6, s5, 1
s_lshl_b32 s7, s4, 1
s_add_u32 s6, s6, s7
s_lshr_b32 s7, s5, 1
s_lshl_b32 s53, s4, 5
s_add_u32 s53, s53, s5
s_mov_b32 s55, {o.tmo}
v_mov_b32 v15, {L_FLAGS}
s_cmp_lg_u32 s3, 7
s_cbranch_scc1 L_noinit
v_mov_b32 v2, 0
v_lshl_add_u32 v3, v0, 2, v15
s_mov_b32 exec_hi, 0
ds_write_b32 v3, v2""")
    if o.codepf:
        A(f"""s_getpc_b64 s[56:57]
L_pc:
s_lshl_b32 s58, s5, 10
v_lshl_add_u32 v3, v0, 7, s58
v_min_u32 v3, L_codeend-L_pc-4, v3
s_mov_b64 exec, 0xff
global_load_dword v255, v3, s[56:57]""")
    A(f"""s_mov_b64 exec, -1
s_waitcnt lgkmcnt(0)
L_noinit:
s_barrier
s_waitcnt lgkmcnt(0)""")
    A.srd(40, 34, WS_BYTES)
    A.stamp(1)
    A(f"""s_cmp_ge_u32 s3, 6
s_cbranch_scc1 L_loader
s_cmp_ge_u32 s3, 4
s_cbranch_scc1 L_kgen""")

def get_nonce(A):
    A.lds_wait("v15", F_NONCE, 1, "lg", 0)
    A("s_mov_b32 s52, s67")

def rot2(A, d, t):
    if A.o.rot2 == 0:
        A(f"s_mov_b32 s{d}, 0"); return
    A(f"""s_and_b32 s{d}, s5, 3
s_mul_i32 s{d}, s{d}, 11
s_lshr_b32 s{t}, s5, 2
s_add_u32 s{t}, s{t}, s4
s_and_b32 s{t}, s{t}, 7
s_mul_i32 s{t}, s{t}, 5
s_add_u32 s{d}, s{d}, s{t}
s_cmp_ge_u32 s{d}, 43
s_cselect_b32 s{t}, 43, 0
s_sub_u32 s{d}, s{d}, s{t}""")

def loader(A):
    o = A.o
    A(f"""L_loader:
s_sub_u32 s54, s3, 6
s_cmp_eq_u32 s54, 1
s_cselect_b32 s24, s26, s24
s_cselect_b32 s25, s27, s25""")
    A.srd(44, 24, WBYTES)
    A(f"""v_lshrrev_b32 v3, 2, v0
v_mul_u32_u24 v3, 2752, v3
v_and_b32 v7, 3, v0
s_lshl_b32 s56, s54, 1
v_xor_b32 v7, s56, v7
v_lshl_add_u32 v7, v7, 4, v3
s_mul_i32 s58, s7, 192
s_mul_i32 s60, s54, 12288
s_add_u32 s60, s60, 16384""")
    if o.rot == 0: A("s_mov_b32 s63, 0")
    else:
        A("s_and_b32 s63, s5, 1\ns_lshl_b32 s63, s63, 2\ns_add_u32 s63, s63, s4\ns_add_u32 s63, s63, s7\ns_and_b32 s63, s63, 7")
    def setup2():
        A(f"""v_lshrrev_b32 v1, 3, v0
v_lshlrev_b32 v2, 10, v1
v_and_b32 v5, 7, v0
v_lshrrev_b32 v6, 4, v0
s_lshl_b32 s56, s54, 2
v_add_u32 v6, s56, v6
v_and_b32 v6, 7, v6
v_xor_b32 v6, v5, v6
v_lshl_add_u32 v6, v6, 4, v2
v_and_b32 v8, 2, v1
v_lshlrev_b32 v8, 1, v8
v_xor_b32 v8, v5, v8
v_lshl_add_u32 v8, v8, 4, v2
v_add_u32 v9, s56, v15
s_lshl_b32 s57, s6, 17
s_lshl_b32 s56, s54, 13
s_add_u32 s57, s57, s56
s_add_u32 s57, s57, {WS_XN}
s_lshl_b32 s59, s54, 10""")
        A.srd(48, 28, WBYTES)
    A(f"""s_cmp_lt_u32 s7, 15
s_cbranch_scc1 L_ld_go""")
    setup2()
    A(f"""s_mov_b32 s61, 8
s_mov_b32 s62, {2*SLOT}
s_branch L_ld_wd
L_ld_go:""")
    if o.lddelay: A(f"s_sleep {o.lddelay}")
    cnt = [0]
    def w_ins(kg, jj): A(f"s_add_u32 m0, s65, {jj*4096+kg*1024}\ns_add_u32 s56, s64, {kg*16*2752+jj*64}\nbuffer_load_dwordx4 v7, s[44:47], s56 offen lds")
    def x_ins(t): A(f"s_add_u32 m0, s65, {t*2048}\ns_add_u32 s56, s64, {t*16384}\nbuffer_load_dwordx4 v6, s[40:43], s56 offen{o.xld} lds")
    def w_pre(st):
        A(f"s_add_u32 s64, s63, {st}\ns_and_b32 s64, s64, 7\ns_mul_i32 s64, s64, {64*2752}\ns_add_u32 s64, s64, s58\ns_add_u32 s65, s60, {st*SLOT}")
    def x_pre(st):
        A(f"s_add_u32 s64, s63, {st}\ns_and_b32 s64, s64, 7\ns_lshl_b32 s64, s64, 7\ns_add_u32 s64, s64, s57\ns_add_u32 s65, s59, {st*SLOT}")
    def sig(n, val): A(f"s_waitcnt vmcnt({n})\nv_mov_b32 v10, {val}\nds_write_b32 v9, v10")
    for st in range(o.wpre):
        w_pre(st)
        for kg in range(4):
            for jj in range(3): w_ins(kg, jj)
        if st == 0: setup2()
    get_nonce(A)
    A(f"""v_lshlrev_b32 v11, 2, v0
s_lshl_b32 s56, s6, 8
v_add_u32 v11, s56, v11
v_and_b32 v12, 3, v0
v_lshlrev_b32 v12, 10, v12
v_and_b32 v13, 60, v0
v_add_u32 v12, v12, v13
s_lshl_b32 s56, s6, 6
s_add_u32 s56, s56, {WS_FLG-WS_FLL}
v_add_u32 v12, s56, v12
s_mov_b32 s64, {WS_FLL}""")
    A.stamp(2)
    A.flag_wait("v11", "v12", "s64", 64, sleep=o.lnsleep)
    A.stamp(3)
    seq = []
    for st in range(3):
        if st >= o.wpre: seq.append(("w", st))
        seq.append(("x", st))
    done_at = {}
    flat = []
    for kind, st in seq:
        n = 12 if kind == "w" else 8
        for i in range(n): flat.append((kind, st, i))
        if kind == "x": done_at[st] = len(flat)
    nxt = 0
    for idx, (kind, st, i) in enumerate(flat):
        if nxt < 2 and idx == done_at[nxt] + min(o.sigat, 8):
            sig(idx - done_at[nxt], nxt + 1); nxt += 1
        if i == 0 and kind == "x" and st == 2: A.lds_wait("v15", F_LN, 4, "ge", 2)
        if i == 0: (w_pre if kind == "w" else x_pre)(st)
        if kind == "w": w_ins(i // 3, i % 3)
        else: x_ins(i)
    while nxt < 2:
        sig(len(flat) - done_at[nxt], nxt + 1); nxt += 1
    A(f"s_add_u32 s63, s63, 3\ns_and_b32 s63, s63, 7\ns_mov_b32 s61, 3\ns_mov_b32 s62, 0")
    def wait_free():
        A("s_sub_u32 s66, s61, 2")
        A.lds_wait("v15", F_FREE, 4, "ge", "s66", sleep=1)
    def advance():
        A(f"""s_add_u32 s61, s61, 1
s_add_u32 s62, s62, {SLOT}
s_cmp_eq_u32 s62, {3*SLOT}
s_cselect_b32 s62, 0, s62""")
    A("L_ld_st:")
    wait_free()
    n = 0
    A(f"s_lshl_b32 s64, s63, 7\ns_add_u32 s64, s64, s57\ns_add_u32 s65, s62, s59")
    for t in range(8):
        if n == o.sigat: sig(n, "s61")
        x_ins(t); n += 1
    A(f"s_mul_i32 s64, s63, {64*2752}\ns_add_u32 s64, s64, s58\ns_add_u32 s65, s62, s60")
    for kg in range(4):
        for jj in range(3):
            if n == o.sigat: sig(n, "s61")
            w_ins(kg, jj); n += 1
    A("s_add_u32 s63, s63, 1\ns_and_b32 s63, s63, 7")
    advance()
    A("s_cmp_lt_u32 s61, 8\ns_cbranch_scc1 L_ld_st")
    A.stamp(4)
    if o.sig7: sig(0, 8)
    A(f"""L_ld_wd:
s_lshr_b32 s57, s5, 2
s_lshl_b32 s57, s57, 7
s_mul_i32 s58, s54, {43*16*1024}
s_add_u32 s57, s57, s58
s_mul_i32 s59, s54, 20480""")
    rot2(A, 63, 64)
    def kblock(i):
        A(f"""s_lshl_b32 s56, s63, 14
s_add_u32 s56, s56, s57
s_add_u32 m0, s65, {i*2048}
s_add_u32 s63, s63, 1
buffer_load_dwordx4 v8, s[48:51], s56 offen lds
s_add_u32 m0, s65, {i*2048+1024}
s_add_u32 s56, s56, 8192
buffer_load_dwordx4 v8, s[48:51], s56 offen lds
s_cmp_eq_u32 s63, 43
s_cselect_b32 s63, 0, s63""")
    A("L_ld_wc:")
    A("s_cmp_lg_u32 s61, 11\ns_cbranch_scc1 L_ld_w2")
    sig(0, 11)
    A.stamp(5)
    A("L_ld_w2:")
    wait_free()
    A("s_add_u32 s65, s62, s59")
    for i in range(3): kblock(i)
    A("s_cmp_eq_u32 s61, 12\ns_cbranch_scc1 L_ld_last")
    for i in range(3, 10):
        if i == max(3, o.sigat // 2): sig(2*i, "s61")
        kblock(i)
    advance()
    A("s_branch L_ld_wc\nL_ld_last:")
    sig(6, 12)
    sig(0, 13)
    A("s_waitcnt lgkmcnt(0)")
    A.stamp(6)
    A.put_stamps()
    A("s_endpgm")

BOUNCE = 2 * SLOT
def ln(A):
    o = A.o
    A.srd(36, 8, 2097152)
    A(f"""s_lshl_b32 s57, s53, 13
s_lshl_b32 s58, s3, 11
s_add_u32 s57, s57, s58
v_lshlrev_b32 v2, 4, v0
buffer_load_dwordx4 v[128:131], v2, s[36:39], s57 offen
buffer_load_dwordx4 v[132:135], v2, s[36:39], s57 offen offset:1024
s_cmp_lg_u32 s3, 0
s_cbranch_scc1 L_ln_nn
v_mov_b32 v3, 0
buffer_load_dword v4, v3, s[40:43], 0 offen sc1
s_waitcnt vmcnt(0)
v_readfirstlane_b32 s52, v4
s_mul_i32 s52, s52, 0x9E3779B1
s_add_u32 s52, s52, 0x7F4A7C15
v_mov_b32 v5, s52
s_or_b32 s52, s52, 0x10000
v_mov_b32 v4, s52
ds_write_b64 v15, v[4:5] offset:{F_NONCE}
L_ln_nn:
v_mov_b32 v14, 0x3f803f80
v_mov_b32 v12, 0x00003f80
v_mov_b32 v13, 0x3f800000
s_mov_b32 s58, 0x3b000000
s_mov_b32 s59, 0x3727c5ac
v_mul_u32_u24 v3, 144, v0
s_lshl_b32 s56, s3, 2
s_add_u32 s56, s56, {BOUNCE}
v_add_u32 v3, s56, v3""")
    for r in range(2):
        A(f"s_waitcnt vmcnt({1-r})")
        if r == 0: A.stamp(2)
        for i in range(4):
            c1 = "0" if i == 0 else f"v{160+r}"; c2 = "0" if i == 0 else f"v{162+r}"
            A(f"v_dot2_f32_bf16 v{160+r}, v{128+4*r+i}, v14, {c1}\nv_dot2_f32_bf16 v{162+r}, v{128+4*r+i}, v{128+4*r+i}, {c2}")
    A("""v_permlane32_swap_b32 v160, v161
v_permlane32_swap_b32 v162, v163
v_add_f32 v160, v160, v161
v_add_f32 v162, v162, v163
v_mov_b32 v161, v160
v_mov_b32 v163, v162
v_permlane16_swap_b32 v160, v161
v_permlane16_swap_b32 v162, v163
v_add_f32 v160, v160, v161
v_add_f32 v162, v162, v163""")
    for sh in (8, 4, 2, 1):
        for reg in (160, 162):
            A(f"v_add_f32_dpp v{reg}, v{reg}, v{reg} row_ror:{sh} row_mask:0xf bank_mask:0xf")
    A("""v_mul_f32 v160, s58, v160
v_mul_f32 v162, s58, v162
v_fma_f32 v162, -v160, v160, v162
v_max_f32 v162, 0, v162
v_cvt_pk_bf16_f32 v161, v162, -v160
v_and_b32 v160, 0xffff0000, v161
v_lshlrev_b32 v162, 16, v161
v_add_f32 v162, s59, v162
v_cvt_pk_bf16_f32 v162, v162, v162
v_and_b32 v162, 0xffff0000, v162
v_readlane_b32 s8, v160, 0
v_sqrt_f32 v162, v162
v_readlane_b32 s9, v160, 32
v_cvt_pk_bf16_f32 v162, v162, v162
v_and_b32 v162, 0xffff0000, v162
v_rcp_f32 v162, v162""")
    for c in range(8):
        for r in range(2):
            A(f"v_dot2_f32_bf16 v{164+2*c+r}, v{128+4*r+c//2}, {'v12' if c % 2 == 0 else 'v13'}, s{8+r}")
        if c == 0: A("v_readlane_b32 s10, v162, 0\nv_readlane_b32 s11, v162, 32")
    for c in range(8): A(f"v_pk_mul_f32 v[{164+2*c}:{165+2*c}], v[{164+2*c}:{165+2*c}], s[10:11]")
    A(f"s_add_u32 s57, s57, {WS_XN}")
    for r in range(2):
        for p in range(4): A(f"v_cvt_pk_bf16_f32 v{136+4*r+p}, v{164+4*p+r}, v{166+4*p+r}")
        A(f"buffer_store_dwordx4 v[{136+4*r}:{139+4*r}], v2, s[40:43], s57 offen offset:{1024*r} sc1")
    for c in range(8):
        A(f"v_cvt_pk_bf16_f32 v{144+c}, v{164+2*c}, v{165+2*c}\nds_write_b32 v3, v{144+c} offset:{16*c}")
    A(f"""s_lshl_b32 s56, s3, 2
v_add_u32 v13, s56, v15
v_mov_b32 v12, 1
s_waitcnt lgkmcnt(0)
ds_write_b32 v13, v12 offset:{F_LN}
v_lshrrev_b32 v3, 3, v0
v_mul_u32_u24 v3, 144, v3
v_and_b32 v4, 7, v0
v_lshl_add_u32 v3, v4, 4, v3
s_mul_i32 s56, s3, {16*144}
s_add_u32 s56, s56, {BOUNCE}
v_add_u32 v3, s56, v3""")
    get_nonce(A)
    A.lds_wait("v15", F_LN, 4, "lg", 0)
    A(f"""ds_read_b128 v[144:147], v3
ds_read_b128 v[148:151], v3 offset:{8*144}
s_add_u32 s57, s57, {WS_XNT-WS_XN}
s_lshl_b32 s58, s53, 4
s_lshl_b32 s59, s3, 2
s_add_u32 s58, s58, s59
s_add_u32 s58, s58, {WS_FLL}
s_lshl_b32 s59, s3, 8
s_add_u32 s59, s59, s53
s_lshl_b32 s59, s59, 2
s_add_u32 s59, s59, {WS_FLG}
v_mov_b32 v16, s52
v_mov_b32 v17, 0
v_mov_b32 v12, 2
s_waitcnt lgkmcnt(0)
ds_write_b32 v13, v12 offset:{F_LN}
buffer_store_dwordx4 v[144:147], v2, s[40:43], s57 offen sc1
buffer_store_dwordx4 v[148:151], v2, s[40:43], s57 offen offset:1024 sc1""")
    A.stamp(3)

def ln_flags(A):
    A(f"""s_waitcnt vmcnt(2)
s_mov_b64 exec, 1
buffer_store_dword v16, v17, s[40:43], s58 offen
s_waitcnt vmcnt(1)
buffer_store_dword v16, v17, s[40:43], s59 offen sc1
s_mov_b64 exec, -1""")
    A.stamp(4)

ACC = 32
def acc(i, j): return ACC + 16 * (3 * i + j)
BUF = (128, 148)
def rd_frags(A, buf, ks):
    b = BUF[buf]
    for i in range(2):
        A(f"ds_read_b128 v[{b+4*i}:{b+4*i+3}], v{2+ks} offset:{i*4096}")
    for j in range(3):
        for t in range(2):
            A(f"ds_read_b64_tr_b16 v[{b+8+4*j+2*t}:{b+8+4*j+2*t+1}], v{6+j} offset:{ks*1024+t*256}")
def mfmas(A, buf):
    b = BUF[buf]
    for j in range(3):
        for i in range(2):
            a = acc(i, j)
            A(f"v_mfma_f32_32x32x16_bf16 v[{a}:{a+15}], v[{b+8+4*j}:{b+8+4*j+3}], v[{b+4*i}:{b+4*i+3}], v[{a}:{a+15}]")

def gemm(A):
    o = A.o
    ln(A)
    A("s_and_b32 s60, s3, 1\ns_lshr_b32 s61, s3, 1")
    A(f"""v_and_b32 v18, 31, v0
v_lshrrev_b32 v19, 5, v0
v_lshrrev_b32 v20, 1, v18
v_and_b32 v20, 7, v20
v_xor_b32 v20, v19, v20
s_lshl_b32 s56, s60, 6
v_add_u32 v18, s56, v18
v_lshlrev_b32 v18, 7, v18
v_lshl_add_u32 v2, v20, 4, v18
v_xor_b32 v3, 32, v2
v_xor_b32 v4, 64, v2
v_xor_b32 v5, 96, v2
v_bfe_u32 v18, v0, 4, 1
v_mul_u32_u24 v20, 12288, v18
v_lshlrev_b32 v18, 5, v18
v_add_u32 v20, v20, v18
v_lshl_add_u32 v20, v19, 9, v20
v_bfe_u32 v18, v0, 2, 2
v_lshl_add_u32 v20, v18, 6, v20
v_and_b32 v18, 3, v0
v_lshl_add_u32 v20, v18, 3, v20
v_add_u32 v20, 16384, v20""")
    for j in range(3):
        A(f"""s_mul_i32 s56, s61, 3
s_add_u32 s56, s56, {j}
s_and_b32 s57, s56, 1
s_lshl_b32 s57, s57, 5
s_lshr_b32 s56, s56, 1
s_lshl_b32 s56, s56, 12
v_xor_b32 v{6+j}, s57, v20
v_add_u32 v{6+j}, s56, v{6+j}""")
    ln_flags(A)
    for r in range(96): A(f"v_mov_b32 v{ACC+r}, 0")
    A(f"""s_mov_b32 s62, 0
s_mov_b32 s63, 0
s_mov_b32 s64, {SLOT}
s_mov_b32 s65, {-2*SLOT & 0xffffffff}
s_cmp_lt_u32 s7, 15
s_cbranch_scc1 L_g1_go
v_mov_b32 v12, 8
ds_write_b32 v13, v12 offset:{F_FREE}
s_branch L_conv
L_g1_go:""")
    A.lds_wait("v15", F_FULL, 2, "gt", "s62")
    A.stamp(5)
    rd_frags(A, 0, 0)
    A(".p2align 3\nL_g1_loop:")
    rd_frags(A, 1, 1); A("s_waitcnt lgkmcnt(8)"); mfmas(A, 0)
    rd_frags(A, 0, 2); A("s_waitcnt lgkmcnt(8)"); mfmas(A, 1)
    rd_frags(A, 1, 3); A(f"ds_read_b64 v[16:17], v15 offset:{F_FULL}\ns_waitcnt lgkmcnt(9)"); mfmas(A, 0)
    A(f"""s_add_u32 s62, s62, 1
v_mov_b32 v12, s62
s_add_u32 s63, s63, {SLOT}
s_cmp_eq_u32 s63, {3*SLOT}
s_cselect_b32 s57, s65, s64
s_cselect_b32 s63, 0, s63
s_waitcnt lgkmcnt(0)
ds_write_b32 v13, v12 offset:{F_FREE}
v_min_u32 v16, v16, v17""")
    for r in range(2, 9): A(f"v_add_u32 v{r}, s57, v{r}")
    A(f"""v_readfirstlane_b32 s56, v16
s_cmp_eq_u32 s62, 8
s_cbranch_scc1 L_g1_end
s_cmp_gt_u32 s56, s62
s_cbranch_scc0 L_g1_slow""")
    rd_frags(A, 0, 0); mfmas(A, 1)
    A("s_branch L_g1_loop\nL_g1_slow:")
    mfmas(A, 1)
    A.lds_wait("v15", F_FULL, 2, "gt", "s62")
    rd_frags(A, 0, 0)
    A("s_branch L_g1_loop\nL_g1_end:")
    mfmas(A, 1)
    A.stamp(6)
    A(f"""s_lshl_b32 s56, s6, 1
s_add_u32 s56, s56, s60
s_mul_i32 s57, s56, {2*86*1024}
s_mul_i32 s58, s7, 6
s_mul_i32 s59, s61, 3
s_add_u32 s58, s58, s59
s_lshl_b32 s59, s58, 10
s_add_u32 s57, s57, s59
s_add_u32 s57, s57, {WS_H}
s_mov_b32 s62, {LOG2E ^ 0x80000000}
s_mov_b32 s63, s62
v_lshlrev_b32 v2, 4, v0""")
    T = 128
    for j in range(3):
        for i in range(2):
            a = acc(i, j)
            d = 168 + 4 * ((2*j+i) % 3)
            for p in range(4): A(f"v_pk_mul_f32 v[{T+2*p}:{T+2*p+1}], v[{a+2*p}:{a+2*p+1}], s[62:63]")
            for e in range(8): A(f"v_exp_f32 v{T+e}, v{T+e}")
            for p in range(4): A(f"v_pk_mul_f32 v[{T+8+2*p}:{T+9+2*p}], v[{a+2*p}:{a+2*p+1}], v[{a+8+2*p}:{a+9+2*p}]")
            for p in range(4): A(f"v_pk_add_f32 v[{T+2*p}:{T+2*p+1}], v[{T+2*p}:{T+2*p+1}], 1.0 op_sel_hi:[1,0]")
            for e in range(8): A(f"v_rcp_f32 v{T+e}, v{T+e}")
            for p in range(4): A(f"v_pk_mul_f32 v[{T+8+2*p}:{T+9+2*p}], v[{T+8+2*p}:{T+9+2*p}], v[{T+2*p}:{T+2*p+1}]")
            for p in range(4): A(f"v_cvt_pk_bf16_f32 v{d+p}, v{T+8+2*p}, v{T+9+2*p}")
            l = A.lab("Lhs")
            A(f"""s_add_u32 s59, s58, {j}
s_cmp_ge_u32 s59, 86
s_cbranch_scc1 {l}
s_add_u32 s59, s57, {i*86*1024+j*1024}
buffer_store_dwordx4 v[{d}:{d+3}], v2, s[40:43], s59 offen sc1
{l}:""")
    A(f"""s_lshl_b32 s54, s56, 5
s_lshl_b32 s58, s7, 1
s_add_u32 s54, s54, s58
s_add_u32 s54, s54, s61
s_lshl_b32 s54, s54, 2
s_add_u32 s54, s54, {WS_FHL}""")
    A.stamp(7)
    conv(A)
    gemm2(A)

def h_flags(A):
    l = A.lab("Lhf")
    A(f"""s_cmp_ge_u32 s7, 15
s_cbranch_scc1 {l}
v_mov_b32 v18, s52
v_mov_b32 v19, 0
s_waitcnt vmcnt(0)
s_mov_b64 exec, 1
buffer_store_dword v18, v19, s[40:43], s54 offen
s_add_u32 s54, s54, {WS_FHG-WS_FHL}
buffer_store_dword v18, v19, s[40:43], s54 offen sc1
s_mov_b64 exec, -1
{l}:""")

def conv(A):
    o = A.o
    D = 32
    A(f"""L_conv:
s_mul_i32 s58, s61, {CONV_SZ}
s_add_u32 s58, s58, {L_CONV}
s_lshl_b32 s59, s60, 8
s_sub_u32 s59, s58, s59
v_and_b32 v10, 15, v0
v_lshrrev_b32 v11, 4, v0
v_and_b32 v18, 1, v0
v_cmp_eq_u32 vcc, 1, v18
v_sub_u32 v18, 2032, v10
v_lshrrev_b32 v18, 1, v18
v_lshl_add_u32 v18, v11, 2, v18
v_lshlrev_b32 v18, 2, v18
v_mov_b32 v19, {KT_O}
v_cndmask_b32 v19, v19, 0, vcc
v_add3_u32 v18, v18, v19, s59""")
    for p in range(4): A(f"v_subrev_u32 v{4+p}, {4*(128*(2*p+1)+48)}, v18")
    A(f"""v_lshlrev_b32 v8, 5, v10
v_lshl_add_u32 v8, v11, 4, v8
v_add_u32 v8, s59, v8
v_add_u32 v8, {U_OFF+512-32-192}, v8""")
    A.lds_wait("v15", F_KR, 2, "lg", 0)
    A.stamp(8)
    KB = (64, 128); UB = (96, 160)
    def reads(buf, cc):
        L = []
        for a in range(8):
            off = 128 * (1 - (a & 1)) + 16 * (3 - cc)
            for h in range(2):
                L.append(f"ds_read2_b32 v[{KB[buf]+4*a+2*h}:{KB[buf]+4*a+2*h+1}], v{4+a//2} offset0:{off+2*h} offset1:{off+2*h+1}")
            L.append(f"ds_read_b128 v[{UB[buf]+4*a}:{UB[buf]+4*a+3}], v8 offset:{512*a+64*(3-cc)}")
        return L
    def mm(buf, fill, first):
        fill = list(fill)
        for a in range(8):
            for p in range(8 - a):
                q = D + 4 * (a + p)
                c = "0" if (first and a == 0) else f"v[{q}:{q+3}]"
                A(f"v_mfma_f32_16x16x32_bf16 v[{q}:{q+3}], v[{KB[buf]+4*a}:{KB[buf]+4*a+3}], v[{UB[buf]+4*p}:{UB[buf]+4*p+3}], {c}")
                if fill: A(fill.pop(0))
        assert not fill
    for x in reads(0, 0): A(x)
    for cc in range(4):
        A("s_waitcnt lgkmcnt(0)")
        if cc == 3:
            A(f"v_mov_b32 v12, 1\nds_write_b32 v13, v12 offset:{F_CA}")
        mm(cc % 2, reads((cc + 1) % 2, cc + 1) if cc < 3 else [], cc == 0)
        if cc == o.hflag_at: h_flags(A)
    A.stamp(9)
    A(f"""s_xor_b32 s59, s3, 1
s_lshl_b32 s59, s59, 2
v_add_u32 v9, s59, v15
v_lshlrev_b32 v5, 4, v0
s_lshl_b32 s59, s60, 12
s_add_u32 s59, s59, s58
v_add_u32 v6, s59, v5
v_xor_b32 v7, 4096, v5
s_lshl_b32 s59, s60, 12
v_xor_b32 v7, s59, v7
v_add_u32 v7, s58, v7""")
    A.lds_wait("v9", F_CA, 1, "lg", 0)
    A("s_cmp_eq_u32 s60, 0\ns_cbranch_scc1 L_cx0")
    for q in range(4): A(f"ds_write_b128 v6, v[{32+4*q}:{35+4*q}] offset:{q*1024}")
    for r in range(16): A(f"v_mov_b32 v{32+r}, v{48+r}")
    A("s_branch L_cx1\nL_cx0:")
    for q in range(4): A(f"ds_write_b128 v6, v[{48+4*q}:{51+4*q}] offset:{q*1024}")
    A(f"""L_cx1:
s_waitcnt lgkmcnt(0)
ds_write_b32 v13, v12 offset:{F_CB}
s_lshl_b32 s56, s53, 1
s_add_u32 s56, s56, s61
s_lshl_b32 s57, s56, 12
s_lshl_b32 s59, s60, 11
s_add_u32 s57, s57, s59
s_add_u32 s57, s57, {WS_ST}
v_lshlrev_b32 v2, 5, v10
v_lshl_add_u32 v2, v11, 3, v2""")
    A.lds_wait("v9", F_CB, 1, "lg", 0)
    for q in range(4): A(f"ds_read_b128 v[{48+4*q}:{51+4*q}], v7 offset:{q*1024}")
    for q in range(4):
        A(f"s_waitcnt lgkmcnt({3-q})")
        for p in range(2):
            a = 32 + 4*q + 2*p
            A(f"v_pk_add_f32 v[{a}:{a+1}], v[{a}:{a+1}], v[{a+16}:{a+17}]")
        A(f"v_cvt_pk_bf16_f32 v{24+2*q}, v{32+4*q}, v{33+4*q}\nv_cvt_pk_bf16_f32 v{25+2*q}, v{34+4*q}, v{35+4*q}")
        A(f"buffer_store_dwordx2 v[{24+2*q}:{25+2*q}], v2, s[40:43], s57 offen offset:{512*q} sc1")
    A(f"""s_lshl_b32 s54, s56, 1
s_add_u32 s54, s54, s60
s_lshl_b32 s54, s54, 2
s_add_u32 s54, s54, {WS_FS}""")
    A.stamp(10)

NPRE = 13
WR = 64
HR = 168; NH = 18
WF = 240
def gemm2(A):
    o = A.o
    A.srd(44, 30, 2097152)
    A(f"""s_and_b32 s56, s5, 3
s_lshl_b32 s57, s4, 2
s_add_u32 s56, s56, s57
s_lshr_b32 s57, s5, 2
v_and_b32 v10, 31, v0
v_lshrrev_b32 v11, 5, v0
v_bfe_u32 v18, v0, 2, 2
v_lshl_add_u32 v18, v11, 2, v18
v_lshlrev_b32 v2, 7, v18
v_bfe_u32 v18, v0, 3, 1
v_lshl_add_u32 v2, v18, 6, v2
v_bfe_u32 v18, v0, 4, 1
v_lshl_add_u32 v2, v18, 5, v2
v_and_b32 v18, 3, v0
v_lshl_add_u32 v2, v18, 3, v2
s_mul_i32 s59, s61, 20480
v_add_u32 v2, s59, v2
v_xor_b32 v3, 64, v2
v_add_u32 v6, {2*SLOT}, v2
v_add_u32 v7, {2*SLOT}, v3
s_lshl_b32 s59, s61, 2
v_add_u32 v4, s59, v15""")
    def wrd(i, b):
        c, ii = i // 10, i % 10
        sl = (8 + c) % 3
        L = []
        for nt in range(2):
            for t in range(2):
                ad = (6 + nt) if sl == 2 else (2 + nt)
                off = ii * 2048 + t * 1024 + (SLOT if sl == 1 else 0)
                L.append(f"ds_read_b64_tr_b16 v[{b+4*nt+2*t}:{b+4*nt+2*t+1}], v{ad} offset:{off}")
        return L
    A.lds_wait("v4", F_FULL, 1, "gt", 9)
    for i in range(NPRE):
        for x in wrd(i, WR + 8 * i): A(x)
    A(f"""v_lshlrev_b32 v12, 10, v10
v_lshl_add_u32 v12, v11, 3, v12
s_lshl_b32 s58, s56, 1
s_add_u32 s58, s58, s60
s_lshl_b32 s62, s58, 15
s_lshl_b32 s59, s57, 7
s_add_u32 s62, s62, s59
s_lshl_b32 s59, s61, 6
s_add_u32 s62, s62, s59
v_min_u32 v18, 28, v10
v_lshlrev_b32 v18, 2, v18
v_add_u32 v19, {WS_FHG-WS_FHL}, v18
s_lshl_b32 s59, s56, 7
s_add_u32 s59, s59, {WS_FHL}
s_mul_i32 s63, s58, {86*1024}
s_mul_i32 s64, s61, {43*1024}
s_add_u32 s63, s63, s64
s_add_u32 s63, s63, {WS_H}
v_mov_b32 v16, 10
s_waitcnt lgkmcnt(0)
ds_write_b32 v13, v16 offset:{F_FREE}
v_mov_b32 v16, s52
v_mov_b32 v17, 0
s_waitcnt vmcnt(0)
s_mov_b64 exec, 1
buffer_store_dword v16, v17, s[40:43], s54 offen sc1
s_mov_b64 exec, -1""")
    for q in range(4):
        A(f"buffer_load_dwordx2 v[{24+2*q}:{25+2*q}], v12, s[36:39], s62 offen offset:{16*q}")
    rot2(A, 64, 65)
    A.stamp(11)
    A.flag_wait("v18", "v19", "s59", 64, sleep=o.hsleep)
    A.stamp(12)
    def hld(i):
        r = HR + 4 * (i % NH)
        A(f"""s_lshl_b32 s65, s64, 10
s_add_u32 s65, s65, s63
s_add_u32 s64, s64, 1
buffer_load_dwordx4 v[{r}:{r+3}], v5, s[40:43], s65 offen{o.hld}
s_cmp_eq_u32 s64, 43
s_cselect_b32 s64, 0, s64""")
    AHEAD = o.ahead
    assert AHEAD < NH
    for i in range(AHEAD): hld(i)
    for i in range(43):
        nxt = i + 1
        lg = ""
        if NPRE <= nxt < 43:
            if nxt % 10 == 0:
                if i >= NPRE: pass
                A.lds_wait("v4", F_FULL, 1, "gt", 8 + nxt // 10)
            for x in wrd(nxt, WF + 8 * (nxt % 2)): A(x)
            lg = " lgkmcnt(4)"
        elif nxt == 43: lg = " lgkmcnt(0)"
        if i + AHEAD < 43: hld(i + AHEAD)
        out = min(43, i + AHEAD + 1) - (i + 1)
        A(f"s_waitcnt vmcnt({out}){lg}")
        b = WR + 8 * i if i < NPRE else WF + 8 * (i % 2)
        r = HR + 4 * (i % NH)
        for nt in range(2):
            c = "0" if i == 0 else f"v[{32+16*nt}:{47+16*nt}]"
            A(f"v_mfma_f32_32x32x16_bf16 v[{32+16*nt}:{47+16*nt}], v[{b+4*nt}:{b+4*nt+3}], v[{r}:{r+3}], {c}")
    A.stamp(13)
    A(f"""v_lshlrev_b32 v18, 3, v10
s_lshl_b32 s58, s57, 1
s_add_u32 s58, s58, s61
s_lshl_b32 s59, s58, 8
s_lshr_b32 s63, s56, 4
s_lshl_b32 s63, s63, 2
s_add_u32 s59, s59, s63
s_add_u32 s59, s59, {WS_FS}
buffer_load_dword v20, v18, s[40:43], s59 offen sc1""")
    A(f"""s_mul_i32 s63, s61, {CONV_SZ}
s_lshl_b32 s64, s60, 12
s_add_u32 s64, s64, {L_CONV+8192}
s_add_u32 s63, s63, s64
v_add_u32 v6, s63, v5
s_xor_b32 s63, s61, 1
s_mul_i32 s63, s63, {CONV_SZ}
s_add_u32 s63, s63, s64
v_add_u32 v7, s63, v5
s_xor_b32 s63, s3, 2
s_lshl_b32 s63, s63, 2
v_add_u32 v8, s63, v15
v_mov_b32 v9, 1
s_cmp_eq_u32 s61, 0
s_cbranch_scc1 L_x0""")
    for q in range(4): A(f"ds_write_b128 v6, v[{32+4*q}:{35+4*q}] offset:{q*1024}")
    for r in range(16): A(f"v_mov_b32 v{32+r}, v{48+r}")
    A("s_branch L_x1\nL_x0:")
    for q in range(4): A(f"ds_write_b128 v6, v[{48+4*q}:{51+4*q}] offset:{q*1024}")
    A(f"""L_x1:
s_waitcnt lgkmcnt(0)
ds_write_b32 v13, v9 offset:{F_XR}
v_lshlrev_b32 v19, 14, v11
v_lshl_add_u32 v19, v10, 1, v19
s_lshl_b32 s63, s58, 17
s_lshl_b32 s64, s56, 1
s_add_u32 s64, s64, s60
s_lshl_b32 s64, s64, 6
s_add_u32 s63, s63, s64
s_add_u32 s63, s63, {WS_ST}""")
    for r in range(16): A(f"v_mov_b32 v{64+r}, 0")
    A(f"""L_s_fl:
s_waitcnt vmcnt(0)
v_cmp_ne_u32 vcc, s52, v20
s_cbranch_vccz L_s_fld
buffer_load_dword v20, v18, s[40:43], s59 offen sc1""")
    A.tmo("L_s_fl")
    A("L_s_fld:")
    A.stamp(14)
    for q in range(4):
        for r in range(4):
            A(f"s_add_u32 s64, s63, {(8*q+r)*4096}\nbuffer_load_short_d16_hi v{64+4*q+r}, v19, s[40:43], s64 offen sc1")
    A.lds_wait("v8", F_XR, 1, "lg", 0)
    for q in range(4): A(f"ds_read_b128 v[{48+4*q}:{51+4*q}], v7 offset:{q*1024}")
    A(f"s_mov_b32 s64, {LOG2E ^ 0x80000000}\ns_mov_b32 s65, s64")
    for q in range(4):
        A(f"s_waitcnt lgkmcnt({3-q})")
        for p in range(2):
            a = 32 + 4*q + 2*p
            A(f"v_pk_add_f32 v[{a}:{a+1}], v[{a}:{a+1}], v[{a+16}:{a+17}]")
    for p in range(8): A(f"v_pk_mul_f32 v[{48+2*p}:{49+2*p}], v[{32+2*p}:{33+2*p}], s[64:65]")
    for e in range(16): A(f"v_exp_f32 v{48+e}, v{48+e}")
    for p in range(8): A(f"v_pk_add_f32 v[{48+2*p}:{49+2*p}], v[{48+2*p}:{49+2*p}], 1.0 op_sel_hi:[1,0]")
    for e in range(16): A(f"v_rcp_f32 v{48+e}, v{48+e}")
    for p in range(8):
        A(f"v_lshlrev_b32 v{80+2*p}, 16, v{24+p}\nv_and_b32 v{81+2*p}, 0xffff0000, v{24+p}")
    for p in range(8): A(f"v_pk_mul_f32 v[{32+2*p}:{33+2*p}], v[{32+2*p}:{33+2*p}], v[{48+2*p}:{49+2*p}]")
    A("s_waitcnt vmcnt(0)")
    for p in range(8): A(f"v_pk_fma_f32 v[{32+2*p}:{33+2*p}], v[{32+2*p}:{33+2*p}], v[{64+2*p}:{65+2*p}], v[{80+2*p}:{81+2*p}]")
    for p in range(8): A(f"v_cvt_pk_bf16_f32 v{48+p}, v{32+2*p}, v{33+2*p}")
    for q in range(4):
        A(f"buffer_store_dwordx2 v[{48+2*q}:{49+2*q}], v12, s[44:47], s62 offen offset:{16*q}")
    A.stamp(15)
    A.put_stamps()
    A("s_endpgm")

def kgen(A):
    o = A.o
    A(f"""L_kgen:
s_sub_u32 s54, s3, 4
s_lshl_b32 s56, s53, 1
s_add_u32 s56, s56, s54
s_lshl_b32 s57, s56, 8
v_lshl_add_u32 v2, v0, 2, s57
s_lshl_b32 s57, s56, 1
v_mov_b32 v3, s57
global_load_dword v4, v2, s[10:11]
global_load_ushort v8, v3, s[18:19]
global_load_dword v5, v2, s[12:13]
global_load_dword v6, v2, s[14:15]
global_load_dword v7, v2, s[16:17]
global_load_ushort v9, v3, s[20:21]
s_mul_i32 s58, s54, {CONV_SZ}
s_add_u32 s58, s58, {L_CONV}
v_lshl_add_u32 v10, v0, 3, s58
v_and_b32 v11, 31, v0
v_mul_u32_u24 v11, 528, v11
v_lshrrev_b32 v12, 5, v0
v_lshl_add_u32 v11, v12, 4, v11
v_add_u32 v11, s58, v11
s_mov_b32 s59, {LOG2E}
s_mov_b32 s60, 0x3e22f983
s_waitcnt vmcnt(4)""")
    A.stamp(2)
    A("""v_lshlrev_b32 v16, 16, v4
v_and_b32 v17, 0xffff0000, v4
v_lshlrev_b32 v8, 16, v8
v_mul_f32 v16, s59, v16
v_mul_f32 v17, s59, v17
v_mul_f32 v8, s59, v8
v_exp_f32 v16, v16
v_exp_f32 v17, v17
v_exp_f32 v8, v8
v_cvt_pk_bf16_f32 v16, v16, v17
v_cvt_pk_bf16_f32 v8, v8, v8
v_and_b32 v17, 0xffff0000, v16
v_lshlrev_b32 v16, 16, v16
v_and_b32 v8, 0xffff0000, v8
v_mul_f32 v16, v16, v8
v_mul_f32 v17, v17, v8
v_mul_f32 v16, s59, v16
v_mul_f32 v17, s59, v17
s_waitcnt vmcnt(3)
v_lshlrev_b32 v18, 16, v5
v_and_b32 v19, 0xffff0000, v5
v_mul_f32 v18, v18, v8
v_mul_f32 v19, v19, v8
v_mul_f32 v18, s60, v18
v_mul_f32 v19, s60, v19""")
    for (dst, p) in ((36, 8.0), (32, 1.0), (40, 256.0)):
        pf = struct.unpack("<I", struct.pack("<f", p))[0]
        npf = pf ^ 0x80000000
        for m in range(2): A(f"v_mul_f32 v{20+m}, {hex(npf)}, v{16+m}\nv_mul_f32 v{22+m}, {hex(pf)}, v{18+m}")
        for m in range(2): A(f"v_exp_f32 v{20+m}, v{20+m}\nv_fract_f32 v{22+m}, v{22+m}")
        for m in range(2): A(f"v_cos_f32 v{dst+2*m}, v{22+m}\nv_sin_f32 v{dst+2*m+1}, v{22+m}")
        for m in range(2): A(f"v_mul_f32 v{dst+2*m}, v{dst+2*m}, v{20+m}\nv_mul_f32 v{dst+2*m+1}, v{dst+2*m+1}, v{20+m}")
    def cm2(d, a, z):
        for m in range(2):
            A(f"v_pk_mul_f32 v[{24+2*m}:{25+2*m}], v[{a+2*m}:{a+2*m+1}], v[{z+2*m}:{z+2*m+1}] op_sel:[0,0] op_sel_hi:[0,1]")
        for m in range(2):
            A(f"v_pk_fma_f32 v[{d+2*m}:{d+2*m+1}], v[{a+2*m}:{a+2*m+1}], v[{z+2*m}:{z+2*m+1}], v[{24+2*m}:{25+2*m}] op_sel:[1,1,0] op_sel_hi:[1,0,1] neg_lo:[1,0,0]")
    pk = [1]
    def put(src, rows, neg):
        t = 28 + 2 * (pk[0] % 2); pk[0] += 1
        n = "-" if neg else ""
        A(f"v_cvt_pk_bf16_f32 v{t}, v{src}, {n}v{src+1}\nv_cvt_pk_bf16_f32 v{t+1}, v{src+2}, {n}v{src+3}")
        for row in rows: A(f"ds_write_b64 v10, v[{t}:{t+1}] offset:{row*528}")
    A("v_mov_b32 v28, 0x3f80\nv_mov_b32 v29, 0x3f80\nds_write_b64 v10, v[28:29]")
    put(36, [1], False)
    cur = 36
    for j in range(2, 32):
        d = 44 + 4 * (j % 2)
        cm2(d, cur, 36); put(d, [j], False); cur = d
    A.stamp(3)
    E = 52
    A(f"""s_waitcnt vmcnt(0)
v_add_f32 v8, v8, v8
v_lshlrev_b32 v{E}, 16, v6
v_lshlrev_b32 v{E+1}, 16, v7
v_and_b32 v{E+2}, 0xffff0000, v6
v_and_b32 v{E+3}, 0xffff0000, v7""")
    for k in range(4): A(f"v_mul_f32 v{E+k}, v{E+k}, v8")
    A("v_lshlrev_b32 v2, 4, v0\ns_waitcnt lgkmcnt(0)")
    RF = 128; LF = 192
    for s in range(16): A(f"ds_read_b128 v[{RF+4*s}:{RF+4*s+3}], v11 offset:{32*s}")
    def row(reg, hf): return 8 * (reg >> 2) + 4 * hf + (reg & 3)
    for i in range(1, 9): cm2(E + 4*i, E + 4*(i-1), 32)
    A("s_waitcnt lgkmcnt(0)")
    for i in range(9): put(E + 4*i, [row(i, 0)], True)
    dup = {0: [0, 1], 2: [2], 4: [3, 4, 5], 6: [6], 8: [7, 8]}
    for i in (0, 2, 4, 6, 8):
        cm2(E + 4*i, E + 4*i, 40); put(E + 4*i, [row(r, 1) for r in dup[i]], True)
    for hf in range(2):
        for n, i in enumerate((0, 4, 8)):
            cm2(E + 4*i, E + 4*i, 40); put(E + 4*i, [row(9 + n, hf)], True)
    for blk in range(4):
        for n, i in enumerate((0, 8)):
            cm2(E + 4*i, E + 4*i, 40); put(E + 4*i, [row(12 + 2*(blk >> 1) + n, blk & 1)], True)
    A("s_waitcnt lgkmcnt(0)")
    for s in range(16): A(f"ds_read_b128 v[{LF+4*s}:{LF+4*s+3}], v11 offset:{32*s}")
    D = 32
    for s in range(16):
        A(f"s_waitcnt lgkmcnt({15-s})")
        c = "0" if s == 0 else f"v[{D}:{D+15}]"
        A(f"v_mfma_f32_32x32x16_bf16 v[{D}:{D+15}], v[{LF+4*s}:{LF+4*s+3}], v[{RF+4*s}:{RF+4*s+3}], {c}")
    A(f"""s_lshl_b32 s57, s54, 2
v_add_u32 v21, s57, v15
v_mov_b32 v22, 1
ds_write_b32 v21, v22 offset:{F_KD}
v_lshlrev_b32 v9, 16, v9
v_cmp_eq_u32 vcc, 0, v0
v_cndmask_b32 v9, 0, v9, vcc
v_sub_u32 v12, {4080-3072}, v2
v_add_u32 v12, s58, v12
v_and_b32 v13, 1, v0
v_cmp_eq_u32 vcc, 1, v13
v_mov_b32 v16, 0
v_mov_b32 v17, 0
v_mov_b32 v18, 0
v_mov_b32 v19, 0
v_add_u32 v14, s58, v2
v_add_f32 v{D}, v{D}, v9""")
    def wr(grp, k):
        t = 48 + 8 * (grp % 2)
        for u in range(4): A(f"v_cvt_pk_bf16_f32 v{t+u}, v{k[7-2*u]}, v{k[6-2*u]}")
        for u in range(4): A(f"v_cvt_pk_bf16_f32 v{t+4+u}, v{k[8-2*u]}, v{k[7-2*u]}")
        A(f"ds_write_b128 v12, v[{t}:{t+3}] offset:{3072-1024*grp}\nds_write_b128 v12, v[{t+4}:{t+7}] offset:{3072-1024*grp+KT_O}")
    wr(0, [D+i for i in range(9)])
    a, b, c = D+9, D+10, D+11
    wr(1, [a, a, a, b, b, b, c, c, c])
    for grp in (2, 3):
        a, b = D + 12 + 2*(grp-2), D + 13 + 2*(grp-2)
        A(f"v_cndmask_b32 v20, v{a}, v{b}, vcc")
        wr(grp, [a, a, a, a, 20, b, b, b, b])
    A(f"""s_mov_b64 exec, 0xf
ds_write_b128 v14, v[16:19] offset:4096
s_mov_b32 exec_lo, -1
ds_write_b128 v14, v[16:19] offset:{U_OFF}
s_mov_b64 exec, 1
v_cvt_pk_bf16_f32 v16, v{D}, 0
s_mov_b64 exec, 0xf
ds_write_b128 v14, v[16:19] offset:{4096+KT_O}
s_mov_b64 exec, -1""")
    A.stamp(4)
    get_nonce(A)
    A(f"""v_lshlrev_b32 v3, 3, v0
s_lshr_b32 s61, s4, 1
s_lshl_b32 s61, s61, 10
s_lshl_b32 s62, s54, 9
s_add_u32 s61, s61, s62
s_add_u32 s61, s61, {WS_FLG}
v_lshrrev_b32 v4, 1, v0
v_lshlrev_b32 v5, 13, v4
v_lshl_add_u32 v5, v13, 4, v5
v_mul_u32_u24 v6, {CONV_SZ}, v13
v_lshl_add_u32 v6, v4, 4, v6
s_lshl_b32 s62, s54, 11
s_add_u32 s62, s62, {L_CONV+U_OFF+512}
v_add_u32 v6, s62, v6
s_lshl_b32 s62, s54, 20
s_lshl_b32 s63, s53, 5
s_add_u32 s62, s62, s63
s_add_u32 s62, s62, {WS_XNT}""")
    if o.uat: A.lds_wait("v15", F_FULL, 2, "ge", o.uat, sleep=4)
    A(f"""L_k_fl:
buffer_load_dwordx2 v[16:17], v3, s[40:43], s61 offen sc1
s_waitcnt vmcnt(0)
v_xor_b32 v16, s52, v16
v_xor_b32 v17, s52, v17
v_or_b32 v16, v16, v17
v_cmp_ne_u32 vcc, 0, v16
s_cbranch_vccz L_k_fld
s_sleep 16""")
    A.tmo("L_k_fl")
    A("L_k_fld:")
    A.stamp(5)
    for k in range(4):
        A(f"s_add_u32 s63, s62, {k*32*8192}\nbuffer_load_dwordx4 v[{96+4*k}:{99+4*k}], v5, s[40:43], s63 offen sc1")
    A.lds_wait("v15", F_KD, 2, "lg", 0)
    for k in range(4):
        A(f"s_waitcnt vmcnt({3-k})\nds_write_b128 v6, v[{96+4*k}:{99+4*k}] offset:{k*512}")
    A(f"""s_waitcnt lgkmcnt(0)
ds_write_b32 v21, v22 offset:{F_KR}""")
    A.stamp(6)
    A(f"""s_cmp_lg_u32 s56, 0
s_cbranch_scc1 L_k_nb""")
    A.lds_wait("v15", F_KR, 2, "lg", 0)
    A(f"""ds_read_b32 v4, v15 offset:{F_NONCE+4}
v_mov_b32 v5, 0
s_waitcnt lgkmcnt(0)
s_mov_b64 exec, 1
buffer_store_dword v4, v5, s[40:43], 0 offen sc1
s_mov_b64 exec, -1
L_k_nb:
s_waitcnt lgkmcnt(0)""")
    A.put_stamps()
    A("s_endpgm")

HEADER = open("recurrent_scan__ssm_conv_s4d__swiglu_ffn__prompt.s.ref").read().split("; Override launch")[0]

def build(o):
    A = G(o)
    prologue(A)
    gemm(A)
    kgen(A)
    loader(A)
    A("L_exit:\ns_endpgm\nL_codeend:")
    lines, probs = hz.fix(A.L, o.verbose)
    for p in probs: print("HAZARD at branch:", p, file=sys.stderr)
    txt = HEADER + f"; @launch grid=(256,1,1) block=(512,1,1) lds={LDS_BYTES}\n"
    txt += f'.amdgcn_target "amdgcn-amd-amdhsa--gfx950"\n.text\n.globl {KN}\n.p2align 8\n.type {KN},@function\n{KN}:\n'
    txt += "\n".join(lines) + "\n"
    txt += f""".section .rodata,"a"
.p2align 6
.amdhsa_kernel {KN}
  .amdhsa_next_free_vgpr 256
  .amdhsa_next_free_sgpr 102
  .amdhsa_accum_offset 256
  .amdhsa_group_segment_fixed_size 0
  .amdhsa_kernarg_size 112
  .amdhsa_user_sgpr_count 2
  .amdhsa_user_sgpr_kernarg_segment_ptr 1
  .amdhsa_system_sgpr_workgroup_id_x 1
  .amdhsa_float_denorm_mode_32 3
.end_amdhsa_kernel
"""
    return txt

def parser():
    ap = argparse.ArgumentParser()
    ap.add_argument("-o", default="recurrent_scan__ssm_conv_s4d__swiglu_ffn__prompt.s")
    ap.add_argument("--stamps", action="store_true")
    ap.add_argument("--verbose", action="store_true")
    ap.add_argument("--cyc", action="store_true")
    ap.add_argument("--tmo", type=int, default=200000)
    ap.add_argument("--codepf", type=int, default=1)
    ap.add_argument("--rot", type=int, default=1)
    ap.add_argument("--rot2", type=int, default=1)
    ap.add_argument("--sigat", type=int, default=10)
    ap.add_argument("--sig7", type=int, default=1)
    ap.add_argument("--wpre", type=int, default=2)
    ap.add_argument("--lddelay", type=int, default=0)
    ap.add_argument("--lnsleep", type=int, default=2)
    ap.add_argument("--hsleep", type=int, default=2)
    ap.add_argument("--uat", type=int, default=7)
    ap.add_argument("--hflag_at", type=int, default=1)
    ap.add_argument("--ahead", type=int, default=12)
    ap.add_argument("--hld", default=" sc1")
    ap.add_argument("--xld", default=" sc1")
    return ap

if __name__ == "__main__":
    o = parser().parse_args()
    open(o.o, "w").write(build(o))
```

```python
import sys, argparse, struct
sys.path.insert(0, "gen")
import hz

KN = "recurrent_scan__ssm_conv_s4d__swiglu_ffn__prompt_kernel"
WS_EPOCH = 0x0
WS_FLL   = 0x1000
WS_FLG   = 0x2000
WS_FHL   = 0x3000
WS_FHG   = 0x4000
WS_FS    = 0x5000
WS_XN    = 0x10000
WS_XNT   = 0x210000
WS_ST    = 0x410000
WS_H     = 0x610000
WS_STAMP = 0x1000000
WS_BYTES = 268435456
SLOT = 40960
L_CONV = 3 * SLOT
CONV_SZ = 16896
L_FLAGS = L_CONV + 2 * CONV_SZ
LDS_BYTES = L_FLAGS + 128
F_FULL, F_FREE, F_NONCE, F_LN, F_KD, F_KR, F_CA, F_CB, F_XR = 0, 16, 32, 48, 64, 72, 80, 96, 112
KT_O, U_OFF = 4160, 8320
WBYTES = 512 * 1376 * 2
LOG2E = 0x3FB8AA3B

class G:
    def __init__(self, o):
        self.o = o; self.L = []; self.n = 0
    def __call__(self, s):
        for l in s.strip("\n").split("\n"):
            l = l.strip()
            if not l: continue
            self.L.append(l if l.endswith(":") or l.startswith(".") else "    " + l)
    def lab(self, p="L"):
        self.n += 1; return f"{p}{self.n}"
    def srd(self, d, b, nbytes):
        self(f"s_mov_b32 s{d}, s{b}\ns_and_b32 s{d+1}, s{b+1}, 0xffff\ns_mov_b32 s{d+2}, {nbytes}\ns_mov_b32 s{d+3}, 0x00020000")
    def stamp(self, i):
        if self.o.stamps: self(f"{'s_memtime' if self.o.cyc else 's_memrealtime'} s[{68+2*i}:{69+2*i}]")
    def put_stamps(self):
        if not self.o.stamps: return
        self(f"""s_waitcnt vmcnt(0) lgkmcnt(0)
s_lshl_b32 s64, s2, 3
s_add_u32 s64, s64, s3
s_lshl_b32 s64, s64, 7
s_add_u32 s64, s64, {WS_STAMP}
s_mov_b64 exec, 1
v_mov_b32 v2, 0""")
        for i in range(16):
            self(f"v_mov_b32 v4, s{68+2*i}\nv_mov_b32 v5, s{69+2*i}\nbuffer_store_dwordx2 v[4:5], v2, s[40:43], s64 offen offset:{8*i}\ns_nop 1")
        self("s_waitcnt vmcnt(0)")
    def tmo(self, back):
        self(f"s_sub_u32 s55, s55, 1\ns_max_i32 s55, s55, 0\ns_cmp_lg_u32 s55, 0\ns_cbranch_scc1 {back}")
    def lds_wait(self, addr, off, n, cmp, val, sleep=0, t=16):
        l = self.lab("Lw")
        rd = {1: f"ds_read_b32 v{t}", 2: f"ds_read_b64 v[{t}:{t+1}]", 4: f"ds_read_b128 v[{t}:{t+3}]"}[n]
        self(f"{l}:\n{rd}, {addr} offset:{off}\ns_waitcnt lgkmcnt(0)")
        if n >= 2: self(f"v_min_u32 v{t}, v{t}, v{t+1}")
        if n == 4: self(f"v_min3_u32 v{t}, v{t}, v{t+2}, v{t+3}")
        self(f"v_readfirstlane_b32 s67, v{t}\ns_cmp_{cmp}_u32 s67, {val}\ns_cbranch_scc1 {l}d")
        if sleep: self(f"s_sleep {sleep}")
        self.tmo(l)
        self(f"{l}d:")
    def flag_wait(self, vloc, vglob, soff, tries, sleep=0, t=20):
        l = self.lab("Lf")
        self(f"""s_mov_b32 s66, 0
{l}:
buffer_load_dword v{t}, {vloc}, s[40:43], {soff} offen sc1
s_add_u32 s66, s66, 1
s_cmp_le_u32 s66, {tries}
s_cbranch_scc1 {l}a
buffer_load_dword v{t+1}, {vglob}, s[40:43], {soff} offen sc1
s_waitcnt vmcnt(0)
v_cmp_eq_u32 vcc, s52, v{t+1}
v_cndmask_b32 v{t}, v{t}, v{t+1}, vcc
{l}a:
s_waitcnt vmcnt(0)
v_cmp_ne_u32 vcc, s52, v{t}
s_cbranch_vccz {l}d""")
        if sleep: self(f"s_sleep {sleep}")
        self.tmo(l)
        self(f"{l}d:")

def prologue(A):
    o = A.o
    A(f"""s_cmp_ge_u32 s2, 256
s_cbranch_scc1 L_exit
s_load_dwordx16 s[8:23], s[0:1], 0
s_load_dwordx8 s[24:31], s[0:1], 64
s_load_dwordx4 s[32:35], s[0:1], 96""")
    A.stamp(0)
    if o.padto: A("s_memrealtime s[100:101]")
    A(f"""v_lshrrev_b32 v1, 6, v0
v_and_b32 v0, 63, v0
s_and_b32 s4, s2, 7
v_readfirstlane_b32 s3, v1
s_lshr_b32 s5, s2, 3
s_and_b32 s6, s5, 1
s_lshl_b32 s7, s4, 1
s_add_u32 s6, s6, s7
s_lshr_b32 s7, s5, 1
s_lshl_b32 s53, s4, 5
s_add_u32 s53, s53, s5
s_mov_b32 s55, {o.tmo}
v_mov_b32 v15, {L_FLAGS}
s_cmp_lg_u32 s3, 7
s_cbranch_scc1 L_noinit
v_mov_b32 v2, 0
v_lshl_add_u32 v3, v0, 2, v15
s_mov_b32 exec_hi, 0
ds_write_b32 v3, v2""")
    if o.codepf:
        A(f"""s_getpc_b64 s[56:57]
L_pc:
s_lshl_b32 s58, s5, 10
v_lshl_add_u32 v3, v0, 7, s58
v_min_u32 v3, L_codeend-L_pc-4, v3
s_mov_b64 exec, 0xff
global_load_dword v255, v3, s[56:57]""")
    A(f"""s_mov_b64 exec, -1
s_waitcnt lgkmcnt(0)
L_noinit:
s_barrier
s_waitcnt lgkmcnt(0)""")
    A.srd(40, 34, WS_BYTES)
    A.stamp(1)
    A(f"""s_cmp_ge_u32 s3, 6
s_cbranch_scc1 L_loader
s_cmp_ge_u32 s3, 4
s_cbranch_scc1 L_kgen""")

def get_nonce(A):
    A.lds_wait("v15", F_NONCE, 1, "lg", 0)
    A("s_mov_b32 s52, s67")

def rot2(A, d, t):
    if A.o.rot2 == 0:
        A(f"s_mov_b32 s{d}, 0"); return
    A(f"""s_and_b32 s{d}, s5, 3
s_mul_i32 s{d}, s{d}, 11
s_lshr_b32 s{t}, s5, 2
s_add_u32 s{t}, s{t}, s4
s_and_b32 s{t}, s{t}, 7
s_mul_i32 s{t}, s{t}, 5
s_add_u32 s{d}, s{d}, s{t}
s_cmp_ge_u32 s{d}, 43
s_cselect_b32 s{t}, 43, 0
s_sub_u32 s{d}, s{d}, s{t}""")

def loader(A):
    o = A.o
    A(f"""L_loader:
s_sub_u32 s54, s3, 6
s_cmp_eq_u32 s54, 1
s_cselect_b32 s24, s26, s24
s_cselect_b32 s25, s27, s25""")
    A.srd(44, 24, WBYTES)
    A(f"""v_lshrrev_b32 v3, 2, v0
v_mul_u32_u24 v3, 2752, v3
v_and_b32 v7, 3, v0
s_lshl_b32 s56, s54, 1
v_xor_b32 v7, s56, v7
v_lshl_add_u32 v7, v7, 4, v3
s_mul_i32 s58, s7, 192
s_mul_i32 s60, s54, 12288
s_add_u32 s60, s60, 16384""")
    if o.rot == 0: A("s_mov_b32 s63, 0")
    else:
        A("s_and_b32 s63, s5, 1\ns_lshl_b32 s63, s63, 2\ns_add_u32 s63, s63, s4\ns_add_u32 s63, s63, s7\ns_and_b32 s63, s63, 7")
    def setup2():
        A(f"""v_lshrrev_b32 v1, 3, v0
v_lshlrev_b32 v2, 10, v1
v_and_b32 v5, 7, v0
v_lshrrev_b32 v6, 4, v0
s_lshl_b32 s56, s54, 2
v_add_u32 v6, s56, v6
v_and_b32 v6, 7, v6
v_xor_b32 v6, v5, v6
v_lshl_add_u32 v6, v6, 4, v2
v_and_b32 v8, 2, v1
v_lshlrev_b32 v8, 1, v8
v_xor_b32 v8, v5, v8
v_lshl_add_u32 v8, v8, 4, v2
v_add_u32 v9, s56, v15
s_lshl_b32 s57, s6, 17
s_lshl_b32 s56, s54, 13
s_add_u32 s57, s57, s56
s_add_u32 s57, s57, {WS_XN}
s_lshl_b32 s59, s54, 10""")
        A.srd(48, 28, WBYTES)
    A(f"""s_cmp_lt_u32 s7, 15
s_cbranch_scc1 L_ld_go""")
    setup2()
    A(f"""s_mov_b32 s61, 8
s_mov_b32 s62, {2*SLOT}
s_branch L_ld_wd
L_ld_go:""")
    if o.lddelay: A(f"s_sleep {o.lddelay}")
    cnt = [0]
    def w_ins(kg, jj): A(f"s_add_u32 m0, s65, {jj*4096+kg*1024}\ns_add_u32 s56, s64, {kg*16*2752+jj*64}\nbuffer_load_dwordx4 v7, s[44:47], s56 offen lds")
    def x_ins(t): A(f"s_add_u32 m0, s65, {t*2048}\ns_add_u32 s56, s64, {t*16384}\nbuffer_load_dwordx4 v6, s[40:43], s56 offen{o.xld} lds")
    def w_pre(st):
        A(f"s_add_u32 s64, s63, {st}\ns_and_b32 s64, s64, 7\ns_mul_i32 s64, s64, {64*2752}\ns_add_u32 s64, s64, s58\ns_add_u32 s65, s60, {st*SLOT}")
    def x_pre(st):
        A(f"s_add_u32 s64, s63, {st}\ns_and_b32 s64, s64, 7\ns_lshl_b32 s64, s64, 7\ns_add_u32 s64, s64, s57\ns_add_u32 s65, s59, {st*SLOT}")
    def sig(n, val): A(f"s_waitcnt vmcnt({n})\nv_mov_b32 v10, {val}\nds_write_b32 v9, v10")
    for st in range(o.wpre):
        w_pre(st)
        for kg in range(4):
            for jj in range(3): w_ins(kg, jj)
        if st == 0: setup2()
    get_nonce(A)
    A(f"""v_lshlrev_b32 v11, 2, v0
s_lshl_b32 s56, s6, 8
v_add_u32 v11, s56, v11
v_and_b32 v12, 3, v0
v_lshlrev_b32 v12, 10, v12
v_and_b32 v13, 60, v0
v_add_u32 v12, v12, v13
s_lshl_b32 s56, s6, 6
s_add_u32 s56, s56, {WS_FLG-WS_FLL}
v_add_u32 v12, s56, v12
s_mov_b32 s64, {WS_FLL}""")
    A.stamp(2)
    A.flag_wait("v11", "v12", "s64", 64, sleep=o.lnsleep)
    A.stamp(3)
    seq = []
    for st in range(3):
        if st >= o.wpre: seq.append(("w", st))
        seq.append(("x", st))
    done_at = {}
    flat = []
    for kind, st in seq:
        n = 12 if kind == "w" else 8
        for i in range(n): flat.append((kind, st, i))
        if kind == "x": done_at[st] = len(flat)
    nxt = 0
    for idx, (kind, st, i) in enumerate(flat):
        if nxt < 2 and idx == done_at[nxt] + min(o.sigat, 8):
            sig(idx - done_at[nxt], nxt + 1); nxt += 1
        if i == 0 and kind == "x" and st == 2: A.lds_wait("v15", F_LN, 4, "ge", 2)
        if i == 0: (w_pre if kind == "w" else x_pre)(st)
        if kind == "w": w_ins(i // 3, i % 3)
        else: x_ins(i)
    while nxt < 2:
        sig(len(flat) - done_at[nxt], nxt + 1); nxt += 1
    A(f"s_add_u32 s63, s63, 3\ns_and_b32 s63, s63, 7\ns_mov_b32 s61, 3\ns_mov_b32 s62, 0")
    def wait_free():
        A("s_sub_u32 s66, s61, 2")
        A.lds_wait("v15", F_FREE, 4, "ge", "s66", sleep=1)
    def advance():
        A(f"""s_add_u32 s61, s61, 1
s_add_u32 s62, s62, {SLOT}
s_cmp_eq_u32 s62, {3*SLOT}
s_cselect_b32 s62, 0, s62""")
    A("L_ld_st:")
    wait_free()
    n = 0
    A(f"s_lshl_b32 s64, s63, 7\ns_add_u32 s64, s64, s57\ns_add_u32 s65, s62, s59")
    for t in range(8):
        if n == o.sigat: sig(n, "s61")
        x_ins(t); n += 1
    A(f"s_mul_i32 s64, s63, {64*2752}\ns_add_u32 s64, s64, s58\ns_add_u32 s65, s62, s60")
    for kg in range(4):
        for jj in range(3):
            if n == o.sigat: sig(n, "s61")
            w_ins(kg, jj); n += 1
    A("s_add_u32 s63, s63, 1\ns_and_b32 s63, s63, 7")
    advance()
    A("s_cmp_lt_u32 s61, 8\ns_cbranch_scc1 L_ld_st")
    A.stamp(4)
    if o.sig7: sig(0, 8)
    A(f"""L_ld_wd:
s_lshr_b32 s57, s5, 2
s_lshl_b32 s57, s57, 7
s_mul_i32 s58, s54, {43*16*1024}
s_add_u32 s57, s57, s58
s_mul_i32 s59, s54, 20480""")
    rot2(A, 63, 64)
    def kblock(i):
        A(f"""s_lshl_b32 s56, s63, 14
s_add_u32 s56, s56, s57
s_add_u32 m0, s65, {i*2048}
s_add_u32 s63, s63, 1
buffer_load_dwordx4 v8, s[48:51], s56 offen lds
s_add_u32 m0, s65, {i*2048+1024}
s_add_u32 s56, s56, 8192
buffer_load_dwordx4 v8, s[48:51], s56 offen lds
s_cmp_eq_u32 s63, 43
s_cselect_b32 s63, 0, s63""")
    A("L_ld_wc:")
    A("s_cmp_lg_u32 s61, 11\ns_cbranch_scc1 L_ld_w2")
    sig(0, 11)
    A.stamp(5)
    A("L_ld_w2:")
    wait_free()
    A("s_add_u32 s65, s62, s59")
    for i in range(3): kblock(i)
    A("s_cmp_eq_u32 s61, 12\ns_cbranch_scc1 L_ld_last")
    for i in range(3, 10):
        if i == max(3, o.sigat // 2): sig(2*i, "s61")
        kblock(i)
    advance()
    A("s_branch L_ld_wc\nL_ld_last:")
    sig(6, 12)
    sig(0, 13)
    A("s_waitcnt lgkmcnt(0)")
    A.stamp(6)
    A.put_stamps()
    A("s_endpgm")

BOUNCE = 2 * SLOT
def ln(A):
    o = A.o
    A.srd(36, 8, 2097152)
    A(f"""s_lshl_b32 s57, s53, 13
s_lshl_b32 s58, s3, 11
s_add_u32 s57, s57, s58
v_lshlrev_b32 v2, 4, v0
buffer_load_dwordx4 v[128:131], v2, s[36:39], s57 offen
buffer_load_dwordx4 v[132:135], v2, s[36:39], s57 offen offset:1024
s_cmp_lg_u32 s3, 0
s_cbranch_scc1 L_ln_nn
v_mov_b32 v3, 0
buffer_load_dword v4, v3, s[40:43], 0 offen sc1
s_waitcnt vmcnt(0)
v_readfirstlane_b32 s52, v4
s_mul_i32 s52, s52, 0x9E3779B1
s_add_u32 s52, s52, 0x7F4A7C15
v_mov_b32 v5, s52
s_or_b32 s52, s52, 0x10000
v_mov_b32 v4, s52
ds_write_b64 v15, v[4:5] offset:{F_NONCE}
L_ln_nn:
v_mov_b32 v14, 0x3f803f80
v_mov_b32 v12, 0x00003f80
v_mov_b32 v13, 0x3f800000
s_mov_b32 s58, 0x3b000000
s_mov_b32 s59, 0x3727c5ac
v_mul_u32_u24 v3, 144, v0
s_lshl_b32 s56, s3, 2
s_add_u32 s56, s56, {BOUNCE}
v_add_u32 v3, s56, v3""")
    for r in range(2):
        A(f"s_waitcnt vmcnt({1-r})")
        if r == 0: A.stamp(2)
        for i in range(4):
            c1 = "0" if i == 0 else f"v{160+r}"; c2 = "0" if i == 0 else f"v{162+r}"
            A(f"v_dot2_f32_bf16 v{160+r}, v{128+4*r+i}, v14, {c1}\nv_dot2_f32_bf16 v{162+r}, v{128+4*r+i}, v{128+4*r+i}, {c2}")
    A("""v_permlane32_swap_b32 v160, v161
v_permlane32_swap_b32 v162, v163
v_add_f32 v160, v160, v161
v_add_f32 v162, v162, v163
v_mov_b32 v161, v160
v_mov_b32 v163, v162
v_permlane16_swap_b32 v160, v161
v_permlane16_swap_b32 v162, v163
v_add_f32 v160, v160, v161
v_add_f32 v162, v162, v163""")
    for sh in (8, 4, 2, 1):
        for reg in (160, 162):
            A(f"v_add_f32_dpp v{reg}, v{reg}, v{reg} row_ror:{sh} row_mask:0xf bank_mask:0xf")
    A("""v_mul_f32 v160, s58, v160
v_mul_f32 v162, s58, v162
v_fma_f32 v162, -v160, v160, v162
v_max_f32 v162, 0, v162
v_cvt_pk_bf16_f32 v161, v162, -v160
v_and_b32 v160, 0xffff0000, v161
v_lshlrev_b32 v162, 16, v161
v_add_f32 v162, s59, v162
v_cvt_pk_bf16_f32 v162, v162, v162
v_and_b32 v162, 0xffff0000, v162
v_readlane_b32 s8, v160, 0
v_sqrt_f32 v162, v162
v_readlane_b32 s9, v160, 32
v_cvt_pk_bf16_f32 v162, v162, v162
v_and_b32 v162, 0xffff0000, v162
v_rcp_f32 v162, v162""")
    for c in range(8):
        for r in range(2):
            A(f"v_dot2_f32_bf16 v{164+2*c+r}, v{128+4*r+c//2}, {'v12' if c % 2 == 0 else 'v13'}, s{8+r}")
        if c == 0: A("v_readlane_b32 s10, v162, 0\nv_readlane_b32 s11, v162, 32")
    for c in range(8): A(f"v_pk_mul_f32 v[{164+2*c}:{165+2*c}], v[{164+2*c}:{165+2*c}], s[10:11]")
    A(f"s_add_u32 s57, s57, {WS_XN}")
    for r in range(2):
        for p in range(4): A(f"v_cvt_pk_bf16_f32 v{136+4*r+p}, v{164+4*p+r}, v{166+4*p+r}")
        A(f"buffer_store_dwordx4 v[{136+4*r}:{139+4*r}], v2, s[40:43], s57 offen offset:{1024*r} sc1")
    for c in range(8):
        A(f"v_cvt_pk_bf16_f32 v{144+c}, v{164+2*c}, v{165+2*c}\nds_write_b32 v3, v{144+c} offset:{16*c}")
    A(f"""s_lshl_b32 s56, s3, 2
v_add_u32 v13, s56, v15
v_mov_b32 v12, 1
s_waitcnt lgkmcnt(0)
ds_write_b32 v13, v12 offset:{F_LN}
v_lshrrev_b32 v3, 3, v0
v_mul_u32_u24 v3, 144, v3
v_and_b32 v4, 7, v0
v_lshl_add_u32 v3, v4, 4, v3
s_mul_i32 s56, s3, {16*144}
s_add_u32 s56, s56, {BOUNCE}
v_add_u32 v3, s56, v3""")
    get_nonce(A)
    A.lds_wait("v15", F_LN, 4, "lg", 0)
    A(f"""ds_read_b128 v[144:147], v3
ds_read_b128 v[148:151], v3 offset:{8*144}
s_add_u32 s57, s57, {WS_XNT-WS_XN}
s_lshl_b32 s58, s53, 4
s_lshl_b32 s59, s3, 2
s_add_u32 s58, s58, s59
s_add_u32 s58, s58, {WS_FLL}
s_lshl_b32 s59, s3, 8
s_add_u32 s59, s59, s53
s_lshl_b32 s59, s59, 2
s_add_u32 s59, s59, {WS_FLG}
v_mov_b32 v16, s52
v_mov_b32 v17, 0
v_mov_b32 v12, 2
s_waitcnt lgkmcnt(0)
ds_write_b32 v13, v12 offset:{F_LN}
buffer_store_dwordx4 v[144:147], v2, s[40:43], s57 offen sc1
buffer_store_dwordx4 v[148:151], v2, s[40:43], s57 offen offset:1024 sc1""")
    A.stamp(3)

def ln_flags(A):
    A(f"""s_waitcnt vmcnt(2)
s_mov_b64 exec, 1
buffer_store_dword v16, v17, s[40:43], s58 offen
s_waitcnt vmcnt(1)
buffer_store_dword v16, v17, s[40:43], s59 offen sc1
s_mov_b64 exec, -1""")
    A.stamp(4)

ACC = 32
def acc(i, j): return ACC + 16 * (3 * i + j)
BUF = (128, 148)
def rd_frags(A, buf, ks):
    b = BUF[buf]
    for i in range(2):
        A(f"ds_read_b128 v[{b+4*i}:{b+4*i+3}], v{2+ks} offset:{i*4096}")
    for j in range(3):
        for t in range(2):
            A(f"ds_read_b64_tr_b16 v[{b+8+4*j+2*t}:{b+8+4*j+2*t+1}], v{6+j} offset:{ks*1024+t*256}")
def mfmas(A, buf):
    b = BUF[buf]
    for j in range(3):
        for i in range(2):
            a = acc(i, j)
            A(f"v_mfma_f32_32x32x16_bf16 v[{a}:{a+15}], v[{b+8+4*j}:{b+8+4*j+3}], v[{b+4*i}:{b+4*i+3}], v[{a}:{a+15}]")

def gemm(A):
    o = A.o
    ln(A)
    A("s_and_b32 s60, s3, 1\ns_lshr_b32 s61, s3, 1")
    A(f"""v_and_b32 v18, 31, v0
v_lshrrev_b32 v19, 5, v0
v_lshrrev_b32 v20, 1, v18
v_and_b32 v20, 7, v20
v_xor_b32 v20, v19, v20
s_lshl_b32 s56, s60, 6
v_add_u32 v18, s56, v18
v_lshlrev_b32 v18, 7, v18
v_lshl_add_u32 v2, v20, 4, v18
v_xor_b32 v3, 32, v2
v_xor_b32 v4, 64, v2
v_xor_b32 v5, 96, v2
v_bfe_u32 v18, v0, 4, 1
v_mul_u32_u24 v20, 12288, v18
v_lshlrev_b32 v18, 5, v18
v_add_u32 v20, v20, v18
v_lshl_add_u32 v20, v19, 9, v20
v_bfe_u32 v18, v0, 2, 2
v_lshl_add_u32 v20, v18, 6, v20
v_and_b32 v18, 3, v0
v_lshl_add_u32 v20, v18, 3, v20
v_add_u32 v20, 16384, v20""")
    for j in range(3):
        A(f"""s_mul_i32 s56, s61, 3
s_add_u32 s56, s56, {j}
s_and_b32 s57, s56, 1
s_lshl_b32 s57, s57, 5
s_lshr_b32 s56, s56, 1
s_lshl_b32 s56, s56, 12
v_xor_b32 v{6+j}, s57, v20
v_add_u32 v{6+j}, s56, v{6+j}""")
    ln_flags(A)
    for r in range(96): A(f"v_mov_b32 v{ACC+r}, 0")
    A(f"""s_mov_b32 s62, 0
s_mov_b32 s63, 0
s_mov_b32 s64, {SLOT}
s_mov_b32 s65, {-2*SLOT & 0xffffffff}
s_cmp_lt_u32 s7, 15
s_cbranch_scc1 L_g1_go
v_mov_b32 v12, 8
ds_write_b32 v13, v12 offset:{F_FREE}
s_branch L_conv
L_g1_go:""")
    A.lds_wait("v15", F_FULL, 2, "gt", "s62")
    A.stamp(5)
    rd_frags(A, 0, 0)
    A(".p2align 3\nL_g1_loop:")
    rd_frags(A, 1, 1); A("s_waitcnt lgkmcnt(8)"); mfmas(A, 0)
    rd_frags(A, 0, 2); A("s_waitcnt lgkmcnt(8)"); mfmas(A, 1)
    rd_frags(A, 1, 3); A(f"ds_read_b64 v[16:17], v15 offset:{F_FULL}\ns_waitcnt lgkmcnt(9)"); mfmas(A, 0)
    A(f"""s_add_u32 s62, s62, 1
v_mov_b32 v12, s62
s_add_u32 s63, s63, {SLOT}
s_cmp_eq_u32 s63, {3*SLOT}
s_cselect_b32 s57, s65, s64
s_cselect_b32 s63, 0, s63
s_waitcnt lgkmcnt(0)
ds_write_b32 v13, v12 offset:{F_FREE}
v_min_u32 v16, v16, v17""")
    for r in range(2, 9): A(f"v_add_u32 v{r}, s57, v{r}")
    A(f"""v_readfirstlane_b32 s56, v16
s_cmp_eq_u32 s62, 8
s_cbranch_scc1 L_g1_end
s_cmp_gt_u32 s56, s62
s_cbranch_scc0 L_g1_slow""")
    rd_frags(A, 0, 0); mfmas(A, 1)
    A("s_branch L_g1_loop\nL_g1_slow:")
    mfmas(A, 1)
    A.lds_wait("v15", F_FULL, 2, "gt", "s62")
    rd_frags(A, 0, 0)
    A("s_branch L_g1_loop\nL_g1_end:")
    mfmas(A, 1)
    A.stamp(6)
    A(f"""s_lshl_b32 s56, s6, 1
s_add_u32 s56, s56, s60
s_mul_i32 s57, s56, {2*86*1024}
s_mul_i32 s58, s7, 6
s_mul_i32 s59, s61, 3
s_add_u32 s58, s58, s59
s_lshl_b32 s59, s58, 10
s_add_u32 s57, s57, s59
s_add_u32 s57, s57, {WS_H}
s_mov_b32 s62, {LOG2E ^ 0x80000000}
s_mov_b32 s63, s62
v_lshlrev_b32 v2, 4, v0""")
    T = 128
    for j in range(3):
        for i in range(2):
            a = acc(i, j)
            d = 168 + 4 * ((2*j+i) % 3)
            for p in range(4): A(f"v_pk_mul_f32 v[{T+2*p}:{T+2*p+1}], v[{a+2*p}:{a+2*p+1}], s[62:63]")
            for e in range(8): A(f"v_exp_f32 v{T+e}, v{T+e}")
            for p in range(4): A(f"v_pk_mul_f32 v[{T+8+2*p}:{T+9+2*p}], v[{a+2*p}:{a+2*p+1}], v[{a+8+2*p}:{a+9+2*p}]")
            for p in range(4): A(f"v_pk_add_f32 v[{T+2*p}:{T+2*p+1}], v[{T+2*p}:{T+2*p+1}], 1.0 op_sel_hi:[1,0]")
            for e in range(8): A(f"v_rcp_f32 v{T+e}, v{T+e}")
            for p in range(4): A(f"v_pk_mul_f32 v[{T+8+2*p}:{T+9+2*p}], v[{T+8+2*p}:{T+9+2*p}], v[{T+2*p}:{T+2*p+1}]")
            for p in range(4): A(f"v_cvt_pk_bf16_f32 v{d+p}, v{T+8+2*p}, v{T+9+2*p}")
            l = A.lab("Lhs")
            A(f"""s_add_u32 s59, s58, {j}
s_cmp_ge_u32 s59, 86
s_cbranch_scc1 {l}
s_add_u32 s59, s57, {i*86*1024+j*1024}
buffer_store_dwordx4 v[{d}:{d+3}], v2, s[40:43], s59 offen sc1
{l}:""")
    A(f"""s_lshl_b32 s54, s56, 5
s_lshl_b32 s58, s7, 1
s_add_u32 s54, s54, s58
s_add_u32 s54, s54, s61
s_lshl_b32 s54, s54, 2
s_add_u32 s54, s54, {WS_FHL}""")
    A.stamp(7)
    conv(A)
    gemm2(A)

def h_flags(A):
    l = A.lab("Lhf")
    A(f"""s_cmp_ge_u32 s7, 15
s_cbranch_scc1 {l}
v_mov_b32 v18, s52
v_mov_b32 v19, 0
s_waitcnt vmcnt(0)
s_mov_b64 exec, 1
buffer_store_dword v18, v19, s[40:43], s54 offen
s_add_u32 s54, s54, {WS_FHG-WS_FHL}
buffer_store_dword v18, v19, s[40:43], s54 offen sc1
s_mov_b64 exec, -1
{l}:""")

def conv(A):
    o = A.o
    D = 32
    A(f"""L_conv:
s_mul_i32 s58, s61, {CONV_SZ}
s_add_u32 s58, s58, {L_CONV}
s_lshl_b32 s59, s60, 8
s_sub_u32 s59, s58, s59
v_and_b32 v10, 15, v0
v_lshrrev_b32 v11, 4, v0
v_and_b32 v18, 1, v0
v_cmp_eq_u32 vcc, 1, v18
v_sub_u32 v18, 2032, v10
v_lshrrev_b32 v18, 1, v18
v_lshl_add_u32 v18, v11, 2, v18
v_lshlrev_b32 v18, 2, v18
v_mov_b32 v19, {KT_O}
v_cndmask_b32 v19, v19, 0, vcc
v_add3_u32 v18, v18, v19, s59""")
    for p in range(4): A(f"v_subrev_u32 v{4+p}, {4*(128*(2*p+1)+48)}, v18")
    A(f"""v_lshlrev_b32 v8, 5, v10
v_lshl_add_u32 v8, v11, 4, v8
v_add_u32 v8, s59, v8
v_add_u32 v8, {U_OFF+512-32-192}, v8""")
    A.lds_wait("v15", F_KR, 2, "lg", 0)
    A.stamp(8)
    KB = (64, 128); UB = (96, 160)
    def reads(buf, cc):
        L = []
        for a in range(8):
            off = 128 * (1 - (a & 1)) + 16 * (3 - cc)
            for h in range(2):
                L.append(f"ds_read2_b32 v[{KB[buf]+4*a+2*h}:{KB[buf]+4*a+2*h+1}], v{4+a//2} offset0:{off+2*h} offset1:{off+2*h+1}")
            L.append(f"ds_read_b128 v[{UB[buf]+4*a}:{UB[buf]+4*a+3}], v8 offset:{512*a+64*(3-cc)}")
        return L
    def mm(buf, fill, first):
        fill = list(fill)
        for a in range(8):
            for p in range(8 - a):
                q = D + 4 * (a + p)
                c = "0" if (first and a == 0) else f"v[{q}:{q+3}]"
                A(f"v_mfma_f32_16x16x32_bf16 v[{q}:{q+3}], v[{KB[buf]+4*a}:{KB[buf]+4*a+3}], v[{UB[buf]+4*p}:{UB[buf]+4*p+3}], {c}")
                if fill: A(fill.pop(0))
        assert not fill
    for x in reads(0, 0): A(x)
    for cc in range(4):
        A("s_waitcnt lgkmcnt(0)")
        if cc == 3:
            A(f"v_mov_b32 v12, 1\nds_write_b32 v13, v12 offset:{F_CA}")
        mm(cc % 2, reads((cc + 1) % 2, cc + 1) if cc < 3 else [], cc == 0)
        if cc == o.hflag_at: h_flags(A)
    A.stamp(9)
    A(f"""s_xor_b32 s59, s3, 1
s_lshl_b32 s59, s59, 2
v_add_u32 v9, s59, v15
v_lshlrev_b32 v5, 4, v0
s_lshl_b32 s59, s60, 12
s_add_u32 s59, s59, s58
v_add_u32 v6, s59, v5
v_xor_b32 v7, 4096, v5
s_lshl_b32 s59, s60, 12
v_xor_b32 v7, s59, v7
v_add_u32 v7, s58, v7""")
    A.lds_wait("v9", F_CA, 1, "lg", 0)
    A("s_cmp_eq_u32 s60, 0\ns_cbranch_scc1 L_cx0")
    for q in range(4): A(f"ds_write_b128 v6, v[{32+4*q}:{35+4*q}] offset:{q*1024}")
    for r in range(16): A(f"v_mov_b32 v{32+r}, v{48+r}")
    A("s_branch L_cx1\nL_cx0:")
    for q in range(4): A(f"ds_write_b128 v6, v[{48+4*q}:{51+4*q}] offset:{q*1024}")
    A(f"""L_cx1:
s_waitcnt lgkmcnt(0)
ds_write_b32 v13, v12 offset:{F_CB}
s_lshl_b32 s56, s53, 1
s_add_u32 s56, s56, s61
s_lshl_b32 s57, s56, 12
s_lshl_b32 s59, s60, 11
s_add_u32 s57, s57, s59
s_add_u32 s57, s57, {WS_ST}
v_lshlrev_b32 v2, 5, v10
v_lshl_add_u32 v2, v11, 3, v2""")
    A.lds_wait("v9", F_CB, 1, "lg", 0)
    for q in range(4): A(f"ds_read_b128 v[{48+4*q}:{51+4*q}], v7 offset:{q*1024}")
    for q in range(4):
        A(f"s_waitcnt lgkmcnt({3-q})")
        for p in range(2):
            a = 32 + 4*q + 2*p
            A(f"v_pk_add_f32 v[{a}:{a+1}], v[{a}:{a+1}], v[{a+16}:{a+17}]")
        A(f"v_cvt_pk_bf16_f32 v{24+2*q}, v{32+4*q}, v{33+4*q}\nv_cvt_pk_bf16_f32 v{25+2*q}, v{34+4*q}, v{35+4*q}")
        A(f"buffer_store_dwordx2 v[{24+2*q}:{25+2*q}], v2, s[40:43], s57 offen offset:{512*q} sc1")
    A(f"""s_lshl_b32 s54, s56, 1
s_add_u32 s54, s54, s60
s_lshl_b32 s54, s54, 2
s_add_u32 s54, s54, {WS_FS}""")
    A.stamp(10)

NPRE = 13
WR = 64
HR = 168; NH = 18
WF = 240
def gemm2(A):
    o = A.o
    A.srd(44, 30, 2097152)
    A(f"""s_and_b32 s56, s5, 3
s_lshl_b32 s57, s4, 2
s_add_u32 s56, s56, s57
s_lshr_b32 s57, s5, 2
v_and_b32 v10, 31, v0
v_lshrrev_b32 v11, 5, v0
v_bfe_u32 v18, v0, 2, 2
v_lshl_add_u32 v18, v11, 2, v18
v_lshlrev_b32 v2, 7, v18
v_bfe_u32 v18, v0, 3, 1
v_lshl_add_u32 v2, v18, 6, v2
v_bfe_u32 v18, v0, 4, 1
v_lshl_add_u32 v2, v18, 5, v2
v_and_b32 v18, 3, v0
v_lshl_add_u32 v2, v18, 3, v2
s_mul_i32 s59, s61, 20480
v_add_u32 v2, s59, v2
v_xor_b32 v3, 64, v2
v_add_u32 v6, {2*SLOT}, v2
v_add_u32 v7, {2*SLOT}, v3
s_lshl_b32 s59, s61, 2
v_add_u32 v4, s59, v15""")
    def wrd(i, b):
        c, ii = i // 10, i % 10
        sl = (8 + c) % 3
        L = []
        for nt in range(2):
            for t in range(2):
                ad = (6 + nt) if sl == 2 else (2 + nt)
                off = ii * 2048 + t * 1024 + (SLOT if sl == 1 else 0)
                L.append(f"ds_read_b64_tr_b16 v[{b+4*nt+2*t}:{b+4*nt+2*t+1}], v{ad} offset:{off}")
        return L
    A.lds_wait("v4", F_FULL, 1, "gt", 9)
    for i in range(NPRE):
        for x in wrd(i, WR + 8 * i): A(x)
    A(f"""v_lshlrev_b32 v12, 10, v10
v_lshl_add_u32 v12, v11, 3, v12
s_lshl_b32 s58, s56, 1
s_add_u32 s58, s58, s60
s_lshl_b32 s62, s58, 15
s_lshl_b32 s59, s57, 7
s_add_u32 s62, s62, s59
s_lshl_b32 s59, s61, 6
s_add_u32 s62, s62, s59
v_min_u32 v18, 28, v10
v_lshlrev_b32 v18, 2, v18
v_add_u32 v19, {WS_FHG-WS_FHL}, v18
s_lshl_b32 s59, s56, 7
s_add_u32 s59, s59, {WS_FHL}
s_mul_i32 s63, s58, {86*1024}
s_mul_i32 s64, s61, {43*1024}
s_add_u32 s63, s63, s64
s_add_u32 s63, s63, {WS_H}
v_mov_b32 v16, 10
s_waitcnt lgkmcnt(0)
ds_write_b32 v13, v16 offset:{F_FREE}
v_mov_b32 v16, s52
v_mov_b32 v17, 0
s_waitcnt vmcnt(0)
s_mov_b64 exec, 1
buffer_store_dword v16, v17, s[40:43], s54 offen sc1
s_mov_b64 exec, -1""")
    for q in range(4):
        A(f"buffer_load_dwordx2 v[{24+2*q}:{25+2*q}], v12, s[36:39], s62 offen offset:{16*q}")
    rot2(A, 64, 65)
    A.stamp(11)
    A.flag_wait("v18", "v19", "s59", 64, sleep=o.hsleep)
    A.stamp(12)
    def hld(i):
        r = HR + 4 * (i % NH)
        A(f"""s_lshl_b32 s65, s64, 10
s_add_u32 s65, s65, s63
s_add_u32 s64, s64, 1
buffer_load_dwordx4 v[{r}:{r+3}], v5, s[40:43], s65 offen{o.hld}
s_cmp_eq_u32 s64, 43
s_cselect_b32 s64, 0, s64""")
    AHEAD = o.ahead
    assert AHEAD < NH
    for i in range(AHEAD): hld(i)
    for i in range(43):
        nxt = i + 1
        lg = ""
        if NPRE <= nxt < 43:
            if nxt % 10 == 0:
                if i >= NPRE: pass
                A.lds_wait("v4", F_FULL, 1, "gt", 8 + nxt // 10)
            for x in wrd(nxt, WF + 8 * (nxt % 2)): A(x)
            lg = " lgkmcnt(4)"
        elif nxt == 43: lg = " lgkmcnt(0)"
        if i + AHEAD < 43: hld(i + AHEAD)
        out = min(43, i + AHEAD + 1) - (i + 1)
        A(f"s_waitcnt vmcnt({out}){lg}")
        b = WR + 8 * i if i < NPRE else WF + 8 * (i % 2)
        r = HR + 4 * (i % NH)
        for nt in range(2):
            c = "0" if i == 0 else f"v[{32+16*nt}:{47+16*nt}]"
            A(f"v_mfma_f32_32x32x16_bf16 v[{32+16*nt}:{47+16*nt}], v[{b+4*nt}:{b+4*nt+3}], v[{r}:{r+3}], {c}")
    A.stamp(13)
    A(f"""v_lshlrev_b32 v18, 3, v10
s_lshl_b32 s58, s57, 1
s_add_u32 s58, s58, s61
s_lshl_b32 s59, s58, 8
s_lshr_b32 s63, s56, 4
s_lshl_b32 s63, s63, 2
s_add_u32 s59, s59, s63
s_add_u32 s59, s59, {WS_FS}
buffer_load_dword v20, v18, s[40:43], s59 offen sc1""")
    A(f"""s_mul_i32 s63, s61, {CONV_SZ}
s_lshl_b32 s64, s60, 12
s_add_u32 s64, s64, {L_CONV+8192}
s_add_u32 s63, s63, s64
v_add_u32 v6, s63, v5
s_xor_b32 s63, s61, 1
s_mul_i32 s63, s63, {CONV_SZ}
s_add_u32 s63, s63, s64
v_add_u32 v7, s63, v5
s_xor_b32 s63, s3, 2
s_lshl_b32 s63, s63, 2
v_add_u32 v8, s63, v15
v_mov_b32 v9, 1
s_cmp_eq_u32 s61, 0
s_cbranch_scc1 L_x0""")
    for q in range(4): A(f"ds_write_b128 v6, v[{32+4*q}:{35+4*q}] offset:{q*1024}")
    for r in range(16): A(f"v_mov_b32 v{32+r}, v{48+r}")
    A("s_branch L_x1\nL_x0:")
    for q in range(4): A(f"ds_write_b128 v6, v[{48+4*q}:{51+4*q}] offset:{q*1024}")
    A(f"""L_x1:
s_waitcnt lgkmcnt(0)
ds_write_b32 v13, v9 offset:{F_XR}
v_lshlrev_b32 v19, 14, v11
v_lshl_add_u32 v19, v10, 1, v19
s_lshl_b32 s63, s58, 17
s_lshl_b32 s64, s56, 1
s_add_u32 s64, s64, s60
s_lshl_b32 s64, s64, 6
s_add_u32 s63, s63, s64
s_add_u32 s63, s63, {WS_ST}""")
    for r in range(16): A(f"v_mov_b32 v{64+r}, 0")
    A(f"""L_s_fl:
s_waitcnt vmcnt(0)
v_cmp_ne_u32 vcc, s52, v20
s_cbranch_vccz L_s_fld
buffer_load_dword v20, v18, s[40:43], s59 offen sc1""")
    A.tmo("L_s_fl")
    A("L_s_fld:")
    A.stamp(14)
    for q in range(4):
        for r in range(4):
            A(f"s_add_u32 s64, s63, {(8*q+r)*4096}\nbuffer_load_short_d16_hi v{64+4*q+r}, v19, s[40:43], s64 offen sc1")
    A.lds_wait("v8", F_XR, 1, "lg", 0)
    for q in range(4): A(f"ds_read_b128 v[{48+4*q}:{51+4*q}], v7 offset:{q*1024}")
    A(f"s_mov_b32 s64, {LOG2E ^ 0x80000000}\ns_mov_b32 s65, s64")
    for q in range(4):
        A(f"s_waitcnt lgkmcnt({3-q})")
        for p in range(2):
            a = 32 + 4*q + 2*p
            A(f"v_pk_add_f32 v[{a}:{a+1}], v[{a}:{a+1}], v[{a+16}:{a+17}]")
    for p in range(8): A(f"v_pk_mul_f32 v[{48+2*p}:{49+2*p}], v[{32+2*p}:{33+2*p}], s[64:65]")
    for e in range(16): A(f"v_exp_f32 v{48+e}, v{48+e}")
    for p in range(8): A(f"v_pk_add_f32 v[{48+2*p}:{49+2*p}], v[{48+2*p}:{49+2*p}], 1.0 op_sel_hi:[1,0]")
    for e in range(16): A(f"v_rcp_f32 v{48+e}, v{48+e}")
    for p in range(8):
        A(f"v_lshlrev_b32 v{80+2*p}, 16, v{24+p}\nv_and_b32 v{81+2*p}, 0xffff0000, v{24+p}")
    for p in range(8): A(f"v_pk_mul_f32 v[{32+2*p}:{33+2*p}], v[{32+2*p}:{33+2*p}], v[{48+2*p}:{49+2*p}]")
    A("s_waitcnt vmcnt(0)")
    for p in range(8): A(f"v_pk_fma_f32 v[{32+2*p}:{33+2*p}], v[{32+2*p}:{33+2*p}], v[{64+2*p}:{65+2*p}], v[{80+2*p}:{81+2*p}]")
    for p in range(8): A(f"v_cvt_pk_bf16_f32 v{48+p}, v{32+2*p}, v{33+2*p}")
    for q in range(4):
        A(f"buffer_store_dwordx2 v[{48+2*q}:{49+2*q}], v12, s[44:47], s62 offen offset:{16*q}")
    A.stamp(15)
    if o.padto:
        A(f"""L_pad:
s_memrealtime s[98:99]
s_waitcnt lgkmcnt(0)
s_sub_u32 s98, s98, s100
s_cmp_lt_u32 s98, {o.padto}
s_cbranch_scc1 L_pad""")
    A.put_stamps()
    A("s_endpgm")

def kgen(A):
    o = A.o
    A(f"""L_kgen:
s_sub_u32 s54, s3, 4
s_lshl_b32 s56, s53, 1
s_add_u32 s56, s56, s54
s_lshl_b32 s57, s56, 8
v_lshl_add_u32 v2, v0, 2, s57
s_lshl_b32 s57, s56, 1
v_mov_b32 v3, s57
global_load_dword v4, v2, s[10:11]
global_load_ushort v8, v3, s[18:19]
global_load_dword v5, v2, s[12:13]
global_load_dword v6, v2, s[14:15]
global_load_dword v7, v2, s[16:17]
global_load_ushort v9, v3, s[20:21]
s_mul_i32 s58, s54, {CONV_SZ}
s_add_u32 s58, s58, {L_CONV}
v_lshl_add_u32 v10, v0, 3, s58
v_and_b32 v11, 31, v0
v_mul_u32_u24 v11, 528, v11
v_lshrrev_b32 v12, 5, v0
v_lshl_add_u32 v11, v12, 4, v11
v_add_u32 v11, s58, v11
s_mov_b32 s59, {LOG2E}
s_mov_b32 s60, 0x3e22f983
s_waitcnt vmcnt(4)""")
    A.stamp(2)
    A("""v_lshlrev_b32 v16, 16, v4
v_and_b32 v17, 0xffff0000, v4
v_lshlrev_b32 v8, 16, v8
v_mul_f32 v16, s59, v16
v_mul_f32 v17, s59, v17
v_mul_f32 v8, s59, v8
v_exp_f32 v16, v16
v_exp_f32 v17, v17
v_exp_f32 v8, v8
v_cvt_pk_bf16_f32 v16, v16, v17
v_cvt_pk_bf16_f32 v8, v8, v8
v_and_b32 v17, 0xffff0000, v16
v_lshlrev_b32 v16, 16, v16
v_and_b32 v8, 0xffff0000, v8
v_mul_f32 v16, v16, v8
v_mul_f32 v17, v17, v8
v_mul_f32 v16, s59, v16
v_mul_f32 v17, s59, v17
s_waitcnt vmcnt(3)
v_lshlrev_b32 v18, 16, v5
v_and_b32 v19, 0xffff0000, v5
v_mul_f32 v18, v18, v8
v_mul_f32 v19, v19, v8
v_mul_f32 v18, s60, v18
v_mul_f32 v19, s60, v19""")
    for (dst, p) in ((36, 8.0), (32, 1.0), (40, 256.0)):
        pf = struct.unpack("<I", struct.pack("<f", p))[0]
        npf = pf ^ 0x80000000
        for m in range(2): A(f"v_mul_f32 v{20+m}, {hex(npf)}, v{16+m}\nv_mul_f32 v{22+m}, {hex(pf)}, v{18+m}")
        for m in range(2): A(f"v_exp_f32 v{20+m}, v{20+m}\nv_fract_f32 v{22+m}, v{22+m}")
        for m in range(2): A(f"v_cos_f32 v{dst+2*m}, v{22+m}\nv_sin_f32 v{dst+2*m+1}, v{22+m}")
        for m in range(2): A(f"v_mul_f32 v{dst+2*m}, v{dst+2*m}, v{20+m}\nv_mul_f32 v{dst+2*m+1}, v{dst+2*m+1}, v{20+m}")
    def cm2(d, a, z):
        for m in range(2):
            A(f"v_pk_mul_f32 v[{24+2*m}:{25+2*m}], v[{a+2*m}:{a+2*m+1}], v[{z+2*m}:{z+2*m+1}] op_sel:[0,0] op_sel_hi:[0,1]")
        for m in range(2):
            A(f"v_pk_fma_f32 v[{d+2*m}:{d+2*m+1}], v[{a+2*m}:{a+2*m+1}], v[{z+2*m}:{z+2*m+1}], v[{24+2*m}:{25+2*m}] op_sel:[1,1,0] op_sel_hi:[1,0,1] neg_lo:[1,0,0]")
    pk = [1]
    def put(src, rows, neg):
        t = 28 + 2 * (pk[0] % 2); pk[0] += 1
        n = "-" if neg else ""
        A(f"v_cvt_pk_bf16_f32 v{t}, v{src}, {n}v{src+1}\nv_cvt_pk_bf16_f32 v{t+1}, v{src+2}, {n}v{src+3}")
        for row in rows: A(f"ds_write_b64 v10, v[{t}:{t+1}] offset:{row*528}")
    A("v_mov_b32 v28, 0x3f80\nv_mov_b32 v29, 0x3f80\nds_write_b64 v10, v[28:29]")
    put(36, [1], False)
    cur = 36
    for j in range(2, 32):
        d = 44 + 4 * (j % 2)
        cm2(d, cur, 36); put(d, [j], False); cur = d
    A.stamp(3)
    E = 52
    A(f"""s_waitcnt vmcnt(0)
v_add_f32 v8, v8, v8
v_lshlrev_b32 v{E}, 16, v6
v_lshlrev_b32 v{E+1}, 16, v7
v_and_b32 v{E+2}, 0xffff0000, v6
v_and_b32 v{E+3}, 0xffff0000, v7""")
    for k in range(4): A(f"v_mul_f32 v{E+k}, v{E+k}, v8")
    A("v_lshlrev_b32 v2, 4, v0\ns_waitcnt lgkmcnt(0)")
    RF = 128; LF = 192
    for s in range(16): A(f"ds_read_b128 v[{RF+4*s}:{RF+4*s+3}], v11 offset:{32*s}")
    def row(reg, hf): return 8 * (reg >> 2) + 4 * hf + (reg & 3)
    for i in range(1, 9): cm2(E + 4*i, E + 4*(i-1), 32)
    A("s_waitcnt lgkmcnt(0)")
    for i in range(9): put(E + 4*i, [row(i, 0)], True)
    dup = {0: [0, 1], 2: [2], 4: [3, 4, 5], 6: [6], 8: [7, 8]}
    for i in (0, 2, 4, 6, 8):
        cm2(E + 4*i, E + 4*i, 40); put(E + 4*i, [row(r, 1) for r in dup[i]], True)
    for hf in range(2):
        for n, i in enumerate((0, 4, 8)):
            cm2(E + 4*i, E + 4*i, 40); put(E + 4*i, [row(9 + n, hf)], True)
    for blk in range(4):
        for n, i in enumerate((0, 8)):
            cm2(E + 4*i, E + 4*i, 40); put(E + 4*i, [row(12 + 2*(blk >> 1) + n, blk & 1)], True)
    A("s_waitcnt lgkmcnt(0)")
    for s in range(16): A(f"ds_read_b128 v[{LF+4*s}:{LF+4*s+3}], v11 offset:{32*s}")
    D = 32
    for s in range(16):
        A(f"s_waitcnt lgkmcnt({15-s})")
        c = "0" if s == 0 else f"v[{D}:{D+15}]"
        A(f"v_mfma_f32_32x32x16_bf16 v[{D}:{D+15}], v[{LF+4*s}:{LF+4*s+3}], v[{RF+4*s}:{RF+4*s+3}], {c}")
    A(f"""s_lshl_b32 s57, s54, 2
v_add_u32 v21, s57, v15
v_mov_b32 v22, 1
ds_write_b32 v21, v22 offset:{F_KD}
v_lshlrev_b32 v9, 16, v9
v_cmp_eq_u32 vcc, 0, v0
v_cndmask_b32 v9, 0, v9, vcc
v_sub_u32 v12, {4080-3072}, v2
v_add_u32 v12, s58, v12
v_and_b32 v13, 1, v0
v_cmp_eq_u32 vcc, 1, v13
v_mov_b32 v16, 0
v_mov_b32 v17, 0
v_mov_b32 v18, 0
v_mov_b32 v19, 0
v_add_u32 v14, s58, v2
v_add_f32 v{D}, v{D}, v9""")
    def wr(grp, k):
        t = 48 + 8 * (grp % 2)
        for u in range(4): A(f"v_cvt_pk_bf16_f32 v{t+u}, v{k[7-2*u]}, v{k[6-2*u]}")
        for u in range(4): A(f"v_cvt_pk_bf16_f32 v{t+4+u}, v{k[8-2*u]}, v{k[7-2*u]}")
        A(f"ds_write_b128 v12, v[{t}:{t+3}] offset:{3072-1024*grp}\nds_write_b128 v12, v[{t+4}:{t+7}] offset:{3072-1024*grp+KT_O}")
    wr(0, [D+i for i in range(9)])
    a, b, c = D+9, D+10, D+11
    wr(1, [a, a, a, b, b, b, c, c, c])
    for grp in (2, 3):
        a, b = D + 12 + 2*(grp-2), D + 13 + 2*(grp-2)
        A(f"v_cndmask_b32 v20, v{a}, v{b}, vcc")
        wr(grp, [a, a, a, a, 20, b, b, b, b])
    A(f"""s_mov_b64 exec, 0xf
ds_write_b128 v14, v[16:19] offset:4096
s_mov_b32 exec_lo, -1
ds_write_b128 v14, v[16:19] offset:{U_OFF}
s_mov_b64 exec, 1
v_cvt_pk_bf16_f32 v16, v{D}, 0
s_mov_b64 exec, 0xf
ds_write_b128 v14, v[16:19] offset:{4096+KT_O}
s_mov_b64 exec, -1""")
    A.stamp(4)
    get_nonce(A)
    A(f"""v_lshlrev_b32 v3, 3, v0
s_lshr_b32 s61, s4, 1
s_lshl_b32 s61, s61, 10
s_lshl_b32 s62, s54, 9
s_add_u32 s61, s61, s62
s_add_u32 s61, s61, {WS_FLG}
v_lshrrev_b32 v4, 1, v0
v_lshlrev_b32 v5, 13, v4
v_lshl_add_u32 v5, v13, 4, v5
v_mul_u32_u24 v6, {CONV_SZ}, v13
v_lshl_add_u32 v6, v4, 4, v6
s_lshl_b32 s62, s54, 11
s_add_u32 s62, s62, {L_CONV+U_OFF+512}
v_add_u32 v6, s62, v6
s_lshl_b32 s62, s54, 20
s_lshl_b32 s63, s53, 5
s_add_u32 s62, s62, s63
s_add_u32 s62, s62, {WS_XNT}""")
    if o.uat: A.lds_wait("v15", F_FULL, 2, "ge", o.uat, sleep=4)
    A(f"""L_k_fl:
buffer_load_dwordx2 v[16:17], v3, s[40:43], s61 offen sc1
s_waitcnt vmcnt(0)
v_xor_b32 v16, s52, v16
v_xor_b32 v17, s52, v17
v_or_b32 v16, v16, v17
v_cmp_ne_u32 vcc, 0, v16
s_cbranch_vccz L_k_fld
s_sleep 16""")
    A.tmo("L_k_fl")
    A("L_k_fld:")
    A.stamp(5)
    for k in range(4):
        A(f"s_add_u32 s63, s62, {k*32*8192}\nbuffer_load_dwordx4 v[{96+4*k}:{99+4*k}], v5, s[40:43], s63 offen sc1")
    A.lds_wait("v15", F_KD, 2, "lg", 0)
    for k in range(4):
        A(f"s_waitcnt vmcnt({3-k})\nds_write_b128 v6, v[{96+4*k}:{99+4*k}] offset:{k*512}")
    A(f"""s_waitcnt lgkmcnt(0)
ds_write_b32 v21, v22 offset:{F_KR}""")
    A.stamp(6)
    A(f"""s_cmp_lg_u32 s56, 0
s_cbranch_scc1 L_k_nb""")
    A.lds_wait("v15", F_KR, 2, "lg", 0)
    A(f"""ds_read_b32 v4, v15 offset:{F_NONCE+4}
v_mov_b32 v5, 0
s_waitcnt lgkmcnt(0)
s_mov_b64 exec, 1
buffer_store_dword v4, v5, s[40:43], 0 offen sc1
s_mov_b64 exec, -1
L_k_nb:
s_waitcnt lgkmcnt(0)""")
    A.put_stamps()
    A("s_endpgm")

HEADER = open("recurrent_scan__ssm_conv_s4d__swiglu_ffn__prompt.s.ref").read().split("; Override launch")[0]

def build(o):
    A = G(o)
    prologue(A)
    gemm(A)
    kgen(A)
    loader(A)
    A("L_exit:\ns_endpgm\nL_codeend:")
    lines, probs = hz.fix(A.L, o.verbose)
    for p in probs: print("HAZARD at branch:", p, file=sys.stderr)
    txt = HEADER + f"; @launch grid=(256,1,1) block=(512,1,1) lds={LDS_BYTES}\n"
    txt += f'.amdgcn_target "amdgcn-amd-amdhsa--gfx950"\n.text\n.globl {KN}\n.p2align 8\n.type {KN},@function\n{KN}:\n'
    txt += "\n".join(lines) + "\n"
    txt += f""".section .rodata,"a"
.p2align 6
.amdhsa_kernel {KN}
  .amdhsa_next_free_vgpr 256
  .amdhsa_next_free_sgpr 102
  .amdhsa_accum_offset 256
  .amdhsa_group_segment_fixed_size 0
  .amdhsa_kernarg_size 112
  .amdhsa_user_sgpr_count 2
  .amdhsa_user_sgpr_kernarg_segment_ptr 1
  .amdhsa_system_sgpr_workgroup_id_x 1
  .amdhsa_float_denorm_mode_32 3
.end_amdhsa_kernel
"""
    return txt

def parser():
    ap = argparse.ArgumentParser()
    ap.add_argument("-o", default="recurrent_scan__ssm_conv_s4d__swiglu_ffn__prompt.s")
    ap.add_argument("--stamps", action="store_true")
    ap.add_argument("--verbose", action="store_true")
    ap.add_argument("--cyc", action="store_true")
    ap.add_argument("--padto", type=int, default=0)
    ap.add_argument("--tmo", type=int, default=200000)
    ap.add_argument("--codepf", type=int, default=1)
    ap.add_argument("--rot", type=int, default=1)
    ap.add_argument("--rot2", type=int, default=1)
    ap.add_argument("--sigat", type=int, default=10)
    ap.add_argument("--sig7", type=int, default=1)
    ap.add_argument("--wpre", type=int, default=2)
    ap.add_argument("--lddelay", type=int, default=0)
    ap.add_argument("--lnsleep", type=int, default=2)
    ap.add_argument("--hsleep", type=int, default=2)
    ap.add_argument("--uat", type=int, default=7)
    ap.add_argument("--hflag_at", type=int, default=1)
    ap.add_argument("--ahead", type=int, default=12)
    ap.add_argument("--hld", default=" sc1")
    ap.add_argument("--xld", default=" sc1")
    return ap

if __name__ == "__main__":
    o = parser().parse_args()
    open(o.o, "w").write(build(o))
```

```python
import sys, argparse, struct
sys.path.insert(0, "gen")
import hz

KN = "recurrent_scan__ssm_conv_s4d__swiglu_ffn__prompt_kernel"
WS_EPOCH = 0x0
WS_FLG   = 0x2000
WS_FHL   = 0x3000
WS_FHG   = 0x4000
WS_FS    = 0x5000
WS_STATS = 0x8000
WS_CS    = 0xC000
WS_XNT   = 0x210000
WS_ST    = 0x410000
WS_H     = 0x610000
WS_STAMP = 0x1000000
WS_BYTES = 268435456
SLOT = 40960
L_CONV = 3 * SLOT
CONV_SZ = 16896
L_FLAGS = L_CONV + 2 * CONV_SZ
LDS_BYTES = L_FLAGS + 128
F_FULL, F_FREE, F_NONCE, F_LN, F_KD, F_KR, F_CA, F_CB, F_XR = 0, 16, 32, 48, 64, 72, 80, 96, 112
KT_O, U_OFF = 4160, 8320
WBYTES = 512 * 1376 * 2
LOG2E = 0x3FB8AA3B

class G:
    def __init__(self, o):
        self.o = o; self.L = []; self.n = 0
    def __call__(self, s):
        for l in s.strip("\n").split("\n"):
            l = l.strip()
            if not l: continue
            self.L.append(l if l.endswith(":") or l.startswith(".") else "    " + l)
    def lab(self, p="L"):
        self.n += 1; return f"{p}{self.n}"
    def srd(self, d, b, nbytes):
        self(f"s_mov_b32 s{d}, s{b}\ns_and_b32 s{d+1}, s{b+1}, 0xffff\ns_mov_b32 s{d+2}, {nbytes}\ns_mov_b32 s{d+3}, 0x00020000")
    def stamp(self, i, force=False):
        if self.o.stg and i >= 8 and not force: return
        if self.o.stamps: self(f"{'s_memtime' if self.o.cyc else 's_memrealtime'} s[{68+2*i}:{69+2*i}]")
    def put_stamps(self):
        if not self.o.stamps or self.o.probe >= 0: return
        self(f"""s_waitcnt vmcnt(0) lgkmcnt(0)
s_lshl_b32 s64, s2, 3
s_add_u32 s64, s64, s3
s_lshl_b32 s64, s64, 7
s_add_u32 s64, s64, {WS_STAMP}
s_mov_b64 exec, 1
v_mov_b32 v2, 0""")
        for i in range(16):
            self(f"v_mov_b32 v4, s{68+2*i}\nv_mov_b32 v5, s{69+2*i}\nbuffer_store_dwordx2 v[4:5], v2, s[40:43], s64 offen offset:{8*i}\ns_nop 1")
        self("s_waitcnt vmcnt(0)")
    def tmo(self, back):
        self(f"s_sub_u32 s55, s55, 1\ns_max_i32 s55, s55, 0\ns_cmp_lg_u32 s55, 0\ns_cbranch_scc1 {back}")
    def lds_wait(self, addr, off, n, cmp, val, sleep=0, t=16):
        l = self.lab("Lw")
        rd = {1: f"ds_read_b32 v{t}", 2: f"ds_read_b64 v[{t}:{t+1}]", 4: f"ds_read_b128 v[{t}:{t+3}]"}[n]
        self(f"{l}:\n{rd}, {addr} offset:{off}\ns_waitcnt lgkmcnt(0)")
        if n >= 2: self(f"v_min_u32 v{t}, v{t}, v{t+1}")
        if n == 4: self(f"v_min3_u32 v{t}, v{t}, v{t+2}, v{t+3}")
        self(f"v_readfirstlane_b32 s67, v{t}\ns_cmp_{cmp}_u32 s67, {val}\ns_cbranch_scc1 {l}d")
        if sleep: self(f"s_sleep {sleep}")
        self.tmo(l)
        self(f"{l}d:")
    def flag_wait(self, vloc, vglob, soff, tries, sleep=0, t=20):
        l = self.lab("Lf")
        self(f"""s_mov_b32 s66, 0
{l}:
buffer_load_dword v{t}, {vloc}, s[40:43], {soff} offen sc1
s_add_u32 s66, s66, 1
s_cmp_le_u32 s66, {tries}
s_cbranch_scc1 {l}a
buffer_load_dword v{t+1}, {vglob}, s[40:43], {soff} offen sc1
s_waitcnt vmcnt(0)
v_cmp_eq_u32 vcc, s52, v{t+1}
v_cndmask_b32 v{t}, v{t}, v{t+1}, vcc
{l}a:
s_waitcnt vmcnt(0)
v_cmp_ne_u32 vcc, s52, v{t}
s_cbranch_vccz {l}d""")
        if sleep: self(f"s_sleep {sleep}")
        self.tmo(l)
        self(f"{l}d:")

def prologue(A):
    o = A.o
    A(f"""s_cmp_ge_u32 s2, 256
s_cbranch_scc1 L_exit
s_load_dwordx16 s[8:23], s[0:1], 0
s_load_dwordx8 s[24:31], s[0:1], 64
s_load_dwordx4 s[32:35], s[0:1], 96""")
    A.stamp(0)
    if o.padto: A("s_memrealtime s[100:101]")
    A(f"""v_lshrrev_b32 v1, 6, v0
v_and_b32 v0, 63, v0
s_and_b32 s4, s2, 7
v_readfirstlane_b32 s3, v1
s_lshr_b32 s5, s2, 3
s_and_b32 s6, s5, 1
s_lshl_b32 s7, s4, 1
s_add_u32 s6, s6, s7
s_lshr_b32 s7, s5, 1
s_lshl_b32 s53, s4, 5
s_add_u32 s53, s53, s5
s_mov_b32 s55, {o.tmo}
v_mov_b32 v15, {L_FLAGS}
s_cmp_lg_u32 s3, 7
s_cbranch_scc1 L_noinit
v_mov_b32 v2, 0
v_lshl_add_u32 v3, v0, 2, v15
s_mov_b32 exec_hi, 0
ds_write_b32 v3, v2""")
    if o.codepf:
        A(f"""s_getpc_b64 s[56:57]
L_pc:
s_lshl_b32 s58, s5, 10
v_lshl_add_u32 v3, v0, 7, s58
v_min_u32 v3, L_codeend-L_pc-4, v3
s_mov_b64 exec, 0xff
global_load_dword v255, v3, s[56:57]""")
    A(f"""s_mov_b64 exec, -1
s_waitcnt lgkmcnt(0)
L_noinit:
s_barrier
s_waitcnt lgkmcnt(0)""")
    A.srd(40, 34, WS_BYTES)
    A.stamp(1)
    A(f"""s_cmp_ge_u32 s3, 6
s_cbranch_scc1 L_loader
s_cmp_ge_u32 s3, 4
s_cbranch_scc1 L_kgen""")

def get_nonce(A):
    A.lds_wait("v15", F_NONCE, 1, "lg", 0)
    A("s_mov_b32 s52, s67")

def rot2(A, d, t):
    if A.o.rot2 == 0:
        A(f"s_mov_b32 s{d}, 0"); return
    A(f"""s_and_b32 s{d}, s5, 3
s_mul_i32 s{d}, s{d}, 11
s_lshr_b32 s{t}, s5, 2
s_add_u32 s{t}, s{t}, s4
s_and_b32 s{t}, s{t}, 7
s_mul_i32 s{t}, s{t}, 5
s_add_u32 s{d}, s{d}, s{t}
s_cmp_ge_u32 s{d}, 43
s_cselect_b32 s{t}, 43, 0
s_sub_u32 s{d}, s{d}, s{t}""")

def loader(A):
    o = A.o
    A(f"""L_loader:
s_sub_u32 s54, s3, 6
s_cmp_eq_u32 s54, 1
s_cselect_b32 s24, s26, s24
s_cselect_b32 s25, s27, s25""")
    A.srd(44, 24, WBYTES)
    A.srd(36, 8, 2097152)
    A(f"""v_lshrrev_b32 v3, 2, v0
v_mul_u32_u24 v3, 2752, v3
v_and_b32 v7, 3, v0
v_lshrrev_b32 v1, 5, v0
v_lshlrev_b32 v1, 1, v1
v_xor_b32 v7, v1, v7
v_lshl_add_u32 v7, v7, 4, v3
v_lshrrev_b32 v1, 3, v0
v_lshlrev_b32 v2, 10, v1
v_and_b32 v5, 7, v0
v_lshrrev_b32 v6, 4, v0
s_lshl_b32 s56, s54, 2
v_add_u32 v6, s56, v6
v_and_b32 v6, 7, v6
v_xor_b32 v6, v5, v6
v_lshl_add_u32 v6, v6, 4, v2
v_add_u32 v9, s56, v15
s_lshl_b32 s57, s6, 17
s_lshl_b32 s56, s54, 13
s_add_u32 s57, s57, s56
s_cmp_eq_u32 s7, 15
s_cselect_b32 s57, 0x40000000, s57
s_cselect_b32 s7, s6, s7
s_mul_i32 s58, s7, 192
s_cmp_eq_u32 s7, 15
s_cselect_b32 s58, 0x40000000, s58
s_cmp_eq_u32 s7, 14
s_cselect_b32 s52, 0x40000000, 0
s_lshl_b32 s59, s54, 10
s_mul_i32 s60, s54, 12288
s_add_u32 s60, s60, 16384
s_and_b32 s63, s5, 1
s_mul_i32 s63, s63, {o.ra}
s_mul_i32 s56, s4, {o.rb}
s_add_u32 s63, s63, s56
s_mul_i32 s56, s7, {o.rc}
s_add_u32 s63, s63, s56
s_and_b32 s63, s63, {o.rm}
s_mov_b32 s61, 0
s_mov_b32 s62, 0""")
    if o.ldprio: A(f"s_setprio {o.ldprio}")
    if o.lddelay: A(f"s_sleep {o.lddelay}")
    def sig(n, val): A(f"s_waitcnt vmcnt({n})\nv_mov_b32 v10, {val}\nds_write_b32 v9, v10")
    def wait_free():
        A("s_sub_u32 s66, s61, 2")
        A.lds_wait("v15", F_FREE, 4, "ge", "s66", sleep=1)
    def advance():
        A(f"""s_add_u32 s61, s61, 1
s_add_u32 s62, s62, {SLOT}
s_cmp_eq_u32 s62, {3*SLOT}
s_cselect_b32 s62, 0, s62""")
    A("""L_ld_st:
s_cmp_lt_u32 s61, 2
s_cbranch_scc1 L_ld_is
s_cmp_eq_u32 s61, 2
s_cbranch_scc0 L_ld_fw""")
    A.lds_wait("v15", F_LN, 4, "ge", 2)
    A("s_branch L_ld_is\nL_ld_fw:")
    wait_free()
    A(f"""L_ld_is:
s_lshl_b32 s64, s63, 7
s_add_u32 s64, s64, s57
s_add_u32 s65, s62, s59
s_mul_i32 s50, s63, {64*2752}
s_add_u32 s50, s50, s58
s_add_u32 s51, s50, s52
s_add_u32 s49, s62, s60""")
    items = [("x", t) for t in range(8)] + [("w", kg, jj) for kg in range(4) for jj in range(3)]
    if o.ldorder == 1: items = items[8:] + items[:8]
    if o.oob: A("s_mov_b32 s64, 0x40000000\ns_mov_b32 s50, s64\ns_mov_b32 s51, s64")
    for n, it in enumerate(items):
        if n == o.sigat: sig(n, "s61")
        if o.noload: continue
        if it[0] == "x":
            t = it[1]
            A(f"s_add_u32 m0, s65, {t*2048}\ns_add_u32 s56, s64, {t*16384}\nbuffer_load_dwordx4 v6, s[36:39], s56 offen lds")
        else:
            _, kg, jj = it
            A(f"s_add_u32 m0, s49, {jj*4096+kg*1024}\ns_add_u32 s56, s{50 if jj == 0 else 51}, {kg*16*2752+jj*64}\nbuffer_load_dwordx4 v7, s[44:47], s56 offen lds")
    A("s_add_u32 s63, s63, 1\ns_and_b32 s63, s63, 7")
    advance()
    if o.stamps:
        A("s_cmp_lg_u32 s61, 1\ns_cbranch_scc1 L_ld_s1"); A.stamp(2); A("L_ld_s1:")
        A("s_cmp_lg_u32 s61, 3\ns_cbranch_scc1 L_ld_s2"); A.stamp(3); A("L_ld_s2:")
    A("s_cmp_lt_u32 s61, 8\ns_cbranch_scc1 L_ld_st")
    A("""v_and_b32 v8, 2, v1
v_lshlrev_b32 v8, 1, v8
v_xor_b32 v8, v5, v8
v_lshl_add_u32 v8, v8, 4, v2""")
    A.srd(48, 28, WBYTES)
    A.stamp(4)
    if o.sig7: sig(0, 8)
    A(f"""s_lshr_b32 s57, s5, 2
s_lshl_b32 s57, s57, 7
s_mul_i32 s58, s54, {43*16*1024}
s_add_u32 s57, s57, s58
s_mul_i32 s59, s54, 20480""")
    rot2(A, 63, 64)
    def kblock(i):
        A(f"""s_lshl_b32 s56, s63, 14
s_add_u32 s56, s56, s57
s_add_u32 m0, s65, {i*2048}
s_add_u32 s63, s63, 1
buffer_load_dwordx4 v8, s[48:51], s56 offen lds
s_add_u32 m0, s65, {i*2048+1024}
s_add_u32 s56, s56, 8192
buffer_load_dwordx4 v8, s[48:51], s56 offen lds
s_cmp_eq_u32 s63, 43
s_cselect_b32 s63, 0, s63""")
    A("L_ld_wc:")
    A("s_cmp_lg_u32 s61, 11\ns_cbranch_scc1 L_ld_w2")
    sig(0, 11)
    A.stamp(5)
    A("L_ld_w2:")
    wait_free()
    A("s_add_u32 s65, s62, s59")
    for i in range(3): kblock(i)
    A("s_cmp_eq_u32 s61, 12\ns_cbranch_scc1 L_ld_last")
    for i in range(3, 10):
        if i == max(3, o.sigat // 2): sig(2*i, "s61")
        kblock(i)
    advance()
    A("s_branch L_ld_wc\nL_ld_last:")
    sig(6, 12)
    sig(0, 13)
    A("s_waitcnt lgkmcnt(0)")
    A.stamp(6)
    A.put_stamps()
    A("s_endpgm")

BOUNCE = 2 * SLOT
def ln(A):
    o = A.o
    A.srd(36, 8, 2097152)
    A(f"""s_lshl_b32 s46, s53, 13
s_lshl_b32 s58, s3, 11
s_add_u32 s46, s46, s58
v_lshlrev_b32 v250, 4, v0
buffer_load_dwordx4 v[128:131], v250, s[36:39], s46 offen
buffer_load_dwordx4 v[132:135], v250, s[36:39], s46 offen offset:1024""")

def ln2(A):
    A(f"""v_mov_b32 v14, 0x3f803f80
v_mov_b32 v20, 0x00003f80
v_mov_b32 v21, 0x3f800000
s_mov_b32 s58, 0x3b000000
s_mov_b32 s59, 0x3727c5ac
v_mul_u32_u24 v22, 144, v0
s_lshl_b32 s56, s3, 2
v_add_u32 v13, s56, v15
s_add_u32 s56, s56, {BOUNCE}
v_add_u32 v22, s56, v22
v_lshrrev_b32 v23, 3, v0
v_mul_u32_u24 v23, 144, v23
v_and_b32 v24, 7, v0
v_lshl_add_u32 v23, v24, 4, v23
s_mul_i32 s56, s3, {16*144}
s_add_u32 s56, s56, {BOUNCE}
v_add_u32 v23, s56, v23
v_lshrrev_b32 v251, 5, v0
v_lshlrev_b32 v251, 3, v251
s_lshr_b32 s47, s46, 7
s_add_u32 s47, s47, {WS_STATS}
s_add_u32 s46, s46, {WS_XNT}
s_lshl_b32 s48, s3, 8
s_add_u32 s48, s48, s53
s_lshl_b32 s48, s48, 2
s_add_u32 s48, s48, {WS_FLG}""")
    for r in range(2):
        A(f"s_waitcnt vmcnt({1-r})")
        if r == 0: A.stamp(2)
        for i in range(4):
            c1 = "0" if i == 0 else f"v{160+r}"; c2 = "0" if i == 0 else f"v{162+r}"
            A(f"v_dot2_f32_bf16 v{160+r}, v{128+4*r+i}, v14, {c1}\nv_dot2_f32_bf16 v{162+r}, v{128+4*r+i}, v{128+4*r+i}, {c2}")
    A("""v_permlane32_swap_b32 v160, v161
v_permlane32_swap_b32 v162, v163
v_add_f32 v160, v160, v161
v_add_f32 v162, v162, v163
v_mov_b32 v161, v160
v_mov_b32 v163, v162
v_permlane16_swap_b32 v160, v161
v_permlane16_swap_b32 v162, v163
v_add_f32 v160, v160, v161
v_add_f32 v162, v162, v163""")
    for sh in (8, 4, 2, 1):
        for reg in (160, 162):
            A(f"v_add_f32_dpp v{reg}, v{reg}, v{reg} row_ror:{sh} row_mask:0xf bank_mask:0xf")
    A("""v_mul_f32 v160, s58, v160
v_mul_f32 v162, s58, v162
v_fma_f32 v162, -v160, v160, v162
v_max_f32 v162, 0, v162
v_cvt_pk_bf16_f32 v161, v162, -v160
v_and_b32 v160, 0xffff0000, v161
v_lshlrev_b32 v162, 16, v161
v_add_f32 v162, s59, v162
v_cvt_pk_bf16_f32 v162, v162, v162
v_and_b32 v162, 0xffff0000, v162
v_readlane_b32 s8, v160, 0
v_sqrt_f32 v162, v162
v_readlane_b32 s9, v160, 32
v_cvt_pk_bf16_f32 v248, v162, v160
v_lshlrev_b32 v162, 16, v248
v_rcp_f32 v162, v162""")
    for c in range(8):
        for r in range(2):
            A(f"v_dot2_f32_bf16 v{164+2*c+r}, v{128+4*r+c//2}, {'v20' if c % 2 == 0 else 'v21'}, s{8+r}")
        if c == 0: A("v_readlane_b32 s10, v162, 0\nv_readlane_b32 s11, v162, 32")
    for c in range(8): A(f"v_pk_mul_f32 v[{164+2*c}:{165+2*c}], v[{164+2*c}:{165+2*c}], s[10:11]")
    for c in range(8):
        A(f"v_cvt_pk_bf16_f32 v{144+c}, v{164+2*c}, v{165+2*c}\nds_write_b32 v22, v{144+c} offset:{16*c}")
    A(f"""v_mov_b32 v12, 1
s_waitcnt lgkmcnt(0)
ds_write_b32 v13, v12 offset:{F_LN}""")
    A.lds_wait("v15", F_LN, 4, "lg", 0)
    A(f"""ds_read_b128 v[240:243], v23
ds_read_b128 v[244:247], v23 offset:{8*144}
v_mov_b32 v12, 2
s_waitcnt lgkmcnt(0)
ds_write_b32 v13, v12 offset:{F_LN}""")
    A.stamp(3)

def ln_stores(A):
    get_nonce(A)
    A(f"""v_mov_b32 v249, s52
buffer_store_dwordx4 v[240:243], v250, s[40:43], s46 offen sc1
buffer_store_dwordx4 v[244:247], v250, s[40:43], s46 offen offset:1024 sc1
s_mov_b32 exec_lo, 1
s_mov_b32 exec_hi, 1
buffer_store_dwordx2 v[248:249], v251, s[40:43], s47 offen sc1
s_mov_b64 exec, -1""")

def ln_flag(A):
    A(f"""s_waitcnt vmcnt(0)
s_mov_b64 exec, 1
buffer_store_dword v249, v251, s[40:43], s48 offen sc1
s_mov_b64 exec, -1""")

ACC = 32
def acc(i, jn): return ACC + 4 * (4 * jn + i)
BUF = (128, 168)
R1B, R1A = 208, 224
def g1_reads(buf, ks):
    b = BUF[buf]; L = []
    def w(jn):
        for t in range(2):
            L.append(f"ds_read_b64_tr_b16 v[{b+16+4*jn+2*t}:{b+16+4*jn+2*t+1}], v{4+jn//2} offset:{(jn&1)*12288+ks*2048+t*256}")
    w(0)
    for i in range(4): L.append(f"ds_read_b128 v[{b+4*i}:{b+4*i+3}], v{2+ks} offset:{i*2048}")
    for jn in range(1, 6): w(jn)
    return L
def g1_mm(A, buf, fill):
    b = BUF[buf]; k = 0
    for jn in range(6):
        for i in range(4):
            a = acc(i, jn)
            if not A.o.nomm: A(f"v_mfma_f32_16x16x32_bf16 v[{a}:{a+3}], v[{b+16+4*jn}:{b+16+4*jn+3}], v[{b+4*i}:{b+4*i+3}], v[{a}:{a+3}]")
            for x in fill.get(k, []):
                if A.o.nord and ("_tr_" in x or "b128" in x): continue
                A(x)
            k += 1
def spread(L, start, per):
    d = {}
    for n, x in enumerate(L): d.setdefault(start + n // per, []).append(x)
    return d

def gemm(A):
    o = A.o
    ln(A)
    A("s_and_b32 s60, s3, 1\ns_lshr_b32 s61, s3, 1")
    A(f"""v_and_b32 v10, 15, v0
v_lshrrev_b32 v11, 4, v0
v_lshrrev_b32 v18, 1, v10
v_xor_b32 v18, v11, v18
s_lshl_b32 s56, s60, 6
v_add_u32 v19, s56, v10
v_lshlrev_b32 v19, 7, v19
v_lshl_add_u32 v2, v18, 4, v19
v_xor_b32 v3, 64, v2
v_and_b32 v18, 1, v11
v_lshlrev_b32 v18, 5, v18
v_lshl_add_u32 v18, v11, 9, v18
v_bfe_u32 v19, v0, 2, 2
v_lshl_add_u32 v18, v19, 6, v18
v_and_b32 v19, 3, v0
v_lshl_add_u32 v18, v19, 3, v18
v_add_u32 v18, 16384, v18""")
    for j in range(3):
        A(f"""s_mul_i32 s56, s61, 3
s_add_u32 s56, s56, {j}
s_and_b32 s57, s56, 1
s_lshl_b32 s57, s57, 5
s_lshr_b32 s56, s56, 1
s_lshl_b32 s56, s56, 12
v_xor_b32 v{4+j}, s57, v18
v_add_u32 v{4+j}, s56, v{4+j}""")
    for r in range(96): A(f"v_mov_b32 v{ACC+r}, 0")
    for r in range(R1B, 240): A(f"v_mov_b32 v{r}, 0")
    A("v_and_b32 v252, 31, v0\nv_lshlrev_b32 v252, 3, v252")
    ln2(A)
    A(f"""s_mov_b32 s62, 0
s_mov_b32 s63, 0
s_mov_b32 s64, {SLOT}
s_mov_b32 s65, {-2*SLOT & 0xffffffff}
s_mov_b32 s49, 0
s_cmp_lt_u32 s7, 15
s_cbranch_scc0 L_cs""")
    A.lds_wait("v15", F_FULL, 2, "gt", "s62")
    A.stamp(4)
    for x in g1_reads(0, 0): A(x)
    A(".p2align 3\nL_g1_loop:")
    if o.stg:
        for k in range(8):
            A(f"s_cmp_lg_u32 s62, {k}\ns_cbranch_scc1 L_stg{k}"); A.stamp(8 + k, True); A(f"L_stg{k}:")
    A("s_waitcnt lgkmcnt(0)")
    f = spread(g1_reads(1, 1), 0, 2)
    f[8] = ["s_add_u32 s62, s62, 1", f"s_add_u32 s63, s63, {SLOT}"]
    f[9] = [f"s_cmp_eq_u32 s63, {3*SLOT}", "s_cselect_b32 s57, s65, s64", "s_cselect_b32 s63, 0, s63"]
    f[10] = ["v_mov_b32 v12, s62", "v_add_u32 v2, s57, v2"]
    f[11] = ["v_add_u32 v3, s57, v3", "v_add_u32 v4, s57, v4"]
    f[12] = ["v_add_u32 v5, s57, v5", "v_add_u32 v6, s57, v6"]
    f[14] = ["s_waitcnt lgkmcnt(0)", f"ds_write_b32 v13, v12 offset:{F_FREE}"]
    f[o.flagat] = [f"ds_read_b64 v[16:17], v15 offset:{F_FULL}"]
    f[22] = ["s_waitcnt lgkmcnt(0)", "v_min_u32 v16, v16, v17"]
    f[23] = ["v_readfirstlane_b32 s56, v16", "s_cmp_eq_u32 s62, 8"]
    g1_mm(A, 0, f)
    A(f"""s_cbranch_scc1 L_g1_end
s_cmp_gt_u32 s56, s62
s_cbranch_scc0 L_g1_slow""")
    f = spread(g1_reads(0, 0), 0, 2)
    f[23] = [f"s_bitcmp1_b32 {o.jobs}, s62"]
    g1_mm(A, 1, f)
    A("s_cbranch_scc0 L_g1_loop\ns_mov_b32 s50, 0\ns_branch L_jobs\nL_g1_slow:")
    g1_mm(A, 1, {23: [f"s_bitcmp1_b32 {o.jobs}, s62", "s_mov_b32 s50, 1"]})
    A("s_cbranch_scc1 L_jobs\nL_g1_poll:")
    A.lds_wait("v15", F_FULL, 2, "gt", "s62")
    for x in g1_reads(0, 0): A(x)
    A("s_branch L_g1_loop")
    j1, j2, j3, j4 = o.j1, o.j2, o.j3, o.j4
    A(f"L_jobs:\ns_cmp_lg_u32 s62, {j1}\ns_cbranch_scc1 L_job2")
    ln_stores(A)
    A(f"s_branch L_jobret\nL_job2:\ns_cmp_lg_u32 s62, {j2}\ns_cbranch_scc1 L_job3")
    ln_flag(A)
    A(f"s_branch L_jobret\nL_job3:\ns_cmp_lg_u32 s62, {j3}\ns_cbranch_scc1 L_job4")
    A(f"""s_lshl_b32 s46, s6, 1
s_add_u32 s46, s46, s60
s_lshl_b32 s46, s46, 9
s_add_u32 s46, s46, {WS_STATS}
s_lshl_b32 s47, s7, 1
s_add_u32 s47, s47, s61
s_mul_i32 s47, s47, 768
s_add_u32 s47, s47, {WS_CS}
v_lshlrev_b32 v250, 3, v10
v_lshlrev_b32 v251, 3, v0
L_job3l:""")
    for i in range(4): A(f"buffer_load_dwordx2 v[{240+2*i}:{241+2*i}], v250, s[40:43], s46 offen offset:{128*i} sc1")
    A(f"""buffer_load_dwordx2 v[20:21], v251, s[40:43], s47 offen sc1
buffer_load_dwordx2 v[22:23], v252, s[40:43], s47 offen offset:512 sc1
s_cmp_eq_u32 s50, 2
s_cbranch_scc0 L_jobret
L_job4:
s_waitcnt vmcnt(0)
v_xor_b32 v24, s52, v241
v_xor_b32 v25, s52, v243
v_xor_b32 v26, s52, v245
v_xor_b32 v27, s52, v247
v_xor_b32 v28, s52, v21
v_xor_b32 v29, s52, v23
v_or3_b32 v24, v24, v25, v26
v_or3_b32 v27, v27, v28, v29
v_or_b32 v24, v24, v27
v_cmp_ne_u32 vcc, 0, v24
s_cbranch_vccz L_job4ok""")
    A.tmo("L_job3l")
    A(f"""L_job4ok:
s_mov_b32 s49, 1
s_mov_b32 s56, 0x03020302
s_mov_b32 s57, {LOG2E ^ 0x80000000}""")
    for i in range(4):
        A(f"v_perm_b32 v{R1B+4*i}, v{240+2*i}, v{240+2*i}, s56\nv_lshlrev_b32 v{240+2*i}, 16, v{240+2*i}")
    for i in range(4): A(f"v_rcp_f32 v{240+2*i}, v{240+2*i}")
    for i in range(4):
        A(f"v_mul_f32 v{241+2*i}, v{240+2*i}, v{240+2*i}\nv_mul_f32 v{240+2*i}, s57, v{240+2*i}")
    for jn in range(6):
        t = R1A + 4 * (jn % 4)
        src = 20 if jn < 4 else 22
        g_ = jn % 4
        A(f"v_cmp_eq_u32 vcc, {g_}, v11\nv_cndmask_b32 v{t}, 0, v{src}, vcc")
        for i in range(4):
            a = acc(i, jn)
            A(f"v_mfma_f32_16x16x32_bf16 v[{a}:{a+3}], v[{t}:{t+3}], v[{R1B+4*i}:{R1B+4*i+3}], v[{a}:{a+3}]")
    A(f"""L_jobret:
s_cmp_eq_u32 s50, 0
s_cbranch_scc1 L_g1_loop
s_cmp_eq_u32 s50, 1
s_cbranch_scc1 L_g1_poll
s_branch L_g1_epi""")
    A("L_cs:")
    ln_stores(A)
    A(f"""s_cmp_eq_u32 s60, 0
s_cbranch_scc1 L_cs_go
v_mov_b32 v12, 8
ds_write_b32 v13, v12 offset:{F_FREE}
s_branch L_cs_done
L_cs_go:""")
    for r in range(4): A(f"v_mov_b32 v{128+r}, v14")
    A("L_cs_loop:")
    A.lds_wait("v15", F_FULL, 2, "gt", "s62")
    for ks in range(2):
        for x in g1_reads(ks, ks):
            if "_tr_" in x: A(x)
    A(f"""s_add_u32 s62, s62, 1
s_add_u32 s63, s63, {SLOT}
s_cmp_eq_u32 s63, {3*SLOT}
s_cselect_b32 s57, s65, s64
s_cselect_b32 s63, 0, s63
v_mov_b32 v12, s62
v_add_u32 v4, s57, v4
v_add_u32 v5, s57, v5
v_add_u32 v6, s57, v6
s_waitcnt lgkmcnt(0)
ds_write_b32 v13, v12 offset:{F_FREE}""")
    for ks in range(2):
        for jn in range(6):
            a = ACC + 4 * jn; b = BUF[ks]
            A(f"v_mfma_f32_16x16x32_bf16 v[{a}:{a+3}], v[128:131], v[{b+16+4*jn}:{b+16+4*jn+3}], v[{a}:{a+3}]")
    A(f"""s_cmp_lt_u32 s62, 8
s_cbranch_scc1 L_cs_loop
s_lshl_b32 s56, s6, 1
s_add_u32 s56, s56, s61
s_mul_i32 s56, s56, 768
s_add_u32 s56, s56, {WS_CS}
v_lshlrev_b32 v18, 3, v0
s_nop 4
s_mov_b64 exec, 0xffff""")
    for jn in range(6):
        a = ACC + 4 * jn
        A(f"""v_cvt_pk_bf16_f32 v{a+1}, v{a}, v{a}
v_and_b32 v{a+1}, 0xffff0000, v{a+1}
v_sub_f32 v{a}, v{a}, v{a+1}
v_cvt_pk_bf16_f32 v{a+2}, v{a+1}, v{a}
v_mov_b32 v{a+3}, s52
buffer_store_dwordx2 v[{a+2}:{a+3}], v18, s[40:43], s56 offen offset:{128*jn} sc1""")
    A("s_mov_b64 exec, -1\nL_cs_done:")
    ln_flag(A)
    A("s_branch L_conv")
    A("L_g1_end:")
    g1_mm(A, 1, {23: ["s_mov_b32 s50, 2", "s_cmp_eq_u32 s49, 0"]})
    A.stamp(5)
    A("s_cbranch_scc1 L_job4\nL_g1_epi:")
    A.stamp(6)
    A(f"""s_lshl_b32 s56, s6, 1
s_add_u32 s56, s56, s60
s_mul_i32 s57, s56, {2*86*1024}
s_mul_i32 s58, s7, 6
s_mul_i32 s59, s61, 3
s_add_u32 s58, s58, s59
s_lshl_b32 s59, s58, 10
s_add_u32 s57, s57, s59
s_add_u32 s57, s57, {WS_H}
v_lshlrev_b32 v2, 4, v0""")
    T = 128
    for j in range(3):
        for ip in range(2):
            d = 192 + 4 * ((2*j+ip) % 3)
            def pr(p):
                i = 2*ip + p//2
                return acc(i, 2*j) + 2*(p % 2), acc(i, 2*j+1) + 2*(p % 2), 240 + 2*i
            for p in range(4):
                g_, u_, sc = pr(p)
                A(f"v_pk_mul_f32 v[{T+2*p}:{T+2*p+1}], v[{g_}:{g_+1}], v[{sc}:{sc+1}] op_sel_hi:[1,0]")
            for e in range(8): A(f"v_exp_f32 v{T+e}, v{T+e}")
            for p in range(4):
                g_, u_, sc = pr(p)
                A(f"v_pk_mul_f32 v[{T+8+2*p}:{T+9+2*p}], v[{g_}:{g_+1}], v[{u_}:{u_+1}]")
            for p in range(4): A(f"v_pk_add_f32 v[{T+2*p}:{T+2*p+1}], v[{T+2*p}:{T+2*p+1}], 1.0 op_sel_hi:[1,0]")
            for e in range(8): A(f"v_rcp_f32 v{T+e}, v{T+e}")
            for p in range(4):
                g_, u_, sc = pr(p)
                A(f"v_pk_mul_f32 v[{T+8+2*p}:{T+9+2*p}], v[{T+8+2*p}:{T+9+2*p}], v[{sc}:{sc+1}] op_sel:[0,1] op_sel_hi:[1,1]")
            for p in range(4): A(f"v_pk_mul_f32 v[{T+8+2*p}:{T+9+2*p}], v[{T+8+2*p}:{T+9+2*p}], v[{T+2*p}:{T+2*p+1}]")
            for p in range(4): A(f"v_cvt_pk_bf16_f32 v{d+p}, v{T+8+2*p}, v{T+9+2*p}")
            l = A.lab("Lhs")
            A(f"""s_add_u32 s59, s58, {j}
s_cmp_ge_u32 s59, 86
v_permlane16_swap_b32 v{d}, v{d+2}
v_permlane16_swap_b32 v{d+1}, v{d+3}
s_cbranch_scc1 {l}
s_add_u32 s59, s57, {ip*86*1024+j*1024}
buffer_store_dwordx4 v[{d}:{d+3}], v2, s[40:43], s59 offen sc1
{l}:""")
    A(f"""s_lshl_b32 s54, s56, 5
s_lshl_b32 s58, s7, 1
s_add_u32 s54, s54, s58
s_add_u32 s54, s54, s61
s_lshl_b32 s54, s54, 2
s_add_u32 s54, s54, {WS_FHL}""")
    A.stamp(7)
    conv(A)
    gemm2(A)

def h_flags(A):
    l = A.lab("Lhf")
    A(f"""s_cmp_ge_u32 s7, 15
s_cbranch_scc1 {l}
v_mov_b32 v18, s52
v_mov_b32 v19, 0
s_waitcnt vmcnt(0)
s_mov_b64 exec, 1
buffer_store_dword v18, v19, s[40:43], s54 offen
s_add_u32 s54, s54, {WS_FHG-WS_FHL}
buffer_store_dword v18, v19, s[40:43], s54 offen sc1
s_mov_b64 exec, -1
{l}:""")

def conv(A):
    o = A.o
    D = 32
    A(f"""L_conv:
s_mul_i32 s58, s61, {CONV_SZ}
s_add_u32 s58, s58, {L_CONV}
s_lshl_b32 s59, s60, 8
s_sub_u32 s59, s58, s59
v_and_b32 v10, 15, v0
v_lshrrev_b32 v11, 4, v0
v_and_b32 v18, 1, v0
v_cmp_eq_u32 vcc, 1, v18
v_sub_u32 v18, 2032, v10
v_lshrrev_b32 v18, 1, v18
v_lshl_add_u32 v18, v11, 2, v18
v_lshlrev_b32 v18, 2, v18
v_mov_b32 v19, {KT_O}
v_cndmask_b32 v19, v19, 0, vcc
v_add3_u32 v18, v18, v19, s59""")
    for p in range(4): A(f"v_subrev_u32 v{4+p}, {4*(128*(2*p+1)+48)}, v18")
    A(f"""v_lshlrev_b32 v8, 5, v10
v_lshl_add_u32 v8, v11, 4, v8
v_add_u32 v8, s59, v8
v_add_u32 v8, {U_OFF+512-32-192}, v8""")
    A(f"""v_and_b32 v18, 31, v0
v_lshrrev_b32 v19, 5, v0
v_lshlrev_b32 v14, 10, v18
v_lshl_add_u32 v14, v19, 3, v14
s_and_b32 s56, s5, 3
s_lshl_b32 s57, s4, 2
s_add_u32 s56, s56, s57
s_lshl_b32 s56, s56, 1
s_add_u32 s56, s56, s60
s_lshl_b32 s62, s56, 15
s_lshr_b32 s57, s5, 2
s_lshl_b32 s57, s57, 7
s_add_u32 s62, s62, s57
s_lshl_b32 s57, s61, 6
s_add_u32 s62, s62, s57""")
    for q in range(4):
        A(f"buffer_load_dwordx2 v[{24+2*q}:{25+2*q}], v14, s[36:39], s62 offen offset:{16*q}")
    A.lds_wait("v15", F_KR, 2, "lg", 0)
    A.stamp(8)
    KB = (64, 128); UB = (96, 160)
    def reads(buf, cc):
        L = []
        for a in range(8):
            off = 128 * (1 - (a & 1)) + 16 * (3 - cc)
            for h in range(2):
                L.append(f"ds_read2_b32 v[{KB[buf]+4*a+2*h}:{KB[buf]+4*a+2*h+1}], v{4+a//2} offset0:{off+2*h} offset1:{off+2*h+1}")
            L.append(f"ds_read_b128 v[{UB[buf]+4*a}:{UB[buf]+4*a+3}], v8 offset:{512*a+64*(3-cc)}")
        return L
    def mm(buf, fill, first):
        fill = list(fill)
        for a in range(8):
            for p in range(8 - a):
                q = D + 4 * (a + p)
                c = "0" if (first and a == 0) else f"v[{q}:{q+3}]"
                A(f"v_mfma_f32_16x16x32_bf16 v[{q}:{q+3}], v[{KB[buf]+4*a}:{KB[buf]+4*a+3}], v[{UB[buf]+4*p}:{UB[buf]+4*p+3}], {c}")
                if fill: A(fill.pop(0))
        assert not fill
    for x in reads(0, 0): A(x)
    for cc in range(4):
        A("s_waitcnt lgkmcnt(0)")
        if cc == 3:
            A(f"v_mov_b32 v12, 1\nds_write_b32 v13, v12 offset:{F_CA}")
        mm(cc % 2, reads((cc + 1) % 2, cc + 1) if cc < 3 else [], cc == 0)
        if cc == o.hflag_at: h_flags(A)
    A.stamp(9)
    A(f"""s_xor_b32 s59, s3, 1
s_lshl_b32 s59, s59, 2
v_add_u32 v9, s59, v15
v_lshlrev_b32 v5, 4, v0
s_lshl_b32 s59, s60, 12
s_add_u32 s59, s59, s58
v_add_u32 v6, s59, v5
v_xor_b32 v7, 4096, v5
s_lshl_b32 s59, s60, 12
v_xor_b32 v7, s59, v7
v_add_u32 v7, s58, v7""")
    A.lds_wait("v9", F_CA, 1, "lg", 0)
    A("s_cmp_eq_u32 s60, 0\ns_cbranch_scc1 L_cx0")
    for q in range(4): A(f"ds_write_b128 v6, v[{32+4*q}:{35+4*q}] offset:{q*1024}")
    for r in range(16): A(f"v_mov_b32 v{32+r}, v{48+r}")
    A("s_branch L_cx1\nL_cx0:")
    for q in range(4): A(f"ds_write_b128 v6, v[{48+4*q}:{51+4*q}] offset:{q*1024}")
    A(f"""L_cx1:
s_waitcnt lgkmcnt(0)
ds_write_b32 v13, v12 offset:{F_CB}
s_lshl_b32 s56, s53, 1
s_add_u32 s56, s56, s61
s_lshl_b32 s57, s56, 12
s_lshl_b32 s59, s60, 11
s_add_u32 s57, s57, s59
s_add_u32 s57, s57, {WS_ST}
v_lshlrev_b32 v2, 5, v10
v_lshl_add_u32 v2, v11, 3, v2""")
    A.lds_wait("v9", F_CB, 1, "lg", 0)
    for q in range(4): A(f"ds_read_b128 v[{48+4*q}:{51+4*q}], v7 offset:{q*1024}")
    for q in range(4):
        A(f"s_waitcnt lgkmcnt({3-q})")
        for p in range(2):
            a = 32 + 4*q + 2*p
            A(f"v_pk_add_f32 v[{a}:{a+1}], v[{a}:{a+1}], v[{a+16}:{a+17}]")
        A(f"v_cvt_pk_bf16_f32 v{240+2*q}, v{32+4*q}, v{33+4*q}\nv_cvt_pk_bf16_f32 v{241+2*q}, v{34+4*q}, v{35+4*q}")
        A(f"buffer_store_dwordx2 v[{240+2*q}:{241+2*q}], v2, s[40:43], s57 offen offset:{512*q} sc1")
    A(f"""s_lshl_b32 s54, s56, 1
s_add_u32 s54, s54, s60
s_lshl_b32 s54, s54, 2
s_add_u32 s54, s54, {WS_FS}""")
    A.stamp(10)

NPRE = 13
WR = 64
HR = 168; NH = 18
WF = 240
def gemm2(A):
    o = A.o
    A.srd(44, 30, 2097152)
    A(f"""s_and_b32 s56, s5, 3
s_lshl_b32 s57, s4, 2
s_add_u32 s56, s56, s57
s_lshr_b32 s57, s5, 2
v_and_b32 v10, 31, v0
v_lshrrev_b32 v11, 5, v0
v_bfe_u32 v18, v0, 2, 2
v_lshl_add_u32 v18, v11, 3, v18
v_lshlrev_b32 v2, 7, v18
v_bfe_u32 v18, v0, 3, 1
v_lshl_add_u32 v2, v18, 6, v2
v_bfe_u32 v18, v0, 4, 1
v_lshl_add_u32 v2, v18, 5, v2
v_and_b32 v18, 3, v0
v_lshl_add_u32 v2, v18, 3, v2
s_mul_i32 s59, s61, 20480
v_add_u32 v2, s59, v2
v_xor_b32 v3, 64, v2
v_add_u32 v6, {2*SLOT}, v2
v_add_u32 v7, {2*SLOT}, v3
s_lshl_b32 s59, s61, 2
v_add_u32 v4, s59, v15""")
    def wrd(i, b):
        c, ii = i // 10, i % 10
        sl = (8 + c) % 3
        L = []
        for nt in range(2):
            for t in range(2):
                ad = (6 + nt) if sl == 2 else (2 + nt)
                off = ii * 2048 + t * 512 + (SLOT if sl == 1 else 0)
                L.append(f"ds_read_b64_tr_b16 v[{b+4*nt+2*t}:{b+4*nt+2*t+1}], v{ad} offset:{off}")
        return L
    A.lds_wait("v4", F_FULL, 1, "gt", 9)
    for i in range(NPRE):
        for x in wrd(i, WR + 8 * i): A(x)
    A(f"""s_lshl_b32 s58, s56, 1
s_add_u32 s58, s58, s60
v_min_u32 v18, 28, v10
v_lshlrev_b32 v18, 2, v18
v_add_u32 v19, {WS_FHG-WS_FHL}, v18
s_lshl_b32 s59, s56, 7
s_add_u32 s59, s59, {WS_FHL}
s_mul_i32 s63, s58, {86*1024}
s_mul_i32 s64, s61, {43*1024}
s_add_u32 s63, s63, s64
s_add_u32 s63, s63, {WS_H}
v_mov_b32 v16, 10
s_waitcnt lgkmcnt(0)
ds_write_b32 v13, v16 offset:{F_FREE}
v_mov_b32 v16, s52
v_mov_b32 v17, 0
s_waitcnt vmcnt(0)
s_mov_b64 exec, 1
buffer_store_dword v16, v17, s[40:43], s54 offen sc1
s_mov_b64 exec, -1""")
    rot2(A, 64, 65)
    A.stamp(11)
    A.flag_wait("v18", "v19", "s59", 64, sleep=o.hsleep)
    A.stamp(12)
    def hld(i):
        r = HR + 4 * (i % NH)
        A(f"""s_lshl_b32 s65, s64, 10
s_add_u32 s65, s65, s63
s_add_u32 s64, s64, 1
buffer_load_dwordx4 v[{r}:{r+3}], v5, s[40:43], s65 offen{o.hld}
s_cmp_eq_u32 s64, 43
s_cselect_b32 s64, 0, s64""")
    AHEAD = o.ahead
    assert AHEAD < NH
    for i in range(AHEAD): hld(i)
    for i in range(43):
        nxt = i + 1
        lg = ""
        if NPRE <= nxt < 43:
            if nxt % 10 == 0:
                if i >= NPRE: pass
                A.lds_wait("v4", F_FULL, 1, "gt", 8 + nxt // 10)
            for x in wrd(nxt, WF + 8 * (nxt % 2)): A(x)
            lg = " lgkmcnt(4)"
        elif nxt == 43: lg = " lgkmcnt(0)"
        if i + AHEAD < 43: hld(i + AHEAD)
        out = min(43, i + AHEAD + 1) - (i + 1)
        A(f"s_waitcnt vmcnt({out}){lg}")
        b = WR + 8 * i if i < NPRE else WF + 8 * (i % 2)
        r = HR + 4 * (i % NH)
        for nt in range(2):
            c = "0" if i == 0 else f"v[{32+16*nt}:{47+16*nt}]"
            A(f"v_mfma_f32_32x32x16_bf16 v[{32+16*nt}:{47+16*nt}], v[{b+4*nt}:{b+4*nt+3}], v[{r}:{r+3}], {c}")
    A.stamp(13)
    A(f"""v_lshlrev_b32 v18, 3, v10
s_lshl_b32 s58, s57, 1
s_add_u32 s58, s58, s61
s_lshl_b32 s59, s58, 8
s_lshr_b32 s63, s56, 4
s_lshl_b32 s63, s63, 2
s_add_u32 s59, s59, s63
s_add_u32 s59, s59, {WS_FS}
buffer_load_dword v20, v18, s[40:43], s59 offen sc1""")
    A(f"""s_mul_i32 s63, s61, {CONV_SZ}
s_lshl_b32 s64, s60, 12
s_add_u32 s64, s64, {L_CONV+8192}
s_add_u32 s63, s63, s64
v_add_u32 v6, s63, v5
s_xor_b32 s63, s61, 1
s_mul_i32 s63, s63, {CONV_SZ}
s_add_u32 s63, s63, s64
v_add_u32 v7, s63, v5
s_xor_b32 s63, s3, 2
s_lshl_b32 s63, s63, 2
v_add_u32 v8, s63, v15
v_mov_b32 v9, 1
s_cmp_eq_u32 s61, 0
s_cbranch_scc1 L_x0""")
    for q in range(4): A(f"ds_write_b128 v6, v[{32+4*q}:{35+4*q}] offset:{q*1024}")
    for r in range(16): A(f"v_mov_b32 v{32+r}, v{48+r}")
    A("s_branch L_x1\nL_x0:")
    for q in range(4): A(f"ds_write_b128 v6, v[{48+4*q}:{51+4*q}] offset:{q*1024}")
    A(f"""L_x1:
s_waitcnt lgkmcnt(0)
ds_write_b32 v13, v9 offset:{F_XR}
v_lshlrev_b32 v19, 14, v11
v_lshl_add_u32 v19, v10, 1, v19
s_lshl_b32 s63, s58, 17
s_lshl_b32 s64, s56, 1
s_add_u32 s64, s64, s60
s_lshl_b32 s64, s64, 6
s_add_u32 s63, s63, s64
s_add_u32 s63, s63, {WS_ST}""")
    for r in range(16): A(f"v_mov_b32 v{64+r}, 0")
    A(f"""L_s_fl:
s_waitcnt vmcnt(0)
v_cmp_ne_u32 vcc, s52, v20
s_cbranch_vccz L_s_fld
buffer_load_dword v20, v18, s[40:43], s59 offen sc1""")
    A.tmo("L_s_fl")
    A("L_s_fld:")
    A.stamp(14)
    for q in range(4):
        for r in range(4):
            A(f"s_add_u32 s64, s63, {(8*q+r)*4096}\nbuffer_load_short_d16_hi v{64+4*q+r}, v19, s[40:43], s64 offen sc1")
    A.lds_wait("v8", F_XR, 1, "lg", 0)
    for q in range(4): A(f"ds_read_b128 v[{48+4*q}:{51+4*q}], v7 offset:{q*1024}")
    A(f"s_mov_b32 s64, {LOG2E ^ 0x80000000}\ns_mov_b32 s65, s64")
    for q in range(4):
        A(f"s_waitcnt lgkmcnt({3-q})")
        for p in range(2):
            a = 32 + 4*q + 2*p
            A(f"v_pk_add_f32 v[{a}:{a+1}], v[{a}:{a+1}], v[{a+16}:{a+17}]")
    for p in range(8): A(f"v_pk_mul_f32 v[{48+2*p}:{49+2*p}], v[{32+2*p}:{33+2*p}], s[64:65]")
    for e in range(16): A(f"v_exp_f32 v{48+e}, v{48+e}")
    for p in range(8): A(f"v_pk_add_f32 v[{48+2*p}:{49+2*p}], v[{48+2*p}:{49+2*p}], 1.0 op_sel_hi:[1,0]")
    for e in range(16): A(f"v_rcp_f32 v{48+e}, v{48+e}")
    for p in range(8):
        A(f"v_lshlrev_b32 v{80+2*p}, 16, v{24+p}\nv_and_b32 v{81+2*p}, 0xffff0000, v{24+p}")
    for p in range(8): A(f"v_pk_mul_f32 v[{32+2*p}:{33+2*p}], v[{32+2*p}:{33+2*p}], v[{48+2*p}:{49+2*p}]")
    A("s_waitcnt vmcnt(0)")
    for p in range(8): A(f"v_pk_fma_f32 v[{32+2*p}:{33+2*p}], v[{32+2*p}:{33+2*p}], v[{64+2*p}:{65+2*p}], v[{80+2*p}:{81+2*p}]")
    for p in range(8): A(f"v_cvt_pk_bf16_f32 v{48+p}, v{32+2*p}, v{33+2*p}")
    for q in range(4):
        A(f"buffer_store_dwordx2 v[{48+2*q}:{49+2*q}], v14, s[44:47], s62 offen offset:{16*q}")
    A.stamp(15)
    if o.probe >= 0:
        A(f"""s_cmp_lg_u32 s2, {o.probewg}
s_cbranch_scc1 L_prd
s_cmp_lg_u32 s3, 2
s_cbranch_scc1 L_prd
s_waitcnt lgkmcnt(0)
s_sub_u32 s64, s{68+2*o.probe}, s68
s_lshl_b32 s64, s64, 3
s_add_u32 s64, s64, 3000
L_pr:
s_memrealtime s[66:67]
s_waitcnt lgkmcnt(0)
s_sub_u32 s66, s66, s68
s_cmp_lt_u32 s66, s64
s_cbranch_scc1 L_pr
L_prd:""")
    if o.padto:
        A(f"""L_pad:
s_memrealtime s[98:99]
s_waitcnt lgkmcnt(0)
s_sub_u32 s98, s98, s100
s_cmp_lt_u32 s98, {o.padto}
s_cbranch_scc1 L_pad""")
    A.put_stamps()
    A("s_endpgm")

def kgen(A):
    o = A.o
    A(f"""L_kgen:
s_sub_u32 s54, s3, 4
s_lshl_b32 s56, s53, 1
s_add_u32 s56, s56, s54
s_lshl_b32 s57, s56, 8
v_lshl_add_u32 v2, v0, 2, s57
s_lshl_b32 s57, s56, 1
v_mov_b32 v3, s57
global_load_dword v4, v2, s[10:11]
global_load_ushort v8, v3, s[18:19]
global_load_dword v5, v2, s[12:13]
global_load_dword v6, v2, s[14:15]
global_load_dword v7, v2, s[16:17]
global_load_ushort v9, v3, s[20:21]
v_mov_b32 v13, 0
buffer_load_dword v14, v13, s[40:43], 0 offen sc1
s_mul_i32 s58, s54, {CONV_SZ}
s_add_u32 s58, s58, {L_CONV}
v_lshl_add_u32 v10, v0, 3, s58
v_and_b32 v11, 31, v0
v_mul_u32_u24 v11, 528, v11
v_lshrrev_b32 v12, 5, v0
v_lshl_add_u32 v11, v12, 4, v11
v_add_u32 v11, s58, v11
s_mov_b32 s59, {LOG2E}
s_mov_b32 s60, 0x3e22f983
s_waitcnt vmcnt(5)""")
    A.stamp(2)
    if o.kprio: A(f"s_setprio {o.kprio}")
    A("""v_lshlrev_b32 v16, 16, v4
v_and_b32 v17, 0xffff0000, v4
v_lshlrev_b32 v8, 16, v8
v_mul_f32 v16, s59, v16
v_mul_f32 v17, s59, v17
v_mul_f32 v8, s59, v8
v_exp_f32 v16, v16
v_exp_f32 v17, v17
v_exp_f32 v8, v8
v_cvt_pk_bf16_f32 v16, v16, v17
v_cvt_pk_bf16_f32 v8, v8, v8
v_and_b32 v17, 0xffff0000, v16
v_lshlrev_b32 v16, 16, v16
v_and_b32 v8, 0xffff0000, v8
v_mul_f32 v16, v16, v8
v_mul_f32 v17, v17, v8
v_mul_f32 v16, s59, v16
v_mul_f32 v17, s59, v17
s_waitcnt vmcnt(4)
v_lshlrev_b32 v18, 16, v5
v_and_b32 v19, 0xffff0000, v5
v_mul_f32 v18, v18, v8
v_mul_f32 v19, v19, v8
v_mul_f32 v18, s60, v18
v_mul_f32 v19, s60, v19""")
    for (dst, p) in ((36, 8.0), (32, 1.0), (40, 256.0)):
        pf = struct.unpack("<I", struct.pack("<f", p))[0]
        npf = pf ^ 0x80000000
        for m in range(2): A(f"v_mul_f32 v{20+m}, {hex(npf)}, v{16+m}\nv_mul_f32 v{22+m}, {hex(pf)}, v{18+m}")
        for m in range(2): A(f"v_exp_f32 v{20+m}, v{20+m}\nv_fract_f32 v{22+m}, v{22+m}")
        for m in range(2): A(f"v_cos_f32 v{dst+2*m}, v{22+m}\nv_sin_f32 v{dst+2*m+1}, v{22+m}")
        for m in range(2): A(f"v_mul_f32 v{dst+2*m}, v{dst+2*m}, v{20+m}\nv_mul_f32 v{dst+2*m+1}, v{dst+2*m+1}, v{20+m}")
    A(f"""s_waitcnt vmcnt(0)
v_readfirstlane_b32 s52, v14
s_mul_i32 s52, s52, 0x9E3779B1
s_add_u32 s52, s52, 0x7F4A7C15
v_mov_b32 v21, s52
s_or_b32 s52, s52, 0x10000
v_mov_b32 v20, s52
s_cmp_lg_u32 s54, 0
s_cbranch_scc1 L_k_nn
ds_write_b64 v15, v[20:21] offset:{F_NONCE}
L_k_nn:""")
    def cm2(d, a, z):
        if o.kplain:
            for m in range(2): A(f"v_mul_f32 v{24+2*m}, v{a+2*m+1}, v{z+2*m+1}\nv_mul_f32 v{25+2*m}, v{a+2*m+1}, v{z+2*m}")
            for m in range(2): A(f"v_fma_f32 v{d+2*m+1}, v{a+2*m}, v{z+2*m+1}, v{25+2*m}\nv_fma_f32 v{d+2*m}, v{a+2*m}, v{z+2*m}, -v{24+2*m}")
            return
        for m in range(2):
            A(f"v_pk_mul_f32 v[{24+2*m}:{25+2*m}], v[{a+2*m}:{a+2*m+1}], v[{z+2*m}:{z+2*m+1}] op_sel:[0,0] op_sel_hi:[0,1]")
        for m in range(2):
            A(f"v_pk_fma_f32 v[{d+2*m}:{d+2*m+1}], v[{a+2*m}:{a+2*m+1}], v[{z+2*m}:{z+2*m+1}], v[{24+2*m}:{25+2*m}] op_sel:[1,1,0] op_sel_hi:[1,0,1] neg_lo:[1,0,0]")
    pk = [1]
    def put(src, rows, neg):
        t = 28 + 2 * (pk[0] % 2); pk[0] += 1
        n = "-" if neg else ""
        A(f"v_cvt_pk_bf16_f32 v{t}, v{src}, {n}v{src+1}\nv_cvt_pk_bf16_f32 v{t+1}, v{src+2}, {n}v{src+3}")
        for row in rows: A(f"ds_write_b64 v10, v[{t}:{t+1}] offset:{row*528}")
    A("v_mov_b32 v28, 0x3f80\nv_mov_b32 v29, 0x3f80\nds_write_b64 v10, v[28:29]")
    put(36, [1], False)
    cur = 36
    for j in range(2, 32):
        d = 44 + 4 * (j % 2)
        cm2(d, cur, 36); put(d, [j], False); cur = d
    A.stamp(3)
    E = 52
    A(f"""s_waitcnt vmcnt(0)
v_add_f32 v8, v8, v8
v_lshlrev_b32 v{E}, 16, v6
v_lshlrev_b32 v{E+1}, 16, v7
v_and_b32 v{E+2}, 0xffff0000, v6
v_and_b32 v{E+3}, 0xffff0000, v7""")
    for k in range(4): A(f"v_mul_f32 v{E+k}, v{E+k}, v8")
    A("v_lshlrev_b32 v2, 4, v0\ns_waitcnt lgkmcnt(0)")
    RF = 128; LF = 192
    for s in range(16): A(f"ds_read_b128 v[{RF+4*s}:{RF+4*s+3}], v11 offset:{32*s}")
    def row(reg, hf): return 8 * (reg >> 2) + 4 * hf + (reg & 3)
    for i in range(1, 9): cm2(E + 4*i, E + 4*(i-1), 32)
    A("s_waitcnt lgkmcnt(0)")
    for i in range(9): put(E + 4*i, [row(i, 0)], True)
    dup = {0: [0, 1], 2: [2], 4: [3, 4, 5], 6: [6], 8: [7, 8]}
    for i in (0, 2, 4, 6, 8):
        cm2(E + 4*i, E + 4*i, 40); put(E + 4*i, [row(r, 1) for r in dup[i]], True)
    for hf in range(2):
        for n, i in enumerate((0, 4, 8)):
            cm2(E + 4*i, E + 4*i, 40); put(E + 4*i, [row(9 + n, hf)], True)
    for blk in range(4):
        for n, i in enumerate((0, 8)):
            cm2(E + 4*i, E + 4*i, 40); put(E + 4*i, [row(12 + 2*(blk >> 1) + n, blk & 1)], True)
    A("s_waitcnt lgkmcnt(0)")
    for s in range(16): A(f"ds_read_b128 v[{LF+4*s}:{LF+4*s+3}], v11 offset:{32*s}")
    D = 32
    for s in range(16):
        A(f"s_waitcnt lgkmcnt({15-s})")
        c = "0" if s == 0 else f"v[{D}:{D+15}]"
        A(f"v_mfma_f32_32x32x16_bf16 v[{D}:{D+15}], v[{LF+4*s}:{LF+4*s+3}], v[{RF+4*s}:{RF+4*s+3}], {c}")
    A(f"""s_lshl_b32 s57, s54, 2
v_add_u32 v21, s57, v15
v_mov_b32 v22, 1
ds_write_b32 v21, v22 offset:{F_KD}
v_lshlrev_b32 v9, 16, v9
v_cmp_eq_u32 vcc, 0, v0
v_cndmask_b32 v9, 0, v9, vcc
v_sub_u32 v12, {4080-3072}, v2
v_add_u32 v12, s58, v12
v_and_b32 v13, 1, v0
v_cmp_eq_u32 vcc, 1, v13
v_mov_b32 v16, 0
v_mov_b32 v17, 0
v_mov_b32 v18, 0
v_mov_b32 v19, 0
v_add_u32 v14, s58, v2
v_add_f32 v{D}, v{D}, v9""")
    def wr(grp, k):
        t = 48 + 8 * (grp % 2)
        for u in range(4): A(f"v_cvt_pk_bf16_f32 v{t+u}, v{k[7-2*u]}, v{k[6-2*u]}")
        for u in range(4): A(f"v_cvt_pk_bf16_f32 v{t+4+u}, v{k[8-2*u]}, v{k[7-2*u]}")
        A(f"ds_write_b128 v12, v[{t}:{t+3}] offset:{3072-1024*grp}\nds_write_b128 v12, v[{t+4}:{t+7}] offset:{3072-1024*grp+KT_O}")
    wr(0, [D+i for i in range(9)])
    a, b, c = D+9, D+10, D+11
    wr(1, [a, a, a, b, b, b, c, c, c])
    for grp in (2, 3):
        a, b = D + 12 + 2*(grp-2), D + 13 + 2*(grp-2)
        A(f"v_cndmask_b32 v20, v{a}, v{b}, vcc")
        wr(grp, [a, a, a, a, 20, b, b, b, b])
    A(f"""s_mov_b64 exec, 0xf
ds_write_b128 v14, v[16:19] offset:4096
s_mov_b32 exec_lo, -1
ds_write_b128 v14, v[16:19] offset:{U_OFF}
s_mov_b64 exec, 1
v_cvt_pk_bf16_f32 v16, v{D}, 0
s_mov_b64 exec, 0xf
ds_write_b128 v14, v[16:19] offset:{4096+KT_O}
s_mov_b64 exec, -1""")
    A.stamp(4)
    get_nonce(A)
    A(f"""v_lshlrev_b32 v3, 3, v0
s_lshr_b32 s61, s4, 1
s_lshl_b32 s61, s61, 10
s_lshl_b32 s62, s54, 9
s_add_u32 s61, s61, s62
s_add_u32 s61, s61, {WS_FLG}
v_lshrrev_b32 v4, 1, v0
v_lshlrev_b32 v5, 13, v4
v_lshl_add_u32 v5, v13, 4, v5
v_mul_u32_u24 v6, {CONV_SZ}, v13
v_lshl_add_u32 v6, v4, 4, v6
s_lshl_b32 s62, s54, 11
s_add_u32 s62, s62, {L_CONV+U_OFF+512}
v_add_u32 v6, s62, v6
s_lshl_b32 s62, s54, 20
s_lshl_b32 s63, s53, 5
s_add_u32 s62, s62, s63
s_add_u32 s62, s62, {WS_XNT}""")
    if o.uat: A.lds_wait("v15", F_FULL, 2, "ge", o.uat, sleep=4)
    A(f"""L_k_fl:
buffer_load_dwordx2 v[16:17], v3, s[40:43], s61 offen sc1
s_waitcnt vmcnt(0)
v_xor_b32 v16, s52, v16
v_xor_b32 v17, s52, v17
v_or_b32 v16, v16, v17
v_cmp_ne_u32 vcc, 0, v16
s_cbranch_vccz L_k_fld
s_sleep 16""")
    A.tmo("L_k_fl")
    A("L_k_fld:")
    A.stamp(5)
    for k in range(4):
        A(f"s_add_u32 s63, s62, {k*32*8192}\nbuffer_load_dwordx4 v[{96+4*k}:{99+4*k}], v5, s[40:43], s63 offen sc1")
    A.lds_wait("v15", F_KD, 2, "lg", 0)
    for k in range(4):
        A(f"s_waitcnt vmcnt({3-k})\nds_write_b128 v6, v[{96+4*k}:{99+4*k}] offset:{k*512}")
    A(f"""s_waitcnt lgkmcnt(0)
ds_write_b32 v21, v22 offset:{F_KR}""")
    A.stamp(6)
    A(f"""s_cmp_lg_u32 s56, 0
s_cbranch_scc1 L_k_nb""")
    A.lds_wait("v15", F_KR, 2, "lg", 0)
    A(f"""ds_read_b32 v4, v15 offset:{F_NONCE+4}
v_mov_b32 v5, 0
s_waitcnt lgkmcnt(0)
s_mov_b64 exec, 1
buffer_store_dword v4, v5, s[40:43], 0 offen sc1
s_mov_b64 exec, -1
L_k_nb:
s_waitcnt lgkmcnt(0)""")
    A.put_stamps()
    A("s_endpgm")

HEADER = open("recurrent_scan__ssm_conv_s4d__swiglu_ffn__prompt.s.ref").read().split("; Override launch")[0]

def build(o):
    A = G(o)
    prologue(A)
    gemm(A)
    kgen(A)
    loader(A)
    A("L_exit:\ns_endpgm\nL_codeend:")
    lines, probs = hz.fix(A.L, o.verbose)
    for p in probs: print("HAZARD at branch:", p, file=sys.stderr)
    txt = HEADER + f"; @launch grid=(256,1,1) block=(512,1,1) lds={LDS_BYTES}\n"
    txt += f'.amdgcn_target "amdgcn-amd-amdhsa--gfx950"\n.text\n.globl {KN}\n.p2align 8\n.type {KN},@function\n{KN}:\n'
    txt += "\n".join(lines) + "\n"
    txt += f""".section .rodata,"a"
.p2align 6
.amdhsa_kernel {KN}
  .amdhsa_next_free_vgpr 256
  .amdhsa_next_free_sgpr 102
  .amdhsa_accum_offset 256
  .amdhsa_group_segment_fixed_size 0
  .amdhsa_kernarg_size 112
  .amdhsa_user_sgpr_count 2
  .amdhsa_user_sgpr_kernarg_segment_ptr 1
  .amdhsa_system_sgpr_workgroup_id_x 1
  .amdhsa_float_denorm_mode_32 3
.end_amdhsa_kernel
"""
    return txt

def parser():
    ap = argparse.ArgumentParser()
    ap.add_argument("-o", default="recurrent_scan__ssm_conv_s4d__swiglu_ffn__prompt.s")
    ap.add_argument("--stamps", action="store_true")
    ap.add_argument("--verbose", action="store_true")
    ap.add_argument("--cyc", action="store_true")
    ap.add_argument("--stg", action="store_true")
    ap.add_argument("--probe", type=int, default=-1)
    ap.add_argument("--probewg", type=int, default=100)
    ap.add_argument("--noload", action="store_true")
    ap.add_argument("--oob", action="store_true")
    ap.add_argument("--nomm", action="store_true")
    ap.add_argument("--nord", action="store_true")
    ap.add_argument("--ldprio", type=int, default=0)
    ap.add_argument("--kplain", type=int, default=0)
    ap.add_argument("--kprio", type=int, default=0)
    ap.add_argument("--padto", type=int, default=0)
    ap.add_argument("--tmo", type=int, default=200000)
    ap.add_argument("--codepf", type=int, default=1)
    ap.add_argument("--ra", type=int, default=4)
    ap.add_argument("--rb", type=int, default=1)
    ap.add_argument("--rc", type=int, default=1)
    ap.add_argument("--rm", type=int, default=7)
    ap.add_argument("--ldorder", type=int, default=0)
    ap.add_argument("--flagat", type=int, default=17)
    ap.add_argument("--j1", type=int, default=1)
    ap.add_argument("--j2", type=int, default=3)
    ap.add_argument("--j3", type=int, default=6)
    ap.add_argument("--j4", type=int, default=7)
    ap.add_argument("--rot2", type=int, default=1)
    ap.add_argument("--sigat", type=int, default=10)
    ap.add_argument("--sig7", type=int, default=1)
    ap.add_argument("--wpre", type=int, default=2)
    ap.add_argument("--lddelay", type=int, default=0)
    ap.add_argument("--lnsleep", type=int, default=2)
    ap.add_argument("--hsleep", type=int, default=2)
    ap.add_argument("--uat", type=int, default=7)
    ap.add_argument("--hflag_at", type=int, default=1)
    ap.add_argument("--ahead", type=int, default=12)
    ap.add_argument("--hld", default=" sc1")
    ap.add_argument("--xld", default=" sc1")
    return ap

if __name__ == "__main__":
    o = parser().parse_args()
    o.jobs = (1 << o.j1) | (1 << o.j2) | (1 << o.j3) | (1 << o.j4)
    open(o.o, "w").write(build(o))
```

```python
import sys, argparse, struct
sys.path.insert(0, "gen")
import hz

KN = "recurrent_scan__ssm_conv_s4d__swiglu_ffn__prompt_kernel"
WS_EPOCH = 0x0
WS_FLG   = 0x2000
WS_FHL   = 0x3000
WS_FHG   = 0x4000
WS_FS    = 0x5000
WS_STATS = 0x8000
WS_CS    = 0xC000
WS_XNT   = 0x200000
WS_ST    = 0x410000
WS_H     = 0x610000
WS_STAMP = 0x1000000
WS_BYTES = 268435456
SLOT = 40960
L_CONV = 3 * SLOT
KROW = 272
CONV_SZ = 2 * 32 * KROW
L_FLAGS = L_CONV + 2 * CONV_SZ
L_EPI = L_FLAGS + 256
L_TRACE = L_EPI + 512 + 768
LDS_BYTES = L_TRACE
F_FULL, F_FREE, F_NONCE, F_LN, F_KD, F_KR, F_CA, F_CB, F_SS, F_BD, F_EP, F_KP, F_PR, F_PG, F_PD = 0, 16, 32, 48, 64, 72, 80, 96, 112, 128, 136, 144, 160, 176, 192
KT_O, U_OFF, S_OFF = 4160, 8320, 12928
WBYTES = 512 * 1376 * 2
LOG2E = 0x3FB8AA3B

class G:
    def __init__(self, o):
        self.o = o; self.L = []; self.n = 0
    def __call__(self, s):
        for l in s.strip("\n").split("\n"):
            l = l.strip()
            if not l: continue
            self.L.append(l if l.endswith(":") or l.startswith(".") else "    " + l)
    def lab(self, p="L"):
        self.n += 1; return f"{p}{self.n}"
    def srd(self, d, b, nbytes):
        self(f"s_mov_b32 s{d}, s{b}\ns_and_b32 s{d+1}, s{b+1}, 0xffff\ns_mov_b32 s{d+2}, {nbytes}\ns_mov_b32 s{d+3}, 0x00020000")
    def stamp(self, i, force=False):
        if self.o.stg and i >= 8 and not force: return
        if self.o.stamps: self(f"{'s_memtime' if self.o.cyc else 's_memrealtime'} s[{68+2*i}:{69+2*i}]")
    def put_stamps(self):
        if not self.o.stamps or self.o.probe >= 0: return
        self(f"""s_waitcnt vmcnt(0) lgkmcnt(0)
s_lshl_b32 s64, s2, 3
s_add_u32 s64, s64, s3
s_lshl_b32 s64, s64, 7
s_add_u32 s64, s64, {WS_STAMP}
s_mov_b64 exec, 1
v_mov_b32 v2, 0""")
        for i in range(16):
            self(f"v_mov_b32 v4, s{68+2*i}\nv_mov_b32 v5, s{69+2*i}\nbuffer_store_dwordx2 v[4:5], v2, s[40:43], s64 offen offset:{8*i}\ns_nop 1")
        self("s_waitcnt vmcnt(0)")
    def tr_init(self):
        if self.o.trace: self(f"s_lshl_b32 s100, s3, 8\ns_add_u32 s100, s100, {L_TRACE}\nv_mov_b32 v150, s100\nv_lshl_add_u32 v151, v0, 2, v150\nv_mov_b32 v23, 0\nds_write_b32 v151, v23\ns_mov_b32 s99, s100")
    def tr_a(self):
        return ["s_memtime s[100:101]"] if self.o.trace else []
    def tr_b(self, tag):
        return [f"s_lshl_b32 s100, s100, 4", f"s_or_b32 s100, s100, {tag}", "v_mov_b32 v252, s100", "v_mov_b32 v253, s99", "ds_write_b32 v253, v252", "s_add_u32 s99, s99, 4"] if self.o.trace else []
    def trace(self, tag):
        if self.o.trace and tag not in (2, 5, 6, 7, 8):
            for x in self.tr_a() + ["s_waitcnt lgkmcnt(0)"] + self.tr_b(tag): self(x)
    def tr_dump(self):
        if self.o.trace:
            self(f"""s_mov_b64 exec, -1
s_waitcnt lgkmcnt(0)
s_lshl_b32 s100, s3, 8
s_add_u32 s100, s100, {L_TRACE}
v_lshl_add_u32 v254, v0, 2, s100
ds_read_b32 v252, v254
s_lshl_b32 s100, s2, 3
s_add_u32 s100, s100, s3
s_lshl_b32 s100, s100, 8
s_add_u32 s100, s100, {WS_STAMP + 0x100000}
v_lshlrev_b32 v253, 2, v0
s_waitcnt lgkmcnt(0)
buffer_store_dword v252, v253, s[40:43], s100 offen""")
    def tmo(self, back):
        self(f"s_sub_u32 s55, s55, 1\ns_max_i32 s55, s55, 0\ns_cmp_lg_u32 s55, 0\ns_cbranch_scc1 {back}")
    def lds_wait(self, addr, off, n, cmp, val, sleep=0, t=16):
        l = self.lab("Lw")
        rd = {1: f"ds_read_b32 v{t}", 2: f"ds_read_b64 v[{t}:{t+1}]", 4: f"ds_read_b128 v[{t}:{t+3}]"}[n]
        self(f"{l}:\n{rd}, {addr} offset:{off}\ns_waitcnt lgkmcnt(0)")
        if n >= 2: self(f"v_min_u32 v{t}, v{t}, v{t+1}")
        if n == 4: self(f"v_min3_u32 v{t}, v{t}, v{t+2}, v{t+3}")
        self(f"v_readfirstlane_b32 s67, v{t}\ns_cmp_{cmp}_u32 s67, {val}\ns_cbranch_scc1 {l}d")
        if sleep: self(f"s_sleep {sleep}")
        self.tmo(l)
        self(f"{l}d:")
    def lds_wait2(self, addr, off, val, sleep=0, t=16, pre=False, label=None):
        l = label or self.lab("Lv")
        if not pre: self(f"{l}:\nds_read_b32 v{t}, {addr} offset:{off}")
        else: self(f"{l}:")
        self(f"s_waitcnt lgkmcnt(0)\nv_cmp_gt_u32 vcc, {val}, v{t}\ns_cbranch_vccz {l}d")
        if sleep: self(f"s_sleep {sleep}")
        if pre: self(f"ds_read_b32 v{t}, {addr} offset:{off}")
        self.tmo(l)
        self(f"{l}d:")
    def flag_wait(self, vloc, vglob, soff, tries, sleep=0, t=20):
        l = self.lab("Lf")
        self(f"""s_mov_b32 s66, 0
{l}:
buffer_load_dword v{t}, {vloc}, s[40:43], {soff} offen sc1
s_add_u32 s66, s66, 1
s_cmp_le_u32 s66, {tries}
s_cbranch_scc1 {l}a
buffer_load_dword v{t+1}, {vglob}, s[40:43], {soff} offen sc1
s_waitcnt vmcnt(0)
v_cmp_eq_u32 vcc, s52, v{t+1}
v_cndmask_b32 v{t}, v{t}, v{t+1}, vcc
{l}a:
s_waitcnt vmcnt(0)
v_cmp_ne_u32 vcc, s52, v{t}
s_cbranch_vccz {l}d""")
        if sleep: self(f"s_sleep {sleep}")
        self.tmo(l)
        self(f"{l}d:")

MAP = {3: """s_and_b32 s56, s4, 3
s_lshr_b32 s57, s4, 2
s_and_b32 s58, s5, 3
s_lshl_b32 s6, s56, 2
s_add_u32 s6, s6, s58
s_lshr_b32 s7, s5, 2
s_mul_i32 s59, s57, 7
s_add_u32 s7, s7, s59
s_lshr_b32 s60, s58, 1
s_cmp_lg_u32 s60, s57
s_cselect_b32 s60, 7, -1
s_lshl_b32 s56, s56, 1
s_add_u32 s56, s56, s59
s_and_b32 s58, s58, 1
s_add_u32 s56, s56, s58
s_cmp_eq_u32 s7, s60
s_cselect_b32 s7, s56, s7
s_cselect_b32 s32, 1, 0
s_and_b32 s53, s4, 3
s_lshl_b32 s53, s53, 1
s_add_u32 s53, s53, s57
s_lshl_b32 s53, s53, 5
s_add_u32 s53, s53, s5
s_and_b32 s33, s5, 3
s_lshr_b32 s57, s53, 5
s_lshl_b32 s57, s57, 2
s_add_u32 s33, s33, s57""",
2: """s_and_b32 s6, s5, 1
s_lshl_b32 s7, s4, 1
s_add_u32 s6, s6, s7
s_lshr_b32 s7, s5, 1
s_cmp_eq_u32 s7, 15
s_cselect_b32 s7, s6, s7
s_cselect_b32 s32, 1, 0
s_lshl_b32 s53, s4, 5
s_add_u32 s53, s53, s5
s_and_b32 s33, s5, 3
s_lshl_b32 s57, s4, 2
s_add_u32 s33, s33, s57"""}

def prologue(A):
    o = A.o
    A(f"""s_cmp_ge_u32 s2, 256
s_cbranch_scc1 L_exit
s_load_dwordx16 s[8:23], s[0:1], 0
s_load_dwordx8 s[24:31], s[0:1], 64
s_load_dwordx2 s[34:35], s[0:1], 104""")
    A.stamp(0)
    A(f"""v_lshrrev_b32 v1, 6, v0
v_and_b32 v0, 63, v0
s_and_b32 s4, s2, 7
v_readfirstlane_b32 s3, v1
s_lshr_b32 s5, s2, 3
{MAP[o.map]}
s_mov_b32 s55, {o.tmo}
v_mov_b32 v15, {L_FLAGS}
s_cmp_lg_u32 s3, 7
s_cbranch_scc1 L_noinit
v_mov_b32 v2, 0
v_lshl_add_u32 v3, v0, 2, v15
ds_write_b32 v3, v2""")
    if o.codepf:
        A(f"""s_getpc_b64 s[56:57]
L_pc:
s_lshl_b32 s58, s5, 10
v_lshl_add_u32 v3, v0, 7, s58
v_min_u32 v3, L_codeend-L_pc-4, v3
s_mov_b64 exec, 0xff
global_load_dword v255, v3, s[56:57]""")
    A(f"""s_mov_b64 exec, -1
s_waitcnt lgkmcnt(0)
L_noinit:
s_barrier
s_waitcnt lgkmcnt(0)""")
    A.srd(40, 34, WS_BYTES)
    A.tr_init(); A.trace(0)
    A.stamp(1)
    A(f"""s_cmp_ge_u32 s3, 6
s_cbranch_scc1 L_loader
s_cmp_ge_u32 s3, 4
s_cbranch_scc1 L_kgen""")

def get_nonce(A):
    A.lds_wait("v15", F_NONCE, 1, "lg", 0)
    A("s_mov_b32 s52, s67")

def rot2(A, d, t):
    if A.o.rot2 == 0:
        A(f"s_mov_b32 s{d}, 0"); return
    A(f"""s_and_b32 s{d}, s5, 3
s_mul_i32 s{d}, s{d}, 11
s_lshr_b32 s{t}, s5, 2
s_add_u32 s{t}, s{t}, s4
s_and_b32 s{t}, s{t}, 7
s_mul_i32 s{t}, s{t}, 5
s_add_u32 s{d}, s{d}, s{t}
s_cmp_ge_u32 s{d}, 43
s_cselect_b32 s{t}, 43, 0
s_sub_u32 s{d}, s{d}, s{t}""")

def loader(A):
    o = A.o
    A(f"""L_loader:
s_sub_u32 s54, s3, 6
s_cmp_eq_u32 s54, 1
s_cselect_b32 s24, s26, s24
s_cselect_b32 s25, s27, s25""")
    A.srd(44, 24, WBYTES)
    A.srd(36, 8, 2097152)
    A.srd(20, 28, WBYTES)
    A(f"""v_lshrrev_b32 v3, 2, v0
v_mul_u32_u24 v3, 2752, v3
v_and_b32 v7, 3, v0
v_lshrrev_b32 v1, 5, v0
v_lshlrev_b32 v1, 1, v1
v_xor_b32 v7, v1, v7
v_lshl_add_u32 v7, v7, 4, v3
v_lshrrev_b32 v1, 3, v0
v_lshlrev_b32 v2, 10, v1
v_and_b32 v5, 7, v0
v_lshrrev_b32 v6, 4, v0
s_lshl_b32 s56, s54, 2
v_add_u32 v6, s56, v6
v_and_b32 v6, 7, v6
v_xor_b32 v6, v5, v6
v_lshl_add_u32 v6, v6, 4, v2
v_add_u32 v9, s56, v15
s_lshl_b32 s57, s6, 17
s_lshl_b32 s56, s54, 13
s_add_u32 s57, s57, s56
s_cmp_eq_u32 s32, 1
s_cselect_b32 s57, 0x40000000, s57
s_mul_i32 s58, s7, 192
s_cmp_eq_u32 s7, 15
s_cselect_b32 s58, 0x40000000, s58
s_cmp_eq_u32 s7, 14
s_cselect_b32 s52, 0x40000000, 0
s_lshl_b32 s59, s54, 10
s_mul_i32 s60, s54, 12288
s_add_u32 s60, s60, 16384
s_and_b32 s63, s5, {3 if o.map == 3 else 1}
s_mul_i32 s63, s63, {o.ra}
s_mul_i32 s56, s4, {o.rb}
s_add_u32 s63, s63, s56
s_mul_i32 s56, s7, {o.rc}
s_add_u32 s63, s63, s56
s_and_b32 s63, s63, {o.rm}
s_cmp_eq_u32 s32, 1
s_cselect_b32 s63, {o.irot}, s63
s_mov_b32 s61, 0
s_mov_b32 s62, 0
s_mov_b32 s66, 0
v_and_b32 v11, 3, v0
v_lshl_add_u32 v11, v11, 2, v15
v_mov_b32 v10, 0
v_mov_b32 v16, 0
s_and_b32 s12, s5, {o.krot}
s_mul_i32 s11, s12, {32*2752}
s_lshl_b32 s12, s12, 11
s_lshl_b32 s19, s7, 4
s_add_u32 s19, s19, s6
s_lshl_b32 s19, s19, 1
s_add_u32 s19, s19, s54
v_mul_u32_u24 v14, 480, v0
v_add_u32 v14, s19, v14
v_lshlrev_b32 v14, 7, v14""")
    def warm(a, b):
        A(f"""v_lshlrev_b32 v12, 8, v0
v_add_u32 v12, s2, v12
v_cmp_gt_u32 vcc, {1376*(b-a)}, v12
v_lshlrev_b32 v12, 7, v12
v_cndmask_b32 v12, 2.0, v12, vcc
s_mov_b32 s56, {1376*a*128}
buffer_load_dword v13, v12, s[44:47], s56 offen""")
    warms = {}
    for spec in o.warm.split(","):
        if spec:
            at, a, b = [int(x) for x in spec.split(":")]
            warms[at] = (a, b)
    if 0 in warms: warm(*warms[0])
    if o.wdw == 9:
        A("""s_cmp_eq_u32 s32, 1
s_cbranch_scc1 L_ld_nw9
s_mov_b64 exec, 0x7fffff
buffer_load_dword v13, v14, s[20:23], 0 offen
s_mov_b64 exec, -1
L_ld_nw9:""")
    if o.ldprio: A(f"s_setprio {o.ldprio}")
    if o.lddelay: A(f"s_sleep {o.lddelay}")
    def sig(n, val=None):
        if val is not None: A(f"v_mov_b32 v10, {val}")
        A(f"s_waitcnt vmcnt({n})\nds_write_b32 v9, v10")
    def pre_free():
        A(f"v_add_u32 v10, 1, v10\nds_read_b32 v16, v11 offset:{F_FREE}")
    def wait_free():
        A.lds_wait2("v11", F_FREE, "s66", sleep=1, pre=True)
    def advance():
        A(f"""s_sub_i32 s66, s61, 1
s_max_i32 s66, s66, 0
s_add_u32 s61, s61, 1
s_add_u32 s62, s62, {SLOT}
s_cmp_eq_u32 s62, {3*SLOT}
s_cselect_b32 s62, 0, s62""")
    A(f"""s_cmp_eq_u32 s32, 0
s_cbranch_scc1 L_ld_st
L_lc_st:""")
    wait_free()
    A(f"""s_mul_i32 s50, s63, {64*2752}
s_add_u32 s50, s50, s58
s_add_u32 s51, s50, s52
s_add_u32 s49, s62, s60""")
    for n in range(12):
        kg, jj = n // 3, n % 3
        if n == 8:
            sig(n)
            for at in sorted(warms):
                if at == 0: continue
                l = A.lab("Lwm")
                A(f"s_cmp_lg_u32 s61, {at-1}\ns_cbranch_scc1 {l}")
                warm(*warms[at])
                A(f"{l}:")
        if n == 9: pre_free()
        if n == 11:
            A("s_cmp_lg_u32 s61, 0\ns_cbranch_scc1 L_lc_ns"); gemm2_setup(A); A("L_lc_ns:")
        A(f"s_add_u32 m0, s49, {jj*4096+kg*1024}\ns_add_u32 s56, s{50 if jj == 0 else 51}, {kg*16*2752+jj*64}\nbuffer_load_dwordx4 v7, s[44:47], s56 offen{o.wpol} lds")
    A(f"s_add_u32 s63, s63, {o.idir & 7}\ns_and_b32 s63, s63, 7")
    advance()
    A("s_cmp_lt_u32 s61, 8\ns_cbranch_scc1 L_lc_st")
    A.lds_wait("v15", F_BD, 2, "lg", 0, sleep=1, t=18)
    sig(0)
    A.lds_wait("v15", F_EP, 2, "lg", 0, sleep=1, t=18)
    A("s_branch L_ld_e\nL_ld_st:")
    wait_free()
    A.trace(5)
    A(f"""s_lshl_b32 s64, s63, 7
s_add_u32 s64, s64, s57
s_add_u32 s65, s62, s59
s_mul_i32 s50, s63, {64*2752}
s_add_u32 s50, s50, s58
s_add_u32 s49, s62, s60
s_sub_u32 s8, s50, s11
s_add_u32 s50, s50, s11
s_add_u32 s9, s8, s52
s_add_u32 s51, s50, s52
s_sub_u32 s10, s49, s12
s_add_u32 s49, s49, s12""")
    items = [("x", t) for t in (5, 6, 7)] + [("w", kg, jj) for kg in range(4) for jj in range(3)] + [("x", t) for t in range(5)]
    if o.ldorder == 1: items = items[3:15] + items[:3] + items[15:]
    if o.oob: A("s_mov_b32 s64, 0x40000000\ns_mov_b32 s50, s64\ns_mov_b32 s51, s64")
    for n, it in enumerate(items):
        if n == o.sigat:
            A.trace(6); sig(n); A.trace(7)
            for at in sorted(warms):
                if at == 0: continue
                l = A.lab("Lwm")
                A(f"s_cmp_lg_u32 s61, {at-1}\ns_cbranch_scc1 {l}")
                warm(*warms[at])
                A(f"{l}:")
        if n == o.sigat and 0 < o.wdw < 8:
            A(f"""s_cmp_lg_u32 s61, {o.wdw}
s_cbranch_scc1 L_ld_nw
s_mov_b64 exec, 0x7fffff
buffer_load_dword v13, v14, s[20:23], 0 offen
s_mov_b64 exec, -1
L_ld_nw:""")
        if n == 13:
            A("s_cmp_lg_u32 s61, 0\ns_cbranch_scc1 L_ld_ns"); gemm2_setup(A); A("L_ld_ns:")
        if n == o.preat:
            pre_free()
            for x in A.tr_a(): A(x)
        if n == 2:
            for x in A.tr_b(5): A(x)
        if it == ("x", 0):
            A("s_cmp_lg_u32 s61, 2\ns_cbranch_scc1 L_ld_nb")
            A.lds_wait("v15", F_BD, 2, "lg", 0, sleep=1, t=18)
            A("L_ld_nb:")
        if o.noload: continue
        if it[0] == "x":
            t = it[1]
            A(f"s_add_u32 m0, s65, {t*2048}\ns_add_u32 s56, s64, {t*16384}\nbuffer_load_dwordx4 v6, s[36:39], s56 offen{o.xpol} lds")
        else:
            _, kg, jj = it
            lb, s0, s1 = (49, 50, 51) if kg < 2 else (10, 8, 9)
            A(f"s_add_u32 m0, s{lb}, {jj*4096+kg*1024}\ns_add_u32 s56, s{s0 if jj == 0 else s1}, {kg*16*2752+jj*64}\nbuffer_load_dwordx4 v7, s[44:47], s56 offen{o.wpol} lds")
    A.trace(8)
    A("s_add_u32 s63, s63, 1\ns_and_b32 s63, s63, 7")
    advance()
    if o.stamps:
        A("s_cmp_lg_u32 s61, 1\ns_cbranch_scc1 L_ld_s1"); A.stamp(2); A("L_ld_s1:")
        A("s_cmp_lg_u32 s61, 3\ns_cbranch_scc1 L_ld_s2"); A.stamp(3); A("L_ld_s2:")
    A("s_cmp_lt_u32 s61, 8\ns_cbranch_scc1 L_ld_st")
    A("""L_ld_e:
v_and_b32 v8, 2, v1
v_lshlrev_b32 v8, 1, v8
v_xor_b32 v8, v5, v8
v_lshl_add_u32 v8, v8, 4, v2""")
    A.stamp(4)
    sig(0)
    if o.wdw == 8:
        A("""s_cmp_eq_u32 s32, 1
s_cbranch_scc1 L_ld_nw8
s_mov_b64 exec, 0x7fffff
buffer_load_dword v13, v14, s[20:23], 0 offen
s_mov_b64 exec, -1
L_ld_nw8:""")
    A.trace(9); A.tr_dump()
    A(f"""s_lshr_b32 s57, s5, 2
s_xor_b32 s57, s57, {A.o.cbx}
s_lshl_b32 s57, s57, 7
s_mul_i32 s58, s54, {43*16*1024}
s_add_u32 s57, s57, s58
s_mul_i32 s59, s54, 20480
s_and_b32 s13, s5, 3
s_mul_i32 s13, s13, 5
s_lshr_b32 s13, s13, 1
s_lshl_b32 s13, s13, 11""")
    if o.wdwait: A.lds_wait("v15", F_KR, 2, "lg", 0, sleep=2, t=18)
    A("L_ld_wc:")
    wait_free()
    A("s_add_u32 s65, s62, s59")
    for i in range(10):
        if i == 5: sig(2*i)
        if i == 8: pre_free()
        wd_block(A, i, o.wrot)
    A(f"s_add_u32 s57, s57, {10*16384}")
    advance()
    A("s_cmp_lt_u32 s61, 11\ns_cbranch_scc1 L_ld_wc")
    A.stamp(5)
    A("s_branch L_g2")

def wd_block(A, i, rot=False):
    if rot:
        A(f"""s_add_u32 m0, s65, s13
s_lshl_b32 s56, s13, 3
s_add_u32 s56, s56, s57
buffer_load_dwordx4 v8, s[20:23], s56 offen lds
s_add_u32 m0, m0, 1024
s_add_u32 s56, s56, 8192
s_add_u32 s13, s13, 2048
buffer_load_dwordx4 v8, s[20:23], s56 offen lds
s_cmp_eq_u32 s13, 20480
s_cselect_b32 s13, 0, s13""")
        return
    A(f"""s_add_u32 m0, s65, {i*2048}
s_add_u32 s56, s57, {i*16384}
buffer_load_dwordx4 v8, s[20:23], s56 offen lds
s_add_u32 m0, s65, {i*2048+1024}
s_add_u32 s56, s57, {i*16384+8192}
buffer_load_dwordx4 v8, s[20:23], s56 offen lds""")

BOUNCE = 2 * SLOT
def kpart_loads(A):
    o = A.o
    A(f"""s_and_b32 s60, s3, 1
s_lshr_b32 s61, s3, 1
s_lshl_b32 s56, s53, 1
s_add_u32 s56, s56, s61
s_lshl_b32 s57, s56, 8
s_lshl_b32 s58, s60, 7
s_add_u32 s57, s57, s58
v_lshl_add_u32 v16, v0, 1, s57
s_lshl_b32 s57, s56, 1
v_mov_b32 v17, s57
global_load_short_d16_hi v20, v16, s[10:11]{o.ppol}
global_load_short_d16_hi v21, v17, s[18:19]
global_load_short_d16_hi v22, v16, s[12:13]{o.ppol}
global_load_short_d16_hi v24, v16, s[14:15]{o.ppol}
global_load_short_d16_hi v25, v16, s[16:17]{o.ppol}""")

def kpart(A):
    o = A.o
    A(f"""s_mul_i32 s58, s3, {32*KROW}
s_add_u32 s58, s58, {L_CONV}
v_lshl_add_u32 v16, v0, 2, s58
v_and_b32 v17, 31, v0
v_mul_u32_u24 v17, {KROW}, v17
v_lshrrev_b32 v18, 5, v0
v_lshl_add_u32 v17, v18, 4, v17
v_add_u32 v17, s58, v17
v_lshl_add_u32 v18, v0, 4, s58
s_mov_b32 s59, {LOG2E}
s_mov_b32 s56, 0x3e22f983
s_waitcnt vmcnt(3)""")
    A.stamp(2)
    A("""v_and_b32 v20, 0xffff0000, v20
v_and_b32 v21, 0xffff0000, v21
v_mul_f32 v20, s59, v20
v_mul_f32 v21, s59, v21
v_exp_f32 v20, v20
v_exp_f32 v21, v21
v_cvt_pk_bf16_f32 v20, v20, v21
v_and_b32 v21, 0xffff0000, v20
v_lshlrev_b32 v20, 16, v20
v_mul_f32 v20, v20, v21
v_mul_f32 v20, s59, v20
s_waitcnt vmcnt(2)
v_and_b32 v22, 0xffff0000, v22
v_mul_f32 v22, v22, v21
v_mul_f32 v22, s56, v22""")
    Z1, Z8, Z256, Z2, Z4, Z32 = 128, 130, 132, 134, 136, 138
    zs = ((Z8, 8.0), (Z1, 1.0), (Z256, 256.0))
    for n, (dst, p) in enumerate(zs):
        pf = struct.unpack("<I", struct.pack("<f", p))[0]
        A(f"v_mul_f32 v{26+n}, {hex(pf ^ 0x80000000)}, v20\nv_mul_f32 v{29+n}, {hex(pf)}, v22")
    for n in range(3): A(f"v_exp_f32 v{26+n}, v{26+n}\nv_fract_f32 v{29+n}, v{29+n}")
    for n, (dst, p) in enumerate(zs): A(f"v_cos_f32 v{dst}, v{29+n}\nv_sin_f32 v{dst+1}, v{29+n}")
    for n, (dst, p) in enumerate(zs): A(f"v_mul_f32 v{dst}, v{dst}, v{26+n}\nv_mul_f32 v{dst+1}, v{dst+1}, v{26+n}")
    TM = 140
    PK = 152
    pk = [0]
    def cms(ops):
        for n, (d, a, z) in enumerate(ops):
            A(f"v_pk_mul_f32 v[{TM+2*n}:{TM+2*n+1}], v[{a}:{a+1}], v[{z}:{z+1}] op_sel:[0,0] op_sel_hi:[0,1]")
        for n, (d, a, z) in enumerate(ops):
            A(f"v_pk_fma_f32 v[{d}:{d+1}], v[{a}:{a+1}], v[{z}:{z+1}], v[{TM+2*n}:{TM+2*n+1}] op_sel:[1,1,0] op_sel_hi:[1,0,1] neg_lo:[1,0,0]")
    def puts(items, neg):
        ts = []
        for src, rows in items:
            t = PK + pk[0] % 8; pk[0] += 1; ts.append(t)
            A(f"v_cvt_pk_bf16_f32 v{t}, v{src}, {'-' if neg else ''}v{src+1}")
        for t, (src, rows) in zip(ts, items):
            for r in rows: A(f"ds_write_b32 v16, v{t} offset:{r*KROW}")
    E = 160
    C = 180
    A(f"""s_waitcnt vmcnt(0)
v_add_f32 v21, v21, v21
v_and_b32 v24, 0xffff0000, v24
v_and_b32 v25, 0xffff0000, v25
v_mov_b32 v19, 0x3f80
v_mul_f32 v{E}, v24, v21
v_mul_f32 v{E+1}, v25, v21
ds_write_b32 v16, v19""")
    cms([(C+2, Z8, Z8), (Z2, Z1, Z1), (E+2, E, Z1), (E+16, E, Z8)])
    cms([(C+4, C+2, Z8), (Z32, C+2, C+2), (Z4, Z2, Z2), (E+4, E, Z2), (E+6, E+2, Z2)])
    puts([(Z8, [1]), (C+2, [2]), (C+4, [3]), (Z32, [4])], False)
    cms([(C, Z8, Z32), (C+2, C+2, Z32), (C+4, C+4, Z32), (C+6, Z32, Z32)])
    for j0 in range(5, 32, 4):
        n = min(4, 32 - j0)
        puts([(C+2*c, [j0+c]) for c in range(n)], False)
        n2 = min(4, 32 - j0 - 4)
        if n2 > 0: cms([(C+2*c, C+2*c, Z32) for c in range(n2)])
    cms([(E+8+2*i, E+2*i, Z4) for i in range(4)])
    RF, LF = 192, 224
    A("s_waitcnt lgkmcnt(0)")
    for k in range(8): A(f"ds_read_b128 v[{RF+4*k}:{RF+4*k+3}], v17 offset:{32*k}")
    def row(reg, hf): return 8 * (reg >> 2) + 4 * hf + (reg & 3)
    for i in range(8): A(f"v_cvt_pk_bf16_f32 v{PK+i}, v{E+2*i}, -v{E+2*i+1}")
    A(f"v_cvt_pk_bf16_f32 v19, v{E+16}, -v{E+17}")
    cms([(E+2*i, E+2*i, Z256) for i in (0, 2, 4, 6, 8)])
    A("s_waitcnt lgkmcnt(0)")
    for i in range(8): A(f"ds_write_b32 v16, v{PK+i} offset:{row(i, 0)*KROW}")
    A(f"ds_write_b32 v16, v19 offset:{row(8, 0)*KROW}")
    dup = {0: [0, 1], 2: [2], 4: [3, 4, 5], 6: [6], 8: [7, 8]}
    cms([(Z2, Z256, Z256)] + [(C+2*n, E+2*i, Z256) for n, i in enumerate((0, 4, 8))])
    puts([(E+2*i, [row(r, 1) for r in dup[i]]) for i in (0, 2, 4, 6, 8)], True)
    cms([(E+2*i, E+2*i, Z2) for i in (0, 4, 8)] + [(E+2, C, Z2), (E+6, C+4, Z2)])
    puts([(C+2*n, [row(9+n, 0)]) for n in range(3)], True)
    cms([(C, E, Z2), (C+2, E+16, Z2), (C+4, E+2, Z2), (C+6, E+6, Z2)])
    puts([(E+2*i, [row(9+n, 1)]) for n, i in enumerate((0, 4, 8))] + [(E+2, [row(12, 0)]), (E+6, [row(13, 0)])], True)
    cms([(E, C, Z2), (E+16, C+2, Z2)])
    puts([(C, [row(12, 1)]), (C+2, [row(13, 1)]), (C+4, [row(14, 0)]), (C+6, [row(15, 0)])], True)
    puts([(E, [row(14, 1)]), (E+16, [row(15, 1)])], True)
    A("s_waitcnt lgkmcnt(0)")
    for k in range(8): A(f"ds_read_b128 v[{LF+4*k}:{LF+4*k+3}], v17 offset:{32*k}")
    D = 128
    for k in range(8):
        A(f"s_waitcnt lgkmcnt({7-k})")
        c = "0" if k == 0 else f"v[{D}:{D+15}]"
        A(f"v_mfma_f32_32x32x16_bf16 v[{D}:{D+15}], v[{LF+4*k}:{LF+4*k+3}], v[{RF+4*k}:{RF+4*k+3}], {c}")
    for q in range(4): A(f"ds_write_b128 v18, v[{D+4*q}:{D+4*q+3}] offset:{1024*q}")
    A(f"""v_mov_b32 v12, 1
s_waitcnt lgkmcnt(0)
ds_write_b32 v13, v12 offset:{F_KP}""")
    A.stamp(3)

ACC = 32
def acc(i, jn): return ACC + 4 * (4 * jn + i)
BUF = (128, 168)
R1B, R1A = 208, 224
def g1_reads(buf, ks):
    b = BUF[buf]; L = []
    def w(jn):
        for t in range(2):
            L.append(f"ds_read_b64_tr_b16 v[{b+16+4*jn+2*t}:{b+16+4*jn+2*t+1}], v{4+jn//2} offset:{(jn&1)*12288+ks*2048+t*256}")
    w(0)
    for i in range(4): L.append(f"ds_read_b128 v[{b+4*i}:{b+4*i+3}], v{2+ks} offset:{i*2048}")
    for jn in range(1, 6): w(jn)
    return L
def g1_mm(A, buf, fill, k0=0, k1=24):
    b = BUF[buf]; k = -1
    for jn in range(6):
        for i in range(4):
            k += 1
            if not (k0 <= k < k1): continue
            a = acc(i, jn)
            if not A.o.nomm: A(f"v_mfma_f32_16x16x32_bf16 v[{a}:{a+3}], v[{b+16+4*jn}:{b+16+4*jn+3}], v[{b+4*i}:{b+4*i+3}], v[{a}:{a+3}]")
            for x in fill.get(k, []):
                if A.o.nord and ("_tr_" in x or "b128" in x): continue
                A(x)
def spread(L, start, per):
    d = {}
    for n, x in enumerate(L): d.setdefault(start + n // per, []).append(x)
    return d

def gemm(A):
    o = A.o
    kpart_loads(A)
    A.srd(36, 8, 2097152)
    A("s_lshl_b32 s56, s3, 2\nv_add_u32 v13, s56, v15\nv_mov_b32 v14, 0x3f803f80")
    A(f"""v_and_b32 v10, 15, v0
v_lshrrev_b32 v11, 4, v0
v_lshrrev_b32 v18, 1, v10
v_xor_b32 v18, v11, v18
s_lshl_b32 s56, s60, 6
v_add_u32 v19, s56, v10
v_lshlrev_b32 v19, 7, v19
v_lshl_add_u32 v2, v18, 4, v19
v_xor_b32 v3, 64, v2
v_and_b32 v18, 1, v11
v_lshlrev_b32 v18, 5, v18
v_lshl_add_u32 v18, v11, 9, v18
v_bfe_u32 v19, v0, 2, 2
v_lshl_add_u32 v18, v19, 6, v18
v_and_b32 v19, 3, v0
v_lshl_add_u32 v18, v19, 3, v18
v_add_u32 v18, 16384, v18""")
    for j in range(3):
        A(f"""s_mul_i32 s56, s61, 3
s_add_u32 s56, s56, {j}
s_and_b32 s57, s56, 1
s_lshl_b32 s57, s57, 5
s_lshr_b32 s56, s56, 1
s_lshl_b32 s56, s56, 12
v_xor_b32 v{4+j}, s57, v18
v_add_u32 v{4+j}, s56, v{4+j}""")
    A(f"""s_mov_b32 s62, 0
s_mov_b32 s63, 0
s_mov_b32 s64, {SLOT}
s_mov_b32 s65, {-2*SLOT & 0xffffffff}
s_mov_b32 s49, 0
s_lshl_b32 s56, s60, 8
s_add_u32 s56, s56, {L_EPI}
v_lshl_add_u32 v7, v10, 2, s56
s_mul_i32 s56, s61, 384
s_add_u32 s56, s56, {L_EPI+512}
v_lshl_add_u32 v8, v11, 4, s56
v_and_b32 v9, 1, v0
v_lshl_add_u32 v9, v9, 2, v15
s_mov_b32 s48, 1""")
    for r in range(96): A(f"v_mov_b32 v{ACC+r}, 0")
    kpart(A)
    A(f"""s_lshr_b32 s57, s5, 2
s_xor_b32 s57, s57, {A.o.cbx}
s_lshl_b32 s51, s33, 2
s_add_u32 s51, s51, s3
s_lshl_b32 s51, s51, 14
s_lshl_b32 s58, s57, 7
s_add_u32 s51, s51, s58
v_lshlrev_b32 v31, 10, v10
v_lshl_add_u32 v31, v11, 4, v31
buffer_load_dwordx4 v[248:251], v31, s[36:39], s51 offen
buffer_load_dwordx4 v[252:255], v31, s[36:39], s51 offen offset:64""")
    A("s_cmp_eq_u32 s32, 1\ns_cbranch_scc1 L_cs")
    A.lds_wait2("v9", F_FULL, "s48")
    A.stamp(4)
    for x in g1_reads(0, 0): A(x)
    A(".p2align 3\nL_g1_loop:")
    if o.stg:
        for k in range(8):
            A(f"s_cmp_lg_u32 s62, {k}\ns_cbranch_scc1 L_stg{k}"); A.stamp(8 + k, True); A(f"L_stg{k}:")
    for x in A.tr_a(): A(x)
    A("s_waitcnt lgkmcnt(0)")
    f = spread(g1_reads(1, 1), 0, 1)
    if o.trace:
        for n, x in enumerate(A.tr_b(1)): f[9 + n] += [x]
    f[0] += ["s_add_u32 s62, s62, 1"]
    f[1] += [f"s_add_u32 s63, s63, {SLOT}"]
    f[2] += [f"s_cmp_eq_u32 s63, {3*SLOT}"]
    f[3] += ["s_cselect_b32 s57, s65, s64"]
    f[4] += ["s_cselect_b32 s63, 0, s63"]
    f[6] += ["v_add_u32 v2, s57, v2"]
    f[7] += ["v_add_u32 v3, s57, v3"]
    f[8] += ["v_add_u32 v4, s57, v4"]
    f[12] += ["v_add_u32 v5, s57, v5"]
    f[5] += ["s_add_u32 s48, s62, 1"]
    f[16] = ["v_add_u32 v6, s57, v6"]
    f[17] = [f"ds_read_b32 v16, v9 offset:{F_FULL}", "v_mov_b32 v12, s62"]
    f[22] = ["s_waitcnt lgkmcnt(0)", f"ds_write_b32 v13, v12 offset:{F_FREE}", "v_cmp_gt_u32 vcc, s48, v16"]
    f[23] = ["s_cmp_eq_u32 s62, 8"]
    g1_mm(A, 0, f)
    A(f"""s_cbranch_scc1 L_g1_end
s_cbranch_vccnz L_g1_slow""")
    g1_mm(A, 1, spread(g1_reads(0, 0), 0, 1))
    A("s_branch L_g1_loop\nL_g1_slow:")
    g1_mm(A, 1, {o.sc - 5: [f"ds_read_b32 v16, v9 offset:{F_FULL}"], o.sc - 1: ["s_waitcnt lgkmcnt(0)", "v_cmp_gt_u32 vcc, s48, v16"]}, 0, o.sc)
    A("s_cbranch_vccnz L_g1_slow2")
    rd = g1_reads(0, 0); n2 = 16 - (22 - o.sc)
    f = spread(rd[:2*n2], o.sc, 2); f.update(spread(rd[2*n2:], o.sc + n2, 1))
    g1_mm(A, 1, f, o.sc, 24)
    A("s_branch L_g1_loop\nL_g1_slow2:")
    g1_mm(A, 1, {18: [f"ds_read_b32 v16, v9 offset:{F_FULL}"]}, o.sc, 24)
    A.lds_wait2("v9", F_FULL, "s48", pre=True)
    for x in g1_reads(0, 0): A(x)
    A("s_branch L_g1_loop")
    A(f"""L_cs:
s_cmp_eq_u32 s60, 0
s_cbranch_scc1 L_cs_go
v_mov_b32 v12, 8
ds_write_b32 v13, v12 offset:{F_FREE}
s_branch L_conv
L_cs_go:""")
    for r in range(4): A(f"v_mov_b32 v{128+r}, v14")
    A("L_cs_loop:")
    A.lds_wait("v15", F_FULL, 2, "gt", "s62")
    for ks in range(2):
        for x in g1_reads(ks, ks):
            if "_tr_" in x: A(x)
    A(f"""s_add_u32 s62, s62, 1
s_add_u32 s63, s63, {SLOT}
s_cmp_eq_u32 s63, {3*SLOT}
s_cselect_b32 s57, s65, s64
s_cselect_b32 s63, 0, s63
v_mov_b32 v12, s62
v_add_u32 v4, s57, v4
v_add_u32 v5, s57, v5
v_add_u32 v6, s57, v6
s_waitcnt lgkmcnt(0)
ds_write_b32 v13, v12 offset:{F_FREE}""")
    for ks in range(2):
        for jn in range(6):
            a = ACC + 4 * jn; b = BUF[ks]
            A(f"v_mfma_f32_16x16x32_bf16 v[{a}:{a+3}], v[128:131], v[{b+16+4*jn}:{b+16+4*jn+3}], v[{a}:{a+3}]")
    A("s_cmp_lt_u32 s62, 8\ns_cbranch_scc1 L_cs_loop")
    get_nonce(A)
    A(f"""s_lshl_b32 s56, s4, 4
s_add_u32 s56, s56, s7
s_cmp_eq_u32 s56, {4*16+7 if o.map == 3 else 999}
s_cselect_b32 s56, 15, s7
s_lshl_b32 s56, s56, 1
s_add_u32 s56, s56, s61
s_mul_i32 s56, s56, 768
s_add_u32 s56, s56, {WS_CS}
v_lshlrev_b32 v18, 3, v0
s_mov_b64 exec, 0xffff""")
    for jn in range(6):
        a = ACC + 4 * jn
        A(f"""v_mov_b32 v{a+1}, s52
buffer_store_dwordx2 v[{a}:{a+1}], v18, s[40:43], s56 offen offset:{128*jn} sc1""")
    A(f"""s_mov_b64 exec, -1
s_lshl_b32 s56, s61, 2
v_add_u32 v18, s56, v15
ds_write_b32 v18, v12 offset:{F_EP}""")
    A.stamp(5)
    A("s_branch L_conv")
    CS, ST = 208, 232
    rd = [f"ds_read_b32 v{ST+4*i+3}, v7 offset:{64*i}" for i in range(4)] + [f"ds_read_b128 v[{CS+4*jn}:{CS+4*jn+3}], v8 offset:{64*jn}" for jn in range(6)]
    prep = [f"v_lshlrev_b32 v{ST+4*i+1}, 16, v{ST+4*i+3}" for i in range(4)] + [f"v_rcp_f32 v{ST+4*i}, v{ST+4*i+1}" for i in range(4)]
    prep += [f"v_and_b32 v{ST+4*i+2}, 0xffff0000, v{ST+4*i+3}" for i in range(4)]
    for i in range(4): prep += [f"v_mul_f32 v{ST+4*i+1}, v{ST+4*i+1}, v{ST+4*i+1}", f"v_mul_f32 v{ST+4*i}, s50, v{ST+4*i}"]
    sal = f"""s_lshl_b32 s56, s6, 1
s_add_u32 s56, s56, s60
s_mul_i32 s57, s56, {2*86*1024}
s_mul_i32 s58, s7, 6
s_mul_i32 s59, s61, 3
s_add_u32 s58, s58, s59
s_lshl_b32 s59, s58, 10
s_add_u32 s57, s57, s59
s_add_u32 s57, s57, {WS_H}
s_mov_b32 s50, {LOG2E ^ 0x80000000}""".split("\n")
    A("L_g1_end:")
    f = spread(sal, 0, 2)
    f[0] = [f"ds_read_b32 v16, v9 offset:{F_EP}"] + f[0]
    f[5] = ["v_lshlrev_b32 v2, 4, v0", "s_waitcnt lgkmcnt(0)", "v_cmp_eq_u32 vcc, 0, v16"]
    g1_mm(A, 1, f, 0, 6)
    A("s_cbranch_vccnz L_g1_late")
    f = spread(rd, 6, 2)
    f.update(spread(prep, 14, 2)); f[14] = ["s_waitcnt lgkmcnt(6)"] + f[14]
    g1_mm(A, 1, f, 6, 24)
    A.stamp(5)
    A("s_branch L_g1_epi\nL_g1_late:")
    g1_mm(A, 1, {}, 6, 24)
    A.stamp(5)
    A.lds_wait2("v9", F_EP, 1)
    for x in rd: A(x)
    A("s_waitcnt lgkmcnt(6)")
    for x in prep: A(x)
    A("L_g1_epi:\ns_waitcnt lgkmcnt(0)")
    A.trace(4); A.tr_dump()
    A.stamp(6)
    T = 128
    for j in range(3):
        for ip in range(2):
            d = 192 + 4 * ((2*j+ip) % 3)
            def pr(p):
                i = 2*ip + p//2
                return acc(i, 2*j) + 2*(p % 2), acc(i, 2*j+1) + 2*(p % 2), ST + 4*i, CS + 8*j + 2*(p % 2)
            for p in range(4):
                g_, u_, sc, cs = pr(p)
                A(f"v_pk_fma_f32 v[{g_}:{g_+1}], v[{cs}:{cs+1}], v[{sc+2}:{sc+3}], v[{g_}:{g_+1}] op_sel_hi:[1,0,1]")
            for p in range(4):
                g_, u_, sc, cs = pr(p)
                A(f"v_pk_mul_f32 v[{T+2*p}:{T+2*p+1}], v[{g_}:{g_+1}], v[{sc}:{sc+1}] op_sel_hi:[1,0]")
            for p in range(4):
                g_, u_, sc, cs = pr(p)
                A(f"v_pk_fma_f32 v[{u_}:{u_+1}], v[{cs+4}:{cs+5}], v[{sc+2}:{sc+3}], v[{u_}:{u_+1}] op_sel_hi:[1,0,1]")
            for e in range(8): A(f"v_exp_f32 v{T+e}, v{T+e}")
            for p in range(4):
                g_, u_, sc, cs = pr(p)
                A(f"v_pk_mul_f32 v[{T+8+2*p}:{T+9+2*p}], v[{g_}:{g_+1}], v[{u_}:{u_+1}]")
            for p in range(4):
                g_, u_, sc, cs = pr(p)
                A(f"v_pk_fma_f32 v[{T+2*p}:{T+2*p+1}], v[{T+2*p}:{T+2*p+1}], v[{sc}:{sc+1}], v[{sc}:{sc+1}] op_sel:[0,1,1] op_sel_hi:[1,1,1]")
            for e in range(8): A(f"v_rcp_f32 v{T+e}, v{T+e}")
            for p in range(4): A(f"v_pk_mul_f32 v[{T+8+2*p}:{T+9+2*p}], v[{T+8+2*p}:{T+9+2*p}], v[{T+2*p}:{T+2*p+1}]")
            for p in range(4): A(f"v_cvt_pk_bf16_f32 v{d+p}, v{T+8+2*p}, v{T+9+2*p}")
            l = A.lab("Lhs")
            A(f"""s_add_u32 s59, s58, {j}
s_cmp_ge_u32 s59, 86
v_permlane16_swap_b32 v{d}, v{d+2}
v_permlane16_swap_b32 v{d+1}, v{d+3}
s_cbranch_scc1 {l}
s_add_u32 s59, s57, {ip*86*1024+j*1024}
buffer_store_dwordx4 v[{d}:{d+3}], v2, s[40:43], s59 offen sc1
{l}:""")
    A(f"""s_lshl_b32 s54, s56, 5
s_lshl_b32 s58, s7, 1
s_add_u32 s54, s54, s58
s_add_u32 s54, s54, s61
s_lshl_b32 s54, s54, 2
s_add_u32 s54, s54, {WS_FHL}""")
    A.stamp(7)
    conv(A)
    final(A)

def h_flags(A):
    l = A.lab("Lhf")
    A(f"""s_cmp_eq_u32 s32, 1
s_cbranch_scc1 {l}
v_mov_b32 v18, s52
v_mov_b32 v19, 0
s_waitcnt vmcnt(0)
s_mov_b64 exec, 1
buffer_store_dword v18, v19, s[40:43], s54 offen
s_add_u32 s54, s54, {WS_FHG-WS_FHL}
{"" if A.o.nohg else "buffer_store_dword v18, v19, s[40:43], s54 offen sc1"}
s_mov_b64 exec, -1
{l}:""")

def conv(A):
    o = A.o
    D = 32
    A(f"""L_conv:
s_mul_i32 s58, s61, {CONV_SZ}
s_add_u32 s58, s58, {L_CONV}
s_lshl_b32 s59, s60, 8
s_sub_u32 s59, s58, s59
v_and_b32 v10, 15, v0
v_lshrrev_b32 v11, 4, v0
v_and_b32 v18, 1, v0
v_cmp_eq_u32 vcc, 1, v18
v_sub_u32 v18, 2032, v10
v_lshrrev_b32 v18, 1, v18
v_lshl_add_u32 v18, v11, 2, v18
v_lshlrev_b32 v18, 2, v18
v_mov_b32 v19, {KT_O}
v_cndmask_b32 v19, v19, 0, vcc
v_add3_u32 v18, v18, v19, s59""")
    for p in range(4): A(f"v_subrev_u32 v{4+p}, {4*(128*(2*p+1)+48)}, v18")
    A(f"""v_lshlrev_b32 v8, 5, v10
v_lshl_add_u32 v8, v11, 4, v8
v_add_u32 v8, s59, v8
v_add_u32 v8, {U_OFF+512-32-192}, v8""")
    get_nonce(A)
    A.lds_wait("v15", F_KR, 2, "lg", 0)
    A.stamp(8)
    KB = (64, 128); UB = (96, 160)
    def reads(buf, cc):
        L = []
        for a in range(8):
            off = 128 * (1 - (a & 1)) + 16 * (3 - cc)
            for h in range(2):
                L.append(f"ds_read2_b32 v[{KB[buf]+4*a+2*h}:{KB[buf]+4*a+2*h+1}], v{4+a//2} offset0:{off+2*h} offset1:{off+2*h+1}")
            L.append(f"ds_read_b128 v[{UB[buf]+4*a}:{UB[buf]+4*a+3}], v8 offset:{512*a+64*(3-cc)}")
        return L
    cnt = [0]
    def mm(buf, fill, first):
        fill = list(fill)
        for a in range(8):
            for p in range(8 - a):
                q = D + 4 * (a + p)
                c = "0" if (first and a == 0) else f"v[{q}:{q+3}]"
                A(f"v_mfma_f32_16x16x32_bf16 v[{q}:{q+3}], v[{KB[buf]+4*a}:{KB[buf]+4*a+3}], v[{UB[buf]+4*p}:{UB[buf]+4*p+3}], {c}")
                if fill: A(fill.pop(0))
                cnt[0] += 1
                if cnt[0] == o.hflag_at: h_flags(A)
        assert not fill
    xsetup = f"""s_xor_b32 s59, s3, 1
s_lshl_b32 s59, s59, 2
v_add_u32 v9, s59, v15
v_lshlrev_b32 v5, 4, v0
s_lshl_b32 s59, s60, 12
s_add_u32 s59, s59, s58
v_add_u32 v6, s59, v5
v_xor_b32 v7, 4096, v5
s_lshl_b32 s59, s60, 12
v_xor_b32 v7, s59, v7
v_add_u32 v7, s58, v7
s_lshl_b32 s56, s53, 1
s_add_u32 s56, s56, s61
s_lshl_b32 s57, s56, 12
s_lshl_b32 s59, s60, 11
s_add_u32 s57, s57, s59
s_add_u32 s57, s57, {WS_ST}
v_and_b32 v2, 1, v11
v_lshlrev_b32 v2, 9, v2
v_lshl_add_u32 v2, v10, 4, v2
v_lshrrev_b32 v3, 1, v11
v_lshl_add_u32 v2, v3, 8, v2
s_nop 0
s_nop 0
s_nop 0
s_nop 0
s_nop 0
s_nop 0
s_nop 0
ds_read_b32 v16, v9 offset:{F_CA}""".split("\n")
    xsetup = [x if x != "s_nop 0" else "" for x in xsetup]
    for x in reads(0, 0): A(x)
    for cc in range(4):
        A("s_waitcnt lgkmcnt(0)")
        if cc == 3:
            A(f"v_mov_b32 v12, 1\nds_write_b32 v13, v12 offset:{F_CA}")
        mm(cc % 2, reads((cc + 1) % 2, cc + 1) if cc < 3 else xsetup, cc == 0)
    A.stamp(9)
    A.lds_wait2("v9", F_CA, 1, pre=True)
    A("s_nop 1")
    A("s_cmp_eq_u32 s60, 0\ns_cbranch_scc1 L_cx0")
    for q in range(4): A(f"ds_write_b128 v6, v[{32+4*q}:{35+4*q}] offset:{q*1024}")
    for r in range(16): A(f"v_mov_b32 v{32+r}, v{48+r}")
    A("s_branch L_cx1\nL_cx0:")
    for q in range(4): A(f"ds_write_b128 v6, v[{48+4*q}:{51+4*q}] offset:{q*1024}")
    A(f"""L_cx1:
s_waitcnt lgkmcnt(0)
ds_write_b32 v13, v12 offset:{F_CB}""")
    A.lds_wait2("v9", F_CB, 1)
    for q in range(4): A(f"ds_read_b128 v[{48+4*q}:{51+4*q}], v7 offset:{q*1024}")
    for q in range(4):
        A(f"s_waitcnt lgkmcnt({3-q})")
        for p in range(4):
            a = 32 + 4*q + p
            A(f"v_add_f32 v{a}, v{a}, v{a+16}")
        A(f"v_cvt_pk_bf16_f32 v{240+2*q}, v{32+4*q}, v{33+4*q}\nv_cvt_pk_bf16_f32 v{241+2*q}, v{34+4*q}, v{35+4*q}")
        if q % 2:
            d = 240 + 2*(q-1)
            A(f"v_permlane16_swap_b32 v{d}, v{d+2}\nv_permlane16_swap_b32 v{d+1}, v{d+3}")
            A(f"buffer_store_dwordx4 v[{d}:{d+3}], v2, s[40:43], s57 offen offset:{512*(q-1)} sc1")
    A(f"""s_lshl_b32 s54, s56, 1
s_add_u32 s54, s54, s60
s_lshl_b32 s54, s54, 2
s_add_u32 s54, s54, {WS_FS}""")
    A.stamp(10)

def final(A):
    o = A.o
    A.srd(44, 30, 2097152)
    A(f"""s_lshr_b32 s57, s5, 2
s_xor_b32 s57, s57, {A.o.cbx}
s_lshl_b32 s58, s57, 2
s_add_u32 s58, s58, s3
s_lshl_b32 s59, s58, 7
s_lshr_b32 s63, s33, 4
s_lshl_b32 s63, s63, 2
s_add_u32 s59, s59, s63
s_add_u32 s59, s59, {WS_FS}
v_lshlrev_b32 v18, 3, v10
s_lshl_b32 s63, s58, 16
s_lshr_b32 s64, s33, 2
s_lshl_b32 s64, s64, 9
s_add_u32 s63, s63, s64
s_and_b32 s64, s33, 3
s_lshl_b32 s64, s64, 6
s_add_u32 s63, s63, s64
s_add_u32 s63, s63, {WS_ST}
s_add_u32 s64, s63, 32768
v_lshrrev_b32 v19, 3, v0
v_lshlrev_b32 v19, 12, v19
v_bfe_u32 v3, v0, 1, 2
v_lshl_add_u32 v19, v3, 4, v19
v_and_b32 v3, 1, v0
v_lshl_add_u32 v19, v3, 8, v19
s_mul_i32 s65, s61, {CONV_SZ}
s_lshl_b32 s66, s60, 11
s_add_u32 s65, s65, s66
s_add_u32 s65, s65, {L_CONV+S_OFF}
v_add_u32 v4, s65, v5
v_bfe_u32 v3, v0, 2, 2
v_lshl_add_u32 v3, v11, 3, v3
v_lshlrev_b32 v6, 7, v3
v_and_b32 v3, 3, v0
v_lshl_add_u32 v6, v3, 3, v6
s_lshl_b32 s65, s3, 5
s_add_u32 s65, s65, {L_CONV+S_OFF}
v_add_u32 v6, s65, v6
v_lshl_add_u32 v8, v3, 2, v15
v_lshlrev_b32 v7, 10, v11
v_lshl_add_u32 v7, v10, 4, v7
s_lshl_b32 s65, s61, 13
s_lshl_b32 s66, s60, 8
s_add_u32 s65, s65, s66
s_add_u32 s65, s65, {SLOT}
v_add_u32 v7, s65, v7
v_and_b32 v9, 1, v0
v_lshlrev_b32 v9, 3, v9
s_lshl_b32 s65, s61, 2
v_add3_u32 v9, v9, s65, v15
v_mov_b32 v16, s52
v_mov_b32 v17, 0
s_waitcnt vmcnt(0)
s_mov_b64 exec, 1
buffer_store_dword v16, v17, s[40:43], s54 offen sc1
s_mov_b64 exec, -1""")
    A.stamp(11)
    for p in range(8): A(f"v_lshlrev_b32 v{80+2*p}, 16, v{248+p}\nv_and_b32 v{81+2*p}, 0xffff0000, v{248+p}")
    if o.mark == 99: A.lds_wait2("v8", F_PD, 1, sleep=2)
    elif o.mark: A.lds_wait2("v8", F_PG, 1, sleep=2)
    A(f"""L_s_fl:
buffer_load_dword v20, v18, s[40:43], s59 offen sc1
s_waitcnt vmcnt(0)
v_cmp_ne_u32 vcc, s52, v20
s_cbranch_vccz L_s_fld
s_sleep {o.ssleep}""")
    A.tmo("L_s_fl")
    A("L_s_fld:")
    A.stamp(12)
    A(f"""buffer_load_dwordx4 v[64:67], v19, s[40:43], s63 offen sc1
buffer_load_dwordx4 v[68:71], v19, s[40:43], s64 offen sc1""")
    A(f"""s_waitcnt vmcnt(1)
ds_write_b128 v4, v[64:67]
s_waitcnt vmcnt(0)
ds_write_b128 v4, v[68:71] offset:1024
s_waitcnt lgkmcnt(0)
ds_write_b32 v13, v12 offset:{F_SS}""")
    A.lds_wait2("v8", F_SS, 1)
    for nt in range(2):
        for h in range(2): A(f"ds_read_b64_tr_b16 v[{72+4*nt+2*h}:{73+4*nt+2*h}], v6 offset:{nt*CONV_SZ+h*512}")
    A(f"s_mov_b32 s64, {LOG2E ^ 0x80000000}\ns_mov_b32 s65, s64\ns_waitcnt lgkmcnt(0)")
    for p in range(8): A(f"v_lshlrev_b32 v{96+2*p}, 16, v{72+p}\nv_and_b32 v{97+2*p}, 0xffff0000, v{72+p}")
    A.stamp(13)
    A.lds_wait2("v9", F_PD, 1)
    A.stamp(14)
    for q in range(4):
        for kh in range(2):
            r = 32 + 16*kh + 4*q
            A(f"ds_read_b128 v[{r}:{r+3}], v7 offset:{kh*20480+(q>>1)*4096+(q&1)*512}")
    for q in range(4):
        A(f"s_waitcnt lgkmcnt({6-2*q})")
        for p in range(2):
            a = 32 + 4*q + 2*p
            A(f"v_pk_add_f32 v[{a}:{a+1}], v[{a}:{a+1}], v[{a+16}:{a+17}]")
        for p in range(2):
            a = 32 + 4*q + 2*p
            A(f"v_pk_mul_f32 v[{a+16}:{a+17}], v[{a}:{a+1}], s[64:65]")
        for e in range(4): A(f"v_exp_f32 v{48+4*q+e}, v{48+4*q+e}")
    for nt in range(2):
        for p in range(4*nt, 4*nt+4): A(f"v_pk_add_f32 v[{48+2*p}:{49+2*p}], v[{48+2*p}:{49+2*p}], 1.0 op_sel_hi:[1,0]")
        for p in range(4*nt, 4*nt+4): A(f"v_pk_mul_f32 v[{32+2*p}:{33+2*p}], v[{32+2*p}:{33+2*p}], v[{96+2*p}:{97+2*p}]")
        for e in range(8*nt, 8*nt+8): A(f"v_rcp_f32 v{48+e}, v{48+e}")
        for p in range(4*nt, 4*nt+4): A(f"v_pk_fma_f32 v[{32+2*p}:{33+2*p}], v[{32+2*p}:{33+2*p}], v[{48+2*p}:{49+2*p}], v[{80+2*p}:{81+2*p}]")
        for p in range(4*nt, 4*nt+4): A(f"v_cvt_pk_bf16_f32 v{64+p}, v{32+2*p}, v{33+2*p}")
        A(f"buffer_store_dwordx4 v[{64+4*nt}:{67+4*nt}], v31, s[44:47], s51 offen offset:{64*nt}{o.opol}")
    A.stamp(15)
    if o.probe >= 0:
        A(f"""s_cmp_lg_u32 s2, {o.probewg}
s_cbranch_scc1 L_prd
s_cmp_lg_u32 s3, 2
s_cbranch_scc1 L_prd
s_waitcnt lgkmcnt(0)
s_sub_u32 s64, s{68+2*o.probe}, s68
s_lshl_b32 s64, s64, 3
s_add_u32 s64, s64, 3000
L_pr:
s_memrealtime s[66:67]
s_waitcnt lgkmcnt(0)
s_sub_u32 s66, s66, s68
s_cmp_lt_u32 s66, s64
s_cbranch_scc1 L_pr
L_prd:""")
    A.put_stamps()
    A("s_endpgm")

NPRE = 13
WR = 64
HR = 168; NH = 18
WF = 240
GA = 116
def gemm2_setup(A):
    A(f"""s_and_b32 s16, s3, 1
s_bfe_u32 s17, s3, 0x10001
v_and_b32 v{GA+9}, 31, v0
v_lshrrev_b32 v{GA+1}, 5, v0
v_bfe_u32 v{GA+2}, v0, 2, 2
v_lshl_add_u32 v{GA+2}, v{GA+1}, 3, v{GA+2}
v_lshlrev_b32 v{GA}, 7, v{GA+2}
v_bfe_u32 v{GA+2}, v0, 3, 1
v_lshl_add_u32 v{GA}, v{GA+2}, 6, v{GA}
v_bfe_u32 v{GA+2}, v0, 4, 1
v_lshl_add_u32 v{GA}, v{GA+2}, 5, v{GA}
v_and_b32 v{GA+2}, 3, v0
v_lshl_add_u32 v{GA}, v{GA+2}, 3, v{GA}
s_mul_i32 s18, s17, 20480
v_add_u32 v{GA}, s18, v{GA}
v_xor_b32 v{GA+1}, 64, v{GA}
v_add_u32 v{GA+2}, {2*SLOT}, v{GA}
v_add_u32 v{GA+3}, {2*SLOT}, v{GA+1}
s_lshl_b32 s67, s17, 2
v_add_u32 v{GA+4}, s67, v15
v_lshlrev_b32 v{GA+5}, 4, v0
s_and_b32 s67, s3, 3
s_lshl_b32 s67, s67, 2
v_add_u32 v{GA+6}, s67, v15
v_xor_b32 v{GA+7}, 4, v{GA+6}
s_lshl_b32 s67, s16, 13
s_add_u32 s18, s18, s67
s_add_u32 s18, s18, {SLOT}
v_add_u32 v{GA+8}, s18, v{GA+5}
v_min_u32 v{GA+9}, 28, v{GA+9}
v_lshlrev_b32 v{GA+9}, 2, v{GA+9}
v_add_u32 v{GA+10}, {WS_FHG-WS_FHL}, v{GA+9}
v_and_b32 v{GA+11}, 1, v0
s_lshl_b32 s67, s16, 3
v_lshl_add_u32 v{GA+11}, v{GA+11}, 2, s67
v_add_u32 v{GA+11}, v{GA+11}, v15
v_mov_b32 v114, 1
v_mov_b32 v115, 2
s_lshl_b32 s18, s33, 1
s_add_u32 s18, s18, s16
s_mul_i32 s18, s18, {86*1024}
s_mul_i32 s67, s17, {43*1024}
s_add_u32 s18, s18, s67
s_add_u32 s18, s18, {WS_H}
s_lshl_b32 s17, s33, 7
s_add_u32 s17, s17, {WS_FHL}""")

def gemm2(A):
    o = A.o
    WRL = [32 + 8*i for i in range(10)] + [128 + 8*i for i in range(3)]
    AC = 152; HR = 184; NH = 18; PD = 3
    def wrd(i, b):
        c, ii = i // 10, i % 10
        sl = (8 + c) % 3
        L = []
        for nt in range(2):
            for t in range(2):
                ad = GA + ((2 + nt) if sl == 2 else nt)
                off = ii * 2048 + t * 512 + (SLOT if sl == 1 else 0)
                L.append(f"ds_read_b64_tr_b16 v[{b+4*nt+2*t}:{b+4*nt+2*t+1}], v{ad} offset:{off}")
        return L
    A("L_g2:")
    if o.g2prio: A(f"s_setprio {o.g2prio}")
    A.lds_wait2(f"v{GA+4}", F_FULL, 10, sleep=2)
    for i in range(NPRE):
        for x in wrd(i, WRL[i]): A(x)
    A(f"s_waitcnt lgkmcnt(0)\nds_write_b32 v{GA+6}, v114 offset:{F_PR}")
    A.stamp(8)
    A("s_cmp_lt_u32 s3, 6\ns_cbranch_scc1 L_g2_nl")
    A.lds_wait2(f"v{GA+11}", F_PR, 1, sleep=1)
    A(f"s_add_u32 s65, s59, {2*SLOT}")
    for i in range(10): wd_block(A, i, o.wrot)
    A(f"s_mov_b32 s65, s59\ns_add_u32 s57, s57, {10*16384}")
    for i in range(3): wd_block(A, i)
    get_nonce(A)
    A("v_mov_b32 v10, 13\ns_waitcnt vmcnt(0)\nds_write_b32 v9, v10\nL_g2_nl:")
    A.stamp(9)
    A.flag_wait(f"v{GA+9}", f"v{GA+10}", "s17", 0 if o.map == 3 else 48, sleep=o.hsleep)
    A.stamp(10)
    def hld(i):
        r = HR + 4 * (i % NH)
        L = [f"buffer_load_dwordx4 v[{r}:{r+3}], v{GA+5}, s[40:43], s18 offen offset:{(i%4)*1024}{o.hld}"]
        if i % 4 == 3: L.append("s_add_u32 s18, s18, 4096")
        return L
    AHEAD = o.ahead
    assert AHEAD < NH
    for i in range(AHEAD):
        for x in hld(i): A(x)
    A(f"ds_read_b32 v16, v{GA+4} offset:{F_FULL}\ns_waitcnt vmcnt({AHEAD-1})")
    lds_q = []
    for i in range(43):
        nxt = i + 1
        b = WRL[i % NPRE]
        r = HR + 4 * (i % NH)
        if i + PD == 20: A.lds_wait2(f"v{GA+4}", F_FULL, 13, pre=True); lds_q = []
        w = wrd(i + PD, WRL[(i + PD) % NPRE]) if NPRE <= i + PD < 43 else []
        def mf(nt):
            c = "0" if i == 0 else f"v[{AC+16*nt}:{AC+16*nt+15}]"
            A(f"v_mfma_f32_32x32x16_bf16 v[{AC+16*nt}:{AC+16*nt+15}], v[{b+4*nt}:{b+4*nt+3}], v[{r}:{r+3}], {c}")
        mf(0)
        for x in w[:3]: A(x)
        mf(1)
        for x in w[3:]: A(x)
        lds_q += [i + PD] * len(w)
        if i + AHEAD < 43:
            for x in hld(i + AHEAD): A(x)
        if i == o.mark: A(f"ds_write_b32 v{GA+6}, v114 offset:{F_PG}"); lds_q.append(99)
        if i == 30: A(f"ds_write_b32 v{GA+6}, v115 offset:{F_PG}"); lds_q.append(99)
        if i == 41: A(f"ds_read_b32 v16, v{GA+7} offset:{F_PG}"); lds_q.append(99)
        if nxt < 43:
            out = min(43, i + AHEAD + 1) - (nxt + 1)
            lg = ""
            if nxt in lds_q:
                last = len(lds_q) - 1 - lds_q[::-1].index(nxt)
                lg = f" lgkmcnt({len(lds_q) - 1 - last})"
                lds_q = lds_q[last + 1:]
            A(f"s_waitcnt vmcnt({out}){lg}")
    A.stamp(11)
    A.lds_wait2(f"v{GA+7}", F_PG, 2, pre=True)
    A("s_nop 6")
    for q in range(8): A(f"ds_write_b128 v{GA+8}, v[{AC+4*q}:{AC+4*q+3}] offset:{q*1024}")
    A(f"s_waitcnt lgkmcnt(0)\nds_write_b32 v{GA+6}, v114 offset:{F_PD}\ns_waitcnt lgkmcnt(0)")
    A.stamp(12)
    A.put_stamps()
    A("s_endpgm")

def kgen(A):
    o = A.o
    A("L_kgen:")
    A.srd(36, 8, 2097152)
    A(f"""s_sub_u32 s54, s3, 4
s_lshl_b32 s46, s53, 13
s_lshl_b32 s58, s54, 12
s_add_u32 s46, s46, s58
v_lshlrev_b32 v2, 4, v0""")
    for r in range(4): A(f"buffer_load_dwordx4 v[{128+4*r}:{131+4*r}], v2, s[36:39], s46 offen offset:{1024*r}{o.lnpol}")
    A(f"""s_lshl_b32 s56, s53, 1
s_add_u32 s56, s56, s54
s_lshl_b32 s57, s56, 1
v_mov_b32 v3, s57
global_load_ushort v9, v3, s[20:21]
v_mov_b32 v13, 0
buffer_load_dword v14, v13, s[40:43], 0 offen sc1
s_mul_i32 s58, s54, {CONV_SZ}
s_add_u32 s58, s58, {L_CONV}
v_mov_b32 v24, 0x3f803f80
v_mov_b32 v25, 0x00003f80
v_mov_b32 v26, 0x3f800000
s_mov_b32 s60, 0x3b000000
s_mov_b32 s59, 0x3727c5ac
v_mul_u32_u24 v4, 144, v0
s_lshl_b32 s57, s54, 3
s_add_u32 s57, s57, {BOUNCE}
v_add_u32 v4, s57, v4
v_lshrrev_b32 v5, 3, v0
v_mul_u32_u24 v5, 144, v5
v_and_b32 v6, 7, v0
v_lshl_add_u32 v5, v6, 4, v5
s_mul_i32 s57, s54, {32*144}
s_add_u32 s57, s57, {BOUNCE}
v_add_u32 v5, s57, v5
s_lshl_b32 s57, s54, 2
v_add_u32 v21, s57, v15
v_mov_b32 v22, 1
v_lshlrev_b32 v3, 3, v0
v_lshrrev_b32 v6, 1, v0""")
    gemm2_setup(A)
    for r in range(4):
        A(f"s_waitcnt vmcnt({5-r})")
        if r == 0: A.stamp(2)
        for i in range(4):
            c1 = "0" if i == 0 else f"v{160+r}"; c2 = "0" if i == 0 else f"v{164+r}"
            A(f"v_dot2_f32_bf16 v{160+r}, v{128+4*r+i}, v24, {c1}\nv_dot2_f32_bf16 v{164+r}, v{128+4*r+i}, v{128+4*r+i}, {c2}")
    for b in (160, 161, 164, 165): A(f"v_permlane32_swap_b32 v{b}, v{b+2}")
    for b in (160, 161, 164, 165): A(f"v_add_f32 v{b}, v{b}, v{b+2}")
    for b in (160, 164): A(f"v_permlane16_swap_b32 v{b}, v{b+1}")
    for b in (160, 164): A(f"v_add_f32 v{b}, v{b}, v{b+1}")
    for sh in (8, 4, 2, 1):
        for reg in (160, 164):
            A(f"v_add_f32_dpp v{reg}, v{reg}, v{reg} row_ror:{sh} row_mask:0xf bank_mask:0xf")
    A("""v_mul_f32 v160, s60, v160
v_mul_f32 v164, s60, v164
v_fma_f32 v164, -v160, v160, v164
v_max_f32 v164, 0, v164
v_cvt_pk_bf16_f32 v161, v164, -v160
v_and_b32 v160, 0xffff0000, v161
v_lshlrev_b32 v164, 16, v161
v_add_f32 v164, s59, v164
v_cvt_pk_bf16_f32 v164, v164, v164
v_and_b32 v164, 0xffff0000, v164
v_sqrt_f32 v164, v164""")
    for r in range(4): A(f"v_readlane_b32 s{8+r}, v160, {16*r}")
    A("""v_cvt_pk_bf16_f32 v112, v164, v160
v_lshlrev_b32 v164, 16, v112
v_rcp_f32 v164, v164""")
    N = 168
    for c in range(8):
        for r in range(4):
            A(f"v_dot2_f32_bf16 v{N+4*c+r}, v{128+4*r+c//2}, {'v25' if c % 2 == 0 else 'v26'}, s{8+r}")
        if c == 0:
            for r in range(4): A(f"v_readlane_b32 s{12+r}, v164, {16*r}")
    for c in range(8):
        for h in range(2): A(f"v_pk_mul_f32 v[{N+4*c+2*h}:{N+4*c+2*h+1}], v[{N+4*c+2*h}:{N+4*c+2*h+1}], s[{12+2*h}:{13+2*h}]")
    for c in range(8):
        for h in range(2): A(f"v_cvt_pk_bf16_f32 v{144+2*c+h}, v{N+4*c+2*h}, v{N+4*c+2*h+1}")
        A(f"ds_write_b64 v4, v[{144+2*c}:{145+2*c}] offset:{16*c}")
    A(f"""s_waitcnt vmcnt(0)
v_readfirstlane_b32 s52, v14
s_mul_i32 s52, s52, 0x9E3779B1
s_add_u32 s52, s52, 0x7F4A7C15
v_mov_b32 v17, s52
s_or_b32 s52, s52, 0x10000
v_mov_b32 v16, s52
s_cmp_lg_u32 s54, 0
s_cbranch_scc1 L_k_nn
ds_write_b64 v15, v[16:17] offset:{F_NONCE}
L_k_nn:
s_waitcnt lgkmcnt(0)
ds_write_b32 v21, v22 offset:{F_LN}""")
    A.lds_wait("v15", F_LN, 2, "lg", 0)
    for k in range(4): A(f"ds_read_b128 v[{96+4*k}:{99+4*k}], v5 offset:{k*8*144}")
    get_nonce(A)
    A(f"""ds_write_b32 v21, v22 offset:{F_BD}
v_mov_b32 v113, s52
s_lshr_b32 s47, s46, 7
s_add_u32 s47, s47, {WS_STATS}
s_add_u32 s46, s46, {WS_XNT}""")
    A.stamp(3)
    def ln_stores():
        for k in range(4): A(f"buffer_store_dwordx4 v[{96+4*k}:{99+4*k}], v2, s[40:43], s46 offen offset:{k*1024} sc1")
        A(f"""s_mov_b32 exec_lo, 0x00010001
s_mov_b32 exec_hi, 0x00010001
buffer_store_dwordx2 v[112:113], v6, s[40:43], s47 offen sc1
s_mov_b64 exec, -1""")
    if o.stat == 0: ln_stores()
    D = 32
    A(f"""s_lshl_b32 s57, s54, 3
v_add_u32 v7, s57, v15
v_add_u32 v14, s58, v2""")
    A.lds_wait("v7", F_KP, 2, "lg", 0, sleep=1)
    for q in range(4): A(f"ds_read_b128 v[{D+4*q}:{D+4*q+3}], v14 offset:{1024*q}")
    for q in range(4): A(f"ds_read_b128 v[{D+32+4*q}:{D+32+4*q+3}], v14 offset:{32*KROW+1024*q}")
    A("s_waitcnt lgkmcnt(0)")
    for r in range(16): A(f"v_add_f32 v{D+r}, v{D+r}, v{D+32+r}")
    A(f"""ds_write_b32 v21, v22 offset:{F_KD}
v_lshlrev_b32 v9, 16, v9
v_cmp_eq_u32 vcc, 0, v0
v_cndmask_b32 v9, 0, v9, vcc
v_sub_u32 v12, {4080-3072}, v2
v_add_u32 v12, s58, v12
v_and_b32 v13, 1, v0
v_cmp_eq_u32 vcc, 1, v13
v_mov_b32 v16, 0
v_mov_b32 v17, 0
v_mov_b32 v18, 0
v_mov_b32 v19, 0
v_add_f32 v{D}, v{D}, v9""")
    def wr(grp, k):
        t = 48 + 8 * (grp % 2)
        for u in range(4): A(f"v_cvt_pk_bf16_f32 v{t+u}, v{k[7-2*u]}, v{k[6-2*u]}")
        for u in range(4): A(f"v_cvt_pk_bf16_f32 v{t+4+u}, v{k[8-2*u]}, v{k[7-2*u]}")
        A(f"ds_write_b128 v12, v[{t}:{t+3}] offset:{3072-1024*grp}\nds_write_b128 v12, v[{t+4}:{t+7}] offset:{3072-1024*grp+KT_O}")
    wr(0, [D+i for i in range(9)])
    a, b, c = D+9, D+10, D+11
    wr(1, [a, a, a, b, b, b, c, c, c])
    for grp in (2, 3):
        a, b = D + 12 + 2*(grp-2), D + 13 + 2*(grp-2)
        A(f"v_cndmask_b32 v20, v{a}, v{b}, vcc")
        wr(grp, [a, a, a, a, 20, b, b, b, b])
    A(f"""s_mov_b64 exec, 0xf
ds_write_b128 v14, v[16:19] offset:4096
s_mov_b32 exec_lo, -1
ds_write_b128 v14, v[16:19] offset:{U_OFF}
s_mov_b64 exec, 1
v_cvt_pk_bf16_f32 v16, v{D}, 0
s_mov_b64 exec, 0xf
ds_write_b128 v14, v[16:19] offset:{4096+KT_O}
s_mov_b64 exec, -1""")
    A.stamp(4)
    if o.stat:
        A.lds_wait("v15", F_FULL, 2, "ge", o.stat, sleep=4)
        ln_stores()
    A(f"""s_lshl_b32 s57, s54, 8
s_add_u32 s57, s57, s53
s_lshl_b32 s57, s57, 2
s_add_u32 s57, s57, {WS_FLG}
s_waitcnt vmcnt(0)
s_mov_b64 exec, 1
buffer_store_dword v113, v2, s[40:43], s57 offen sc1
s_mov_b64 exec, -1""")
    A(f"""s_cmp_eq_u32 s32, 1
s_cbranch_scc1 L_k_ed
s_lshl_b32 s61, s6, 10
s_add_u32 s61, s61, {WS_STATS}
s_mul_i32 s62, s7, 1536
s_add_u32 s62, s62, {WS_CS}
s_cmp_eq_u32 s54, 0
s_cselect_b32 s61, s61, s62
s_cselect_b32 s62, 0, 1024
s_add_u32 s62, s62, s61
s_lshl_b32 s63, s54, 9
s_add_u32 s63, s63, {L_EPI}
v_lshl_add_u32 v4, v0, 2, s63""")
    if o.eat: A.lds_wait("v15", F_FULL, 2, "ge", o.eat, sleep=4)
    A(f"""L_k_el:
buffer_load_dwordx2 v[96:97], v3, s[40:43], s61 offen sc1
buffer_load_dwordx2 v[98:99], v3, s[40:43], s61 offen offset:512 sc1
buffer_load_dwordx2 v[100:101], v3, s[40:43], s62 offen sc1
s_waitcnt vmcnt(0)
v_xor_b32 v16, s52, v97
v_xor_b32 v17, s52, v99
v_xor_b32 v18, s52, v101
v_or3_b32 v16, v16, v17, v18
v_cmp_ne_u32 vcc, 0, v16
s_cbranch_vccz L_k_eo
s_sleep {o.esleep}""")
    A.tmo("L_k_el")
    A(f"""L_k_eo:
ds_write_b32 v4, v96
ds_write_b32 v4, v98 offset:256
s_cmp_eq_u32 s54, 0
s_cbranch_scc1 L_k_e2
ds_write_b32 v4, v100 offset:512
L_k_e2:
s_waitcnt lgkmcnt(0)
ds_write_b32 v21, v22 offset:{F_EP}
L_k_ed:""")
    A.stamp(7)
    A(f"""s_lshr_b32 s61, s53, 7
s_lshl_b32 s61, s61, 10
s_lshl_b32 s62, s54, 9
s_add_u32 s61, s61, s62
s_add_u32 s61, s61, {WS_FLG}
v_lshrrev_b32 v4, 1, v0
v_lshlrev_b32 v5, 13, v4
v_lshl_add_u32 v5, v13, 4, v5
v_mul_u32_u24 v6, {CONV_SZ}, v13
v_lshl_add_u32 v6, v4, 4, v6
s_lshl_b32 s62, s54, 11
s_add_u32 s62, s62, {L_CONV+U_OFF+512}
v_add_u32 v6, s62, v6
s_lshl_b32 s62, s54, 20
s_lshl_b32 s63, s53, 5
s_add_u32 s62, s62, s63
s_add_u32 s62, s62, {WS_XNT}""")
    if o.uat: A.lds_wait("v15", F_FULL, 2, "ge", o.uat, sleep=4)
    A(f"""L_k_fl:
buffer_load_dwordx2 v[16:17], v3, s[40:43], s61 offen sc1
s_waitcnt vmcnt(0)
v_xor_b32 v16, s52, v16
v_xor_b32 v17, s52, v17
v_or_b32 v16, v16, v17
v_cmp_ne_u32 vcc, 0, v16
s_cbranch_vccz L_k_fld
s_sleep 16""")
    A.tmo("L_k_fl")
    A("L_k_fld:")
    A.stamp(5)
    for k in range(4):
        A(f"s_add_u32 s63, s62, {k*32*8192}\nbuffer_load_dwordx4 v[{96+4*k}:{99+4*k}], v5, s[40:43], s63 offen sc1")
    A.lds_wait("v15", F_KD, 2, "lg", 0)
    for k in range(4):
        A(f"s_waitcnt vmcnt({3-k})\nds_write_b128 v6, v[{96+4*k}:{99+4*k}] offset:{k*512}")
    A(f"""s_waitcnt lgkmcnt(0)
ds_write_b32 v21, v22 offset:{F_KR}""")
    A.stamp(6)
    A(f"""s_cmp_lg_u32 s56, 0
s_cbranch_scc1 L_k_nb""")
    A.lds_wait("v15", F_KR, 2, "lg", 0)
    A(f"""ds_read_b32 v4, v15 offset:{F_NONCE+4}
v_mov_b32 v5, 0
s_waitcnt lgkmcnt(0)
s_mov_b64 exec, 1
buffer_store_dword v4, v5, s[40:43], 0 offen sc1
s_mov_b64 exec, -1
L_k_nb:""")
    gemm2(A)

HEADER = open("header.txt").read().split("; Override launch")[0]

def build(o):
    A = G(o)
    prologue(A)
    gemm(A)
    kgen(A)
    loader(A)
    A("L_exit:\ns_endpgm\nL_codeend:")
    lines, probs = hz.fix(A.L, o.verbose)
    for p in probs: print("HAZARD at branch:", p, file=sys.stderr)
    txt = HEADER + f"; @launch grid=(256,1,1) block=(512,1,1) lds={LDS_BYTES + (2048 if o.trace else 0)}\n"
    txt += f'.amdgcn_target "amdgcn-amd-amdhsa--gfx950"\n.text\n.globl {KN}\n.p2align 8\n.type {KN},@function\n{KN}:\n'
    txt += "\n".join(lines) + "\n"
    txt += f""".section .rodata,"a"
.p2align 6
.amdhsa_kernel {KN}
  .amdhsa_next_free_vgpr 256
  .amdhsa_next_free_sgpr 102
  .amdhsa_accum_offset 256
  .amdhsa_group_segment_fixed_size 0
  .amdhsa_kernarg_size 112
  .amdhsa_user_sgpr_count 2
  .amdhsa_user_sgpr_kernarg_segment_ptr 1
  .amdhsa_system_sgpr_workgroup_id_x 1
  .amdhsa_float_denorm_mode_32 3
.end_amdhsa_kernel
"""
    return txt

def parser():
    ap = argparse.ArgumentParser()
    ap.add_argument("-o", default="recurrent_scan__ssm_conv_s4d__swiglu_ffn__prompt.s")
    ap.add_argument("--stamps", action="store_true")
    ap.add_argument("--verbose", action="store_true")
    ap.add_argument("--cyc", action="store_true")
    ap.add_argument("--stg", action="store_true")
    ap.add_argument("--trace", action="store_true")
    ap.add_argument("--probe", type=int, default=-1)
    ap.add_argument("--probewg", type=int, default=100)
    ap.add_argument("--noload", action="store_true")
    ap.add_argument("--oob", action="store_true")
    ap.add_argument("--nomm", action="store_true")
    ap.add_argument("--nord", action="store_true")
    ap.add_argument("--ldprio", type=int, default=0)
    ap.add_argument("--kplain", type=int, default=0)
    ap.add_argument("--kprio", type=int, default=0)
    ap.add_argument("--padto", type=int, default=0)
    ap.add_argument("--tmo", type=int, default=200000)
    ap.add_argument("--codepf", type=int, default=1)
    ap.add_argument("--map", type=int, default=2)
    ap.add_argument("--irot", type=int, default=7)
    ap.add_argument("--idir", type=int, default=-1)
    ap.add_argument("--warm", default="1:1:8")
    ap.add_argument("--stat", type=int, default=2)
    ap.add_argument("--sc", type=int, default=10)
    ap.add_argument("--nohg", type=int, default=0)
    ap.add_argument("--cbx", type=int, default=4)
    ap.add_argument("--xsh", type=int, default=4)
    ap.add_argument("--krot", type=int, default=1)
    ap.add_argument("--wrot", type=int, default=0)
    ap.add_argument("--g2prio", type=int, default=0)
    ap.add_argument("--opol", default="")
    ap.add_argument("--wdw", type=int, default=1)
    ap.add_argument("--wdwait", type=int, default=0)
    ap.add_argument("--mark", type=int, default=29)
    ap.add_argument("--ssleep", type=int, default=6)
    ap.add_argument("--p1", type=int, default=16)
    ap.add_argument("--eat", type=int, default=7)
    ap.add_argument("--esleep", type=int, default=8)
    ap.add_argument("--xpol", default="")
    ap.add_argument("--wpol", default="")
    ap.add_argument("--lnpol", default=" nt")
    ap.add_argument("--ppol", default=" nt")
    ap.add_argument("--ra", type=int, default=0)
    ap.add_argument("--rb", type=int, default=0)
    ap.add_argument("--rc", type=int, default=0)
    ap.add_argument("--rm", type=int, default=7)
    ap.add_argument("--ldorder", type=int, default=0)
    ap.add_argument("--flagat", type=int, default=17)
    ap.add_argument("--j1", type=int, default=1)
    ap.add_argument("--j2", type=int, default=3)
    ap.add_argument("--j3", type=int, default=6)
    ap.add_argument("--j4", type=int, default=7)
    ap.add_argument("--rot2", type=int, default=1)
    ap.add_argument("--sigat", type=int, default=10)
    ap.add_argument("--preat", type=int, default=14)
    ap.add_argument("--sig7", type=int, default=1)
    ap.add_argument("--wpre", type=int, default=2)
    ap.add_argument("--lddelay", type=int, default=0)
    ap.add_argument("--lnsleep", type=int, default=2)
    ap.add_argument("--hsleep", type=int, default=2)
    ap.add_argument("--uat", type=int, default=8)
    ap.add_argument("--hflag_at", type=int, default=30)
    ap.add_argument("--ahead", type=int, default=12)
    ap.add_argument("--hld", default=" sc1")
    ap.add_argument("--xld", default=" sc1")
    return ap

if __name__ == "__main__":
    o = parser().parse_args()
    WS_XNT += o.xsh * 128
    o.jobs = (1 << o.j1) | (1 << o.j2) | (1 << o.j3) | (1 << o.j4)
    open(o.o, "w").write(build(o))
```

```python
import sys, argparse, struct
sys.path.insert(0, "gen")
import hz

KN = "recurrent_scan__ssm_conv_s4d__swiglu_ffn__prompt_kernel"
WS_EPOCH = 0x0
WS_FLG   = 0x2000
WS_FHL   = 0x3000
WS_FHG   = 0x4000
WS_STATS = 0x8000
WS_CS    = 0xC000
WS_XNT   = 0x200000
WS_ST    = 0xC00000
WS_H     = 0x610000
WS_STAMP = 0x1000000
WS_BYTES = 268435456
SLOT = 40960
L_CONV = 3 * SLOT
KROW = 272
CONV_SZ = 2 * 32 * KROW
L_FLAGS = L_CONV + 2 * CONV_SZ
L_EPI = L_FLAGS + 256
L_TRACE = L_EPI + 512 + 768
LDS_BYTES = L_TRACE
F_FULL, F_FREE, F_NONCE, F_LN, F_KD, F_KR, F_CA, F_CB, F_SS, F_BD, F_EP, F_KP, F_PR, F_PG, F_PD = 0, 16, 32, 48, 64, 72, 80, 96, 112, 128, 136, 144, 160, 176, 192
KT_O, U_OFF, S_OFF = 4160, 8320, 12928
WBYTES = 512 * 1376 * 2
LOG2E = 0x3FB8AA3B

class G:
    def __init__(self, o):
        self.o = o; self.L = []; self.n = 0
    def __call__(self, s):
        for l in s.strip("\n").split("\n"):
            l = l.strip()
            if not l: continue
            self.L.append(l if l.endswith(":") or l.startswith(".") else "    " + l)
    def lab(self, p="L"):
        self.n += 1; return f"{p}{self.n}"
    def srd(self, d, b, nbytes):
        self(f"s_mov_b32 s{d}, s{b}\ns_and_b32 s{d+1}, s{b+1}, 0xffff\ns_mov_b32 s{d+2}, {nbytes}\ns_mov_b32 s{d+3}, 0x00020000")
    def stamp(self, i, force=False):
        if self.o.stg and i >= 8 and not force: return
        if self.o.stamps: self(f"{'s_memtime' if self.o.cyc else 's_memrealtime'} s[{68+2*i}:{69+2*i}]")
    def put_stamps(self):
        if not self.o.stamps or self.o.probe >= 0: return
        self(f"""s_waitcnt vmcnt(0) lgkmcnt(0)
s_lshl_b32 s64, s2, 3
s_add_u32 s64, s64, s3
s_lshl_b32 s64, s64, 7
s_add_u32 s64, s64, {WS_STAMP}
s_mov_b64 exec, 1
v_mov_b32 v2, 0""")
        for i in range(16):
            self(f"v_mov_b32 v4, s{68+2*i}\nv_mov_b32 v5, s{69+2*i}\nbuffer_store_dwordx2 v[4:5], v2, s[40:43], s64 offen offset:{8*i}\ns_nop 1")
        self("s_waitcnt vmcnt(0)")
    def tr_init(self):
        if self.o.trace: self(f"s_lshl_b32 s96, s3, 8\ns_add_u32 s96, s96, {L_TRACE}\nv_mov_b32 v150, s96\nv_lshl_add_u32 v151, v0, 2, v150\nv_mov_b32 v23, 0\nds_write_b32 v151, v23\ns_mov_b32 s95, s96")
    def tr_a(self):
        return ["s_memtime s[96:97]"] if self.o.trace else []
    def tr_b(self, tag):
        return [f"s_lshl_b32 s96, s96, 4", f"s_or_b32 s96, s96, {tag}", "v_mov_b32 v252, s96", "v_mov_b32 v253, s95", "ds_write_b32 v253, v252", "s_add_u32 s95, s95, 4"] if self.o.trace else []
    def trace(self, tag):
        if self.o.trace and tag not in (2, 5, 6, 7, 8):
            for x in self.tr_a() + ["s_waitcnt lgkmcnt(0)"] + self.tr_b(tag): self(x)
    def tr_dump(self):
        if self.o.trace:
            self(f"""s_mov_b64 exec, -1
s_waitcnt lgkmcnt(0)
s_lshl_b32 s96, s3, 8
s_add_u32 s96, s96, {L_TRACE}
v_lshl_add_u32 v254, v0, 2, s96
ds_read_b32 v252, v254
s_lshl_b32 s96, s2, 3
s_add_u32 s96, s96, s3
s_lshl_b32 s96, s96, 8
s_add_u32 s96, s96, {WS_STAMP + 0x100000}
v_lshlrev_b32 v253, 2, v0
s_waitcnt lgkmcnt(0)
buffer_store_dword v252, v253, s[40:43], s96 offen""")
    def tmo(self, back):
        self(f"s_sub_u32 s55, s55, 1\ns_max_i32 s55, s55, 0\ns_cmp_lg_u32 s55, 0\ns_cbranch_scc1 {back}")
    def lds_wait(self, addr, off, n, cmp, val, sleep=0, t=16):
        l = self.lab("Lw")
        rd = {1: f"ds_read_b32 v{t}", 2: f"ds_read_b64 v[{t}:{t+1}]", 4: f"ds_read_b128 v[{t}:{t+3}]"}[n]
        self(f"{l}:\n{rd}, {addr} offset:{off}\ns_waitcnt lgkmcnt(0)")
        if n >= 2: self(f"v_min_u32 v{t}, v{t}, v{t+1}")
        if n == 4: self(f"v_min3_u32 v{t}, v{t}, v{t+2}, v{t+3}")
        self(f"v_readfirstlane_b32 s67, v{t}\ns_cmp_{cmp}_u32 s67, {val}\ns_cbranch_scc1 {l}d")
        if sleep: self(f"s_sleep {sleep}")
        self.tmo(l)
        self(f"{l}d:")
    def lds_wait2(self, addr, off, val, sleep=0, t=16, pre=False, label=None):
        l = label or self.lab("Lv")
        if not pre: self(f"{l}:\nds_read_b32 v{t}, {addr} offset:{off}")
        else: self(f"{l}:")
        self(f"s_waitcnt lgkmcnt(0)\nv_cmp_gt_u32 vcc, {val}, v{t}\ns_cbranch_vccz {l}d")
        if sleep: self(f"s_sleep {sleep}")
        if pre: self(f"ds_read_b32 v{t}, {addr} offset:{off}")
        self.tmo(l)
        self(f"{l}d:")
    def flag_wait(self, vloc, vglob, soff, tries, sleep=0, t=20):
        l = self.lab("Lf")
        self(f"""s_mov_b32 s66, 0
{l}:
buffer_load_dword v{t}, {vloc}, s[40:43], {soff} offen sc1
s_add_u32 s66, s66, 1
s_cmp_le_u32 s66, {tries}
s_cbranch_scc1 {l}a
buffer_load_dword v{t+1}, {vglob}, s[40:43], {soff} offen sc1
s_waitcnt vmcnt(0)
v_cmp_eq_u32 vcc, s52, v{t+1}
v_cndmask_b32 v{t}, v{t}, v{t+1}, vcc
{l}a:
s_waitcnt vmcnt(0)
v_cmp_ne_u32 vcc, s52, v{t}
s_cbranch_vccz {l}d""")
        if sleep: self(f"s_sleep {sleep}")
        self.tmo(l)
        self(f"{l}d:")

MAP = {3: """s_and_b32 s56, s4, 3
s_lshr_b32 s57, s4, 2
s_and_b32 s58, s5, 3
s_lshl_b32 s6, s56, 2
s_add_u32 s6, s6, s58
s_lshr_b32 s7, s5, 2
s_mul_i32 s59, s57, 7
s_add_u32 s7, s7, s59
s_lshr_b32 s60, s58, 1
s_cmp_lg_u32 s60, s57
s_cselect_b32 s60, 7, -1
s_lshl_b32 s56, s56, 1
s_add_u32 s56, s56, s59
s_and_b32 s58, s58, 1
s_add_u32 s56, s56, s58
s_cmp_eq_u32 s7, s60
s_cselect_b32 s7, s56, s7
s_cselect_b32 s32, 1, 0
s_and_b32 s53, s4, 3
s_lshl_b32 s53, s53, 1
s_add_u32 s53, s53, s57
s_lshl_b32 s53, s53, 5
s_add_u32 s53, s53, s5
s_and_b32 s33, s5, 3
s_lshr_b32 s57, s53, 5
s_lshl_b32 s57, s57, 2
s_add_u32 s33, s33, s57""",
2: """s_and_b32 s6, s5, 1
s_lshl_b32 s7, s4, 1
s_add_u32 s6, s6, s7
s_lshr_b32 s7, s5, 1
s_cmp_eq_u32 s7, 15
s_cselect_b32 s7, s6, s7
s_cselect_b32 s32, 1, 0
s_lshl_b32 s53, s4, 5
s_add_u32 s53, s53, s5
s_and_b32 s33, s5, 3
s_lshl_b32 s57, s4, 2
s_add_u32 s33, s33, s57"""}

def prologue(A):
    o = A.o
    A(f"""s_cmp_ge_u32 s2, 256
s_cbranch_scc1 L_exit
s_load_dwordx16 s[8:23], s[0:1], 0
s_load_dwordx8 s[24:31], s[0:1], 64
s_load_dwordx2 s[34:35], s[0:1], 104""")
    A.stamp(0)
    A(f"""v_lshrrev_b32 v1, 6, v0
v_and_b32 v0, 63, v0
s_and_b32 s4, s2, 7
v_readfirstlane_b32 s3, v1
s_lshr_b32 s5, s2, 3
{MAP[o.map]}
s_mov_b32 s55, {o.tmo}
v_mov_b32 v15, {L_FLAGS}
s_cmp_lg_u32 s3, 7
s_cbranch_scc1 L_noinit
v_mov_b32 v2, 0
v_lshl_add_u32 v3, v0, 2, v15
ds_write_b32 v3, v2""")
    if o.codepf:
        A(f"""s_getpc_b64 s[56:57]
L_pc:
s_lshl_b32 s58, s5, 10
v_lshl_add_u32 v3, v0, 7, s58
v_min_u32 v3, L_codeend-L_pc-4, v3
s_mov_b64 exec, 0xff
global_load_dword v255, v3, s[56:57]""")
    A(f"""s_mov_b64 exec, -1
L_noinit:
s_cmp_lt_u32 s3, 4
s_cbranch_scc1 L_gemm""")
    gemm2_setup(A)
    A(f"""s_cmp_lt_u32 s3, 6
s_cbranch_scc1 L_kgen""")

def sync_in(A, barrier=False):
    A("s_waitcnt lgkmcnt(0)")
    if barrier: A("s_barrier")
    A.srd(40, 34, WS_BYTES)
    A.tr_init(); A.trace(0)
    A.stamp(1)

def get_nonce(A):
    A.lds_wait("v15", F_NONCE, 1, "lg", 0)
    A("s_mov_b32 s52, s67")

def rot2(A, d, t):
    if A.o.rot2 == 0:
        A(f"s_mov_b32 s{d}, 0"); return
    A(f"""s_and_b32 s{d}, s5, 3
s_mul_i32 s{d}, s{d}, 11
s_lshr_b32 s{t}, s5, 2
s_add_u32 s{t}, s{t}, s4
s_and_b32 s{t}, s{t}, 7
s_mul_i32 s{t}, s{t}, 5
s_add_u32 s{d}, s{d}, s{t}
s_cmp_ge_u32 s{d}, 43
s_cselect_b32 s{t}, 43, 0
s_sub_u32 s{d}, s{d}, s{t}""")

def loader(A):
    o = A.o
    A("L_loader:\ns_sub_u32 s54, s3, 6")
    A(f"""v_lshrrev_b32 v3, 2, v0
v_mul_u32_u24 v3, 2752, v3
v_and_b32 v7, 3, v0
v_lshrrev_b32 v1, 5, v0
v_lshlrev_b32 v1, 1, v1
v_xor_b32 v7, v1, v7
v_lshl_add_u32 v7, v7, 4, v3
v_lshrrev_b32 v1, 3, v0
v_lshlrev_b32 v2, 10, v1
v_and_b32 v5, 7, v0
v_lshrrev_b32 v6, 4, v0
s_lshl_b32 s56, s54, 2
v_add_u32 v6, s56, v6
v_and_b32 v6, 7, v6
v_xor_b32 v6, v5, v6
v_lshl_add_u32 v6, v6, 4, v2
v_add_u32 v9, s56, v15
s_lshl_b32 s57, s6, 17
s_lshl_b32 s56, s54, 13
s_add_u32 s57, s57, s56
s_cmp_eq_u32 s32, 1
s_cselect_b32 s57, 0x40000000, s57
s_mul_i32 s58, s7, 192
s_cmp_eq_u32 s7, 15
s_cselect_b32 s58, 0x40000000, s58
s_cmp_eq_u32 s7, 14
s_cselect_b32 s52, 0x40000000, 0
s_lshl_b32 s59, s54, 10
s_mul_i32 s60, s54, 12288
s_add_u32 s60, s60, 16384
s_and_b32 s63, s5, {3 if o.map == 3 else 1}
s_mul_i32 s63, s63, {o.ra}
s_mul_i32 s56, s4, {o.rb}
s_add_u32 s63, s63, s56
s_mul_i32 s56, s7, {o.rc}
s_add_u32 s63, s63, s56
s_and_b32 s63, s63, {o.rm}
s_cmp_eq_u32 s32, 1
s_cselect_b32 s63, {o.irot}, s63
s_mov_b32 s61, 0
s_mov_b32 s62, 0
s_mov_b32 s66, 0
v_and_b32 v11, 3, v0
v_lshl_add_u32 v11, v11, 2, v15
v_mov_b32 v10, 0
v_mov_b32 v16, 0
s_lshl_b32 s56, s7, 4
s_add_u32 s56, s56, s6
s_lshl_b32 s56, s56, 1
s_add_u32 s56, s56, s54
v_mul_u32_u24 v14, 480, v0
v_add_u32 v14, s56, v14
v_lshlrev_b32 v14, 7, v14
v_and_b32 v8, 2, v1
v_lshlrev_b32 v8, 1, v8
v_xor_b32 v8, v5, v8
v_lshl_add_u32 v8, v8, 4, v2""")
    sync_in(A, True)
    A("""s_cmp_eq_u32 s54, 1
s_cselect_b32 s24, s26, s24
s_cselect_b32 s25, s27, s25""")
    A.srd(36, 8, 2097152)
    A.srd(44, 24, WBYTES)
    A.srd(20, 28, WBYTES)
    def warm(a, b):
        A(f"""v_lshlrev_b32 v12, 8, v0
v_add_u32 v12, s2, v12
v_cmp_gt_u32 vcc, {1376*(b-a)}, v12
v_lshlrev_b32 v12, 7, v12
v_cndmask_b32 v12, 2.0, v12, vcc
s_mov_b32 s56, {1376*a*128}
buffer_load_dword v13, v12, s[44:47], s56 offen""")
    warms = {}
    for spec in o.warm.split(","):
        if spec:
            at, a, b = [int(x) for x in spec.split(":")]
            warms[at] = (a, b)
    if 0 in warms: warm(*warms[0])
    if o.wdw == 9:
        A("""s_cmp_eq_u32 s32, 1
s_cbranch_scc1 L_ld_nw9
s_mov_b64 exec, 0x7fffff
buffer_load_dword v13, v14, s[20:23], 0 offen
s_mov_b64 exec, -1
L_ld_nw9:""")
    if o.ldprio: A(f"s_setprio {o.ldprio}")
    if o.lddelay: A(f"s_sleep {o.lddelay}")
    def sig(n, val=None):
        if val is not None: A(f"v_mov_b32 v10, {val}")
        A(f"s_waitcnt vmcnt({n})\nds_write_b32 v9, v10")
    def pre_free():
        A(f"v_add_u32 v10, 1, v10\nds_read_b32 v16, v11 offset:{F_FREE}")
    def wait_free():
        A.lds_wait2("v11", F_FREE, "s66", sleep=1, pre=True)
    def advance():
        A(f"""s_sub_i32 s66, s61, 1
s_max_i32 s66, s66, 0
s_add_u32 s61, s61, 1
s_add_u32 s62, s62, {SLOT}
s_cmp_eq_u32 s62, {3*SLOT}
s_cselect_b32 s62, 0, s62""")
    def wd_warm_idle():
        A(f"""v_lshlrev_b32 v14, 4, v0
v_add_u32 v14, s6, v14
v_lshlrev_b32 v14, 7, v14
s_mul_i32 s56, s54, {43*16*1024}""")
        for k in range(6):
            if k == 5: A("s_mov_b64 exec, 0xffffff")
            A(f"buffer_load_dword v13, v14, s[20:23], s56 offen\ns_add_u32 s56, s56, {1024*128}")
        A("s_mov_b64 exec, -1")
    A(f"""s_cmp_eq_u32 s32, 0
s_cbranch_scc1 L_ld_st""")
    if o.wdw == 11:
        for at in sorted(warms):
            if at: warm(*warms[at])
        if o.idelay: A(f"s_sleep {o.idelay}")
        wd_warm_idle()
    A("L_lc_st:")
    wait_free()
    A(f"""s_mul_i32 s50, s63, {64*2752}
s_add_u32 s50, s50, s58
s_add_u32 s51, s50, s52
s_add_u32 s49, s62, s60""")
    for n in range(12):
        kg, jj = n // 3, n % 3
        if n == 8:
            sig(n)
            for at in sorted(warms):
                if at == 0 or o.wdw == 11: continue
                l = A.lab("Lwm")
                A(f"s_cmp_lg_u32 s61, {at-1}\ns_cbranch_scc1 {l}")
                warm(*warms[at])
                A(f"{l}:")
        if n == 9: pre_free()
        A(f"s_add_u32 m0, s49, {jj*4096+kg*1024}\ns_add_u32 s56, s{50 if jj == 0 else 51}, {kg*16*2752+jj*64}\nbuffer_load_dwordx4 v7, s[44:47], s56 offen{o.wpol} lds")
    A(f"s_add_u32 s63, s63, {o.idir & 7}\ns_and_b32 s63, s63, 7")
    advance()
    A("s_cmp_lt_u32 s61, 8\ns_cbranch_scc1 L_lc_st")
    A.lds_wait("v15", F_BD, 2, "lg", 0, sleep=1, t=18)
    sig(0)
    A.lds_wait("v15", F_EP, 2, "lg", 0, sleep=1, t=18)
    if o.wdw == 10: wd_warm_idle()
    A("s_branch L_ld_e\nL_ld_st:")
    wait_free()
    A.trace(5)
    A(f"""s_lshl_b32 s64, s63, 7
s_add_u32 s64, s64, s57
s_add_u32 s65, s62, s59
s_mul_i32 s50, s63, {64*2752}
s_add_u32 s50, s50, s58
s_add_u32 s51, s50, s52
s_add_u32 s49, s62, s60""")
    items = [("x", t) for t in (5, 6, 7)] + [("w", kg, jj) for kg in range(4) for jj in range(3)] + [("x", t) for t in range(5)]
    if o.ldorder == 1: items = items[3:15] + items[:3] + items[15:]
    if o.oob: A("s_mov_b32 s64, 0x40000000\ns_mov_b32 s50, s64\ns_mov_b32 s51, s64")
    for n, it in enumerate(items):
        if n == o.sigat:
            A.trace(6); sig(n); A.trace(7)
            for at in sorted(warms):
                if at == 0: continue
                l = A.lab("Lwm")
                A(f"s_cmp_lg_u32 s61, {at-1}\ns_cbranch_scc1 {l}")
                warm(*warms[at])
                A(f"{l}:")
        if n == o.sigat and 0 < o.wdw < 8:
            A(f"""s_cmp_lg_u32 s61, {o.wdw}
s_cbranch_scc1 L_ld_nw
s_mov_b64 exec, 0x7fffff
buffer_load_dword v13, v14, s[20:23], 0 offen
s_mov_b64 exec, -1
L_ld_nw:""")
        if n == o.preat:
            pre_free()
            for x in A.tr_a(): A(x)
        if n == 2:
            for x in A.tr_b(5): A(x)
        if it == ("x", 0) and not o.nokp:
            A("s_cmp_lg_u32 s61, 2\ns_cbranch_scc1 L_ld_nb")
            A.lds_wait("v15", F_BD, 2, "lg", 0, sleep=1, t=18)
            A("L_ld_nb:")
        if o.noload: continue
        if it[0] == "x":
            t = it[1]
            A(f"s_add_u32 m0, s65, {t*2048}\ns_add_u32 s56, s64, {t*16384}\nbuffer_load_dwordx4 v6, s[36:39], s56 offen{o.xpol} lds")
        else:
            _, kg, jj = it
            A(f"s_add_u32 m0, s49, {jj*4096+kg*1024}\ns_add_u32 s56, s{50 if jj == 0 else 51}, {kg*16*2752+jj*64}\nbuffer_load_dwordx4 v7, s[44:47], s56 offen{o.wpol} lds")
    A.trace(8)
    A("s_add_u32 s63, s63, 1\ns_and_b32 s63, s63, 7")
    advance()
    if o.stamps:
        A("s_cmp_lg_u32 s61, 1\ns_cbranch_scc1 L_ld_s1"); A.stamp(2); A("L_ld_s1:")
        A("s_cmp_lg_u32 s61, 3\ns_cbranch_scc1 L_ld_s2"); A.stamp(3); A("L_ld_s2:")
    A("s_cmp_lt_u32 s61, 8\ns_cbranch_scc1 L_ld_st")
    A("L_ld_e:")
    A.stamp(4)
    if o.sig7: sig(0)
    if o.wdelay: A(f"s_sleep {o.wdelay}")
    if o.wdw == 8:
        A("""s_cmp_eq_u32 s32, 1
s_cbranch_scc1 L_ld_nw8
s_mov_b64 exec, 0x7fffff
buffer_load_dword v13, v14, s[20:23], 0 offen
s_mov_b64 exec, -1
L_ld_nw8:""")
    A.trace(9); A.tr_dump()
    A(f"""s_lshr_b32 s57, s5, 2
s_xor_b32 s57, s57, {A.o.cbx}
s_lshl_b32 s57, s57, 7
s_mul_i32 s58, s54, {43*16*1024}
s_add_u32 s57, s57, s58
s_mul_i32 s59, s54, 20480
s_and_b32 s13, s5, 3
s_mul_i32 s13, s13, 5
s_lshr_b32 s13, s13, 1
s_lshl_b32 s13, s13, 11""")
    for b0 in o.wpf.split(","):
        if not b0: continue
        b0 = int(b0); nrow = min(64, (43 - b0) * 4)
        A(f"""s_and_b32 s56, s5, 3
v_lshl_add_u32 v14, v0, 2, s56
v_lshlrev_b32 v14, 10, v14
s_add_u32 s56, s57, {b0*16384}
s_mov_b32 exec_hi, {hex(((1 << nrow) - 1) >> 32)}
buffer_load_dword v13, v14, s[20:23], s56 offen sc1
s_mov_b64 exec, -1""")
    if o.wdwait: A.lds_wait("v15", F_KR, 2, "lg", 0, sleep=2, t=18)
    A("L_ld_wc:")
    wait_free()
    A("s_add_u32 s65, s62, s59")
    for i in range(10):
        if i == o.wsig: sig(2*i)
        if i == 8: pre_free()
        wd_block(A, i, o.wrot)
    A(f"s_add_u32 s57, s57, {10*16384}")
    advance()
    A("s_cmp_lt_u32 s61, 11\ns_cbranch_scc1 L_ld_wc")
    A.stamp(5)
    A("s_branch L_g2")

def wd_block(A, i, rot=False):
    if rot:
        A(f"""s_add_u32 m0, s65, s13
s_lshl_b32 s56, s13, 3
s_add_u32 s56, s56, s57
buffer_load_dwordx4 v8, s[20:23], s56 offen lds
s_add_u32 m0, m0, 1024
s_add_u32 s56, s56, 8192
s_add_u32 s13, s13, 2048
buffer_load_dwordx4 v8, s[20:23], s56 offen lds
s_cmp_eq_u32 s13, 20480
s_cselect_b32 s13, 0, s13""")
        return
    A(f"""s_add_u32 m0, s65, {i*2048}
s_add_u32 s56, s57, {i*16384}
buffer_load_dwordx4 v8, s[20:23], s56 offen lds
s_add_u32 m0, s65, {i*2048+1024}
s_add_u32 s56, s57, {i*16384+8192}
buffer_load_dwordx4 v8, s[20:23], s56 offen lds""")

BOUNCE = 2 * SLOT
def kpart_loads(A):
    o = A.o
    A(f"""s_and_b32 s60, s3, 1
s_lshr_b32 s61, s3, 1
s_lshl_b32 s56, s53, 1
s_add_u32 s56, s56, s61
s_lshl_b32 s57, s56, 8
s_lshl_b32 s58, s60, 7
s_add_u32 s57, s57, s58
v_lshl_add_u32 v16, v0, 1, s57
s_lshl_b32 s57, s56, 1
v_mov_b32 v17, s57""")
    sync_in(A)
    A(f"""global_load_short_d16_hi v20, v16, s[10:11]{o.ppol}
global_load_short_d16_hi v21, v17, s[18:19]
global_load_short_d16_hi v22, v16, s[12:13]{o.ppol}
global_load_short_d16_hi v24, v16, s[14:15]{o.ppol}
global_load_short_d16_hi v25, v16, s[16:17]{o.ppol}
s_barrier""")

def kpart(A):
    o = A.o
    A(f"""s_mul_i32 s58, s3, {32*KROW}
s_add_u32 s58, s58, {L_CONV}
v_lshl_add_u32 v16, v0, 2, s58
v_and_b32 v17, 31, v0
v_mul_u32_u24 v17, {KROW}, v17
v_lshrrev_b32 v18, 5, v0
v_lshl_add_u32 v17, v18, 4, v17
v_add_u32 v17, s58, v17
v_lshl_add_u32 v18, v0, 4, s58
s_mov_b32 s59, {LOG2E}
s_mov_b32 s56, 0x3e22f983
s_waitcnt vmcnt(3)""")
    A.stamp(2)
    A("""v_and_b32 v20, 0xffff0000, v20
v_and_b32 v21, 0xffff0000, v21
v_mul_f32 v20, s59, v20
v_mul_f32 v21, s59, v21
v_exp_f32 v20, v20
v_exp_f32 v21, v21
v_cvt_pk_bf16_f32 v20, v20, v21
v_and_b32 v21, 0xffff0000, v20
v_lshlrev_b32 v20, 16, v20
v_mul_f32 v20, v20, v21
v_mul_f32 v20, s59, v20
s_waitcnt vmcnt(2)
v_and_b32 v22, 0xffff0000, v22
v_mul_f32 v22, v22, v21
v_mul_f32 v22, s56, v22""")
    Z1, Z8, Z256, Z2, Z4, Z32 = 128, 130, 132, 134, 136, 138
    zs = ((Z8, 8.0), (Z1, 1.0), (Z256, 256.0))
    for n, (dst, p) in enumerate(zs):
        pf = struct.unpack("<I", struct.pack("<f", p))[0]
        A(f"v_mul_f32 v{26+n}, {hex(pf ^ 0x80000000)}, v20\nv_mul_f32 v{29+n}, {hex(pf)}, v22")
    for n in range(3): A(f"v_exp_f32 v{26+n}, v{26+n}\nv_fract_f32 v{29+n}, v{29+n}")
    for n, (dst, p) in enumerate(zs): A(f"v_cos_f32 v{dst}, v{29+n}\nv_sin_f32 v{dst+1}, v{29+n}")
    for n, (dst, p) in enumerate(zs): A(f"v_mul_f32 v{dst}, v{dst}, v{26+n}\nv_mul_f32 v{dst+1}, v{dst+1}, v{26+n}")
    TM = 140
    PK = 152
    pk = [0]
    def cms(ops):
        for n, (d, a, z) in enumerate(ops):
            A(f"v_pk_mul_f32 v[{TM+2*n}:{TM+2*n+1}], v[{a}:{a+1}], v[{z}:{z+1}] op_sel:[0,0] op_sel_hi:[0,1]")
        for n, (d, a, z) in enumerate(ops):
            A(f"v_pk_fma_f32 v[{d}:{d+1}], v[{a}:{a+1}], v[{z}:{z+1}], v[{TM+2*n}:{TM+2*n+1}] op_sel:[1,1,0] op_sel_hi:[1,0,1] neg_lo:[1,0,0]")
    def puts(items, neg):
        ts = []
        for src, rows in items:
            t = PK + pk[0] % 8; pk[0] += 1; ts.append(t)
            A(f"v_cvt_pk_bf16_f32 v{t}, v{src}, {'-' if neg else ''}v{src+1}")
        for t, (src, rows) in zip(ts, items):
            for r in rows: A(f"ds_write_b32 v16, v{t} offset:{r*KROW}")
    E = 160
    C = 180
    A(f"""s_waitcnt vmcnt(0)
v_add_f32 v21, v21, v21
v_and_b32 v24, 0xffff0000, v24
v_and_b32 v25, 0xffff0000, v25
v_mov_b32 v19, 0x3f80
v_mul_f32 v{E}, v24, v21
v_mul_f32 v{E+1}, v25, v21
ds_write_b32 v16, v19""")
    cms([(C+2, Z8, Z8), (Z2, Z1, Z1), (E+2, E, Z1), (E+16, E, Z8)])
    cms([(C+4, C+2, Z8), (Z32, C+2, C+2), (Z4, Z2, Z2), (E+4, E, Z2), (E+6, E+2, Z2)])
    puts([(Z8, [1]), (C+2, [2]), (C+4, [3]), (Z32, [4])], False)
    cms([(C, Z8, Z32), (C+2, C+2, Z32), (C+4, C+4, Z32), (C+6, Z32, Z32)])
    for j0 in range(5, 32, 4):
        n = min(4, 32 - j0)
        puts([(C+2*c, [j0+c]) for c in range(n)], False)
        n2 = min(4, 32 - j0 - 4)
        if n2 > 0: cms([(C+2*c, C+2*c, Z32) for c in range(n2)])
    cms([(E+8+2*i, E+2*i, Z4) for i in range(4)])
    RF, LF = 192, 224
    A("s_waitcnt lgkmcnt(0)")
    for k in range(8): A(f"ds_read_b128 v[{RF+4*k}:{RF+4*k+3}], v17 offset:{32*k}")
    def row(reg, hf): return 8 * (reg >> 2) + 4 * hf + (reg & 3)
    for i in range(8): A(f"v_cvt_pk_bf16_f32 v{PK+i}, v{E+2*i}, -v{E+2*i+1}")
    A(f"v_cvt_pk_bf16_f32 v19, v{E+16}, -v{E+17}")
    cms([(E+2*i, E+2*i, Z256) for i in (0, 2, 4, 6, 8)])
    A("s_waitcnt lgkmcnt(0)")
    for i in range(8): A(f"ds_write_b32 v16, v{PK+i} offset:{row(i, 0)*KROW}")
    A(f"ds_write_b32 v16, v19 offset:{row(8, 0)*KROW}")
    dup = {0: [0, 1], 2: [2], 4: [3, 4, 5], 6: [6], 8: [7, 8]}
    cms([(Z2, Z256, Z256)] + [(C+2*n, E+2*i, Z256) for n, i in enumerate((0, 4, 8))])
    puts([(E+2*i, [row(r, 1) for r in dup[i]]) for i in (0, 2, 4, 6, 8)], True)
    cms([(E+2*i, E+2*i, Z2) for i in (0, 4, 8)] + [(E+2, C, Z2), (E+6, C+4, Z2)])
    puts([(C+2*n, [row(9+n, 0)]) for n in range(3)], True)
    cms([(C, E, Z2), (C+2, E+16, Z2), (C+4, E+2, Z2), (C+6, E+6, Z2)])
    puts([(E+2*i, [row(9+n, 1)]) for n, i in enumerate((0, 4, 8))] + [(E+2, [row(12, 0)]), (E+6, [row(13, 0)])], True)
    cms([(E, C, Z2), (E+16, C+2, Z2)])
    puts([(C, [row(12, 1)]), (C+2, [row(13, 1)]), (C+4, [row(14, 0)]), (C+6, [row(15, 0)])], True)
    puts([(E, [row(14, 1)]), (E+16, [row(15, 1)])], True)
    A("s_waitcnt lgkmcnt(0)")
    for k in range(8): A(f"ds_read_b128 v[{LF+4*k}:{LF+4*k+3}], v17 offset:{32*k}")
    D = 128
    for k in range(8):
        A(f"s_waitcnt lgkmcnt({7-k})")
        c = "0" if k == 0 else f"v[{D}:{D+15}]"
        A(f"v_mfma_f32_32x32x16_bf16 v[{D}:{D+15}], v[{LF+4*k}:{LF+4*k+3}], v[{RF+4*k}:{RF+4*k+3}], {c}")
    for q in range(4): A(f"ds_write_b128 v18, v[{D+4*q}:{D+4*q+3}] offset:{1024*q}")
    A(f"""v_mov_b32 v12, 1
s_waitcnt lgkmcnt(0)
ds_write_b32 v13, v12 offset:{F_KP}""")
    A.stamp(3)

ACC = 32
def acc(i, jn): return ACC + 4 * (4 * jn + i)
BUF = (128, 168)
R1B, R1A = 208, 224
def g1_reads(buf, ks):
    b = BUF[buf]; L = []
    def w(jn):
        for t in range(2):
            L.append(f"ds_read_b64_tr_b16 v[{b+16+4*jn+2*t}:{b+16+4*jn+2*t+1}], v{4+jn//2} offset:{(jn&1)*12288+ks*2048+t*256}")
    w(0)
    for i in range(4): L.append(f"ds_read_b128 v[{b+4*i}:{b+4*i+3}], v{2+ks} offset:{i*2048}")
    for jn in range(1, 6): w(jn)
    return L
def g1_mm(A, buf, fill, k0=0, k1=24):
    b = BUF[buf]; k = -1
    for jn in range(6):
        for i in range(4):
            k += 1
            if not (k0 <= k < k1): continue
            a = acc(i, jn)
            if not A.o.nomm: A(f"v_mfma_f32_16x16x32_bf16 v[{a}:{a+3}], v[{b+16+4*jn}:{b+16+4*jn+3}], v[{b+4*i}:{b+4*i+3}], v[{a}:{a+3}]")
            for x in fill.get(k, []):
                if A.o.nord and ("_tr_" in x or "b128" in x): continue
                A(x)
def spread(L, start, per):
    d = {}
    for n, x in enumerate(L): d.setdefault(start + n // per, []).append(x)
    return d

def gemm(A):
    o = A.o
    kpart_loads(A)
    A.srd(36, 8, 2097152)
    A("s_lshl_b32 s56, s3, 2\nv_add_u32 v13, s56, v15\nv_mov_b32 v14, 0x3f803f80")
    A(f"""v_and_b32 v10, 15, v0
v_lshrrev_b32 v11, 4, v0
v_lshrrev_b32 v18, 1, v10
v_xor_b32 v18, v11, v18
s_lshl_b32 s56, s60, 6
v_add_u32 v19, s56, v10
v_lshlrev_b32 v19, 7, v19
v_lshl_add_u32 v2, v18, 4, v19
v_xor_b32 v3, 64, v2
v_and_b32 v18, 1, v11
v_lshlrev_b32 v18, 5, v18
v_lshl_add_u32 v18, v11, 9, v18
v_bfe_u32 v19, v0, 2, 2
v_lshl_add_u32 v18, v19, 6, v18
v_and_b32 v19, 3, v0
v_lshl_add_u32 v18, v19, 3, v18
v_add_u32 v18, 16384, v18""")
    for j in range(3):
        A(f"""s_mul_i32 s56, s61, 3
s_add_u32 s56, s56, {j}
s_and_b32 s57, s56, 1
s_lshl_b32 s57, s57, 5
s_lshr_b32 s56, s56, 1
s_lshl_b32 s56, s56, 12
v_xor_b32 v{4+j}, s57, v18
v_add_u32 v{4+j}, s56, v{4+j}""")
    A(f"""s_mov_b32 s62, 0
s_mov_b32 s63, 0
s_mov_b32 s64, {SLOT}
s_mov_b32 s65, {-2*SLOT & 0xffffffff}
s_mov_b32 s49, 0
s_lshl_b32 s56, s60, 8
s_add_u32 s56, s56, {L_EPI}
v_lshl_add_u32 v7, v10, 2, s56
s_mul_i32 s56, s61, 384
s_add_u32 s56, s56, {L_EPI+512}
v_lshl_add_u32 v8, v11, 4, s56
v_and_b32 v9, 1, v0
v_lshl_add_u32 v9, v9, 2, v15
s_mov_b32 s48, 1""")
    for r in range(96): A(f"v_mov_b32 v{ACC+r}, 0")
    if o.nokp: A(f"v_mov_b32 v12, 1\nds_write_b32 v13, v12 offset:{F_KP}")
    else: kpart(A)
    A(f"""s_lshr_b32 s57, s5, 2
s_xor_b32 s57, s57, {A.o.cbx}
s_lshl_b32 s51, s33, 2
s_add_u32 s51, s51, s3
s_lshl_b32 s51, s51, 14
s_lshl_b32 s58, s57, 7
s_add_u32 s51, s51, s58
v_lshlrev_b32 v31, 10, v10
v_lshl_add_u32 v31, v11, 4, v31
buffer_load_dwordx4 v[248:251], v31, s[36:39], s51 offen
buffer_load_dwordx4 v[252:255], v31, s[36:39], s51 offen offset:64""")
    A("s_cmp_eq_u32 s32, 1\ns_cbranch_scc1 L_cs")
    A.lds_wait2("v9", F_FULL, "s48")
    A.stamp(4)
    for x in g1_reads(0, 0): A(x)
    A(".p2align 3\nL_g1_loop:")
    if o.stg:
        for k in range(8):
            A(f"s_cmp_lg_u32 s62, {k}\ns_cbranch_scc1 L_stg{k}"); A.stamp(8 + k, True); A(f"L_stg{k}:")
    for x in A.tr_a(): A(x)
    A("s_waitcnt lgkmcnt(0)")
    f = spread(g1_reads(1, 1), 0, 1)
    if o.trace:
        for n, x in enumerate(A.tr_b(1)): f[9 + n] += [x]
    f[0] += ["s_add_u32 s62, s62, 1"]
    f[1] += [f"s_add_u32 s63, s63, {SLOT}"]
    f[2] += [f"s_cmp_eq_u32 s63, {3*SLOT}"]
    f[3] += ["s_cselect_b32 s57, s65, s64"]
    f[4] += ["s_cselect_b32 s63, 0, s63"]
    f[6] += ["v_add_u32 v2, s57, v2"]
    f[7] += ["v_add_u32 v3, s57, v3"]
    f[8] += ["v_add_u32 v4, s57, v4"]
    f[12] += ["v_add_u32 v5, s57, v5"]
    f[5] += ["s_add_u32 s48, s62, 1"]
    f[16] = ["v_add_u32 v6, s57, v6"]
    f[17] = [f"ds_read_b32 v16, v9 offset:{F_FULL}", "v_mov_b32 v12, s62"]
    f[22] = ["s_waitcnt lgkmcnt(0)", f"ds_write_b32 v13, v12 offset:{F_FREE}", "v_cmp_gt_u32 vcc, s48, v16"]
    f[23] = ["s_cmp_eq_u32 s62, 8"]
    g1_mm(A, 0, f)
    A(f"""s_cbranch_scc1 L_g1_end
s_cbranch_vccnz L_g1_slow""")
    g1_mm(A, 1, spread(g1_reads(0, 0), 0, 1))
    A("s_branch L_g1_loop\nL_g1_slow:")
    g1_mm(A, 1, {o.sc - 5: [f"ds_read_b32 v16, v9 offset:{F_FULL}"], o.sc - 1: ["s_waitcnt lgkmcnt(0)", "v_cmp_gt_u32 vcc, s48, v16"]}, 0, o.sc)
    A("s_cbranch_vccnz L_g1_slow2")
    rd = g1_reads(0, 0); n2 = 16 - (22 - o.sc)
    f = spread(rd[:2*n2], o.sc, 2); f.update(spread(rd[2*n2:], o.sc + n2, 1))
    g1_mm(A, 1, f, o.sc, 24)
    A("s_branch L_g1_loop\nL_g1_slow2:")
    g1_mm(A, 1, {18: [f"ds_read_b32 v16, v9 offset:{F_FULL}"]}, o.sc, 24)
    A.lds_wait2("v9", F_FULL, "s48", pre=True)
    for x in g1_reads(0, 0): A(x)
    A("s_branch L_g1_loop")
    A(f"""L_cs:
s_cmp_eq_u32 s60, 0
s_cbranch_scc1 L_cs_go
v_mov_b32 v12, 8
ds_write_b32 v13, v12 offset:{F_FREE}
s_branch L_conv
L_cs_go:""")
    for r in range(4): A(f"v_mov_b32 v{128+r}, v14")
    A("L_cs_loop:")
    A.lds_wait("v15", F_FULL, 2, "gt", "s62")
    for ks in range(2):
        for x in g1_reads(ks, ks):
            if "_tr_" in x: A(x)
    A(f"""s_add_u32 s62, s62, 1
s_add_u32 s63, s63, {SLOT}
s_cmp_eq_u32 s63, {3*SLOT}
s_cselect_b32 s57, s65, s64
s_cselect_b32 s63, 0, s63
v_mov_b32 v12, s62
v_add_u32 v4, s57, v4
v_add_u32 v5, s57, v5
v_add_u32 v6, s57, v6
s_waitcnt lgkmcnt(0)
ds_write_b32 v13, v12 offset:{F_FREE}""")
    for ks in range(2):
        for jn in range(6):
            a = ACC + 4 * jn; b = BUF[ks]
            A(f"v_mfma_f32_16x16x32_bf16 v[{a}:{a+3}], v[128:131], v[{b+16+4*jn}:{b+16+4*jn+3}], v[{a}:{a+3}]")
    A("s_cmp_lt_u32 s62, 8\ns_cbranch_scc1 L_cs_loop")
    get_nonce(A)
    A(f"""s_lshl_b32 s56, s4, 4
s_add_u32 s56, s56, s7
s_cmp_eq_u32 s56, {4*16+7 if o.map == 3 else 999}
s_cselect_b32 s56, 15, s7
s_lshl_b32 s56, s56, 1
s_add_u32 s56, s56, s61
s_mul_i32 s56, s56, 768
s_add_u32 s56, s56, {WS_CS}
v_lshlrev_b32 v18, 3, v0
s_mov_b64 exec, 0xffff""")
    for jn in range(6):
        a = ACC + 4 * jn
        A(f"""v_mov_b32 v{a+1}, s52
buffer_store_dwordx2 v[{a}:{a+1}], v18, s[40:43], s56 offen offset:{128*jn} sc1""")
    A(f"""s_mov_b64 exec, -1
s_lshl_b32 s56, s61, 2
v_add_u32 v18, s56, v15
ds_write_b32 v18, v12 offset:{F_EP}""")
    A.stamp(5)
    A("s_branch L_conv")
    CS, ST = 208, 232
    rd = [f"ds_read_b32 v{ST+4*i+3}, v7 offset:{64*i}" for i in range(4)] + [f"ds_read_b128 v[{CS+4*jn}:{CS+4*jn+3}], v8 offset:{64*jn}" for jn in range(6)]
    prep = [f"v_lshlrev_b32 v{ST+4*i+1}, 16, v{ST+4*i+3}" for i in range(4)] + [f"v_rcp_f32 v{ST+4*i}, v{ST+4*i+1}" for i in range(4)]
    prep += [f"v_and_b32 v{ST+4*i+2}, 0xffff0000, v{ST+4*i+3}" for i in range(4)]
    for i in range(4): prep += [f"v_mul_f32 v{ST+4*i+1}, v{ST+4*i+1}, v{ST+4*i+1}", f"v_mul_f32 v{ST+4*i}, s50, v{ST+4*i}"]
    sal = f"""s_lshl_b32 s56, s6, 1
s_add_u32 s56, s56, s60
s_mul_i32 s57, s56, {2*86*1024}
s_mul_i32 s58, s7, 6
s_mul_i32 s59, s61, 3
s_add_u32 s58, s58, s59
s_lshl_b32 s59, s58, 10
s_add_u32 s57, s57, s59
s_add_u32 s57, s57, {WS_H}
s_mov_b32 s50, {LOG2E ^ 0x80000000}""".split("\n")
    A("L_g1_end:")
    f = spread(sal, 0, 2)
    f[0] = [f"ds_read_b32 v16, v9 offset:{F_EP}"] + f[0]
    f[5] = ["v_lshlrev_b32 v2, 4, v0", "s_waitcnt lgkmcnt(0)", "v_cmp_eq_u32 vcc, 0, v16"]
    g1_mm(A, 1, f, 0, 6)
    A("s_cbranch_vccnz L_g1_late")
    f = spread(rd, 6, 2)
    f.update(spread(prep, 14, 2)); f[14] = ["s_waitcnt lgkmcnt(6)"] + f[14]
    g1_mm(A, 1, f, 6, 24)
    A.stamp(5)
    A("s_branch L_g1_epi\nL_g1_late:")
    g1_mm(A, 1, {}, 6, 24)
    A.stamp(5)
    A.lds_wait2("v9", F_EP, 1)
    for x in rd: A(x)
    A("s_waitcnt lgkmcnt(6)")
    for x in prep: A(x)
    A("L_g1_epi:\ns_waitcnt lgkmcnt(0)")
    A.trace(4); A.tr_dump()
    A.stamp(6)
    T = 128
    for j in range(3):
        for ip in range(2):
            d = 192 + 4 * ((2*j+ip) % 3)
            def pr(p):
                i = 2*ip + p//2
                return acc(i, 2*j) + 2*(p % 2), acc(i, 2*j+1) + 2*(p % 2), ST + 4*i, CS + 8*j + 2*(p % 2)
            for p in range(4):
                g_, u_, sc, cs = pr(p)
                A(f"v_pk_fma_f32 v[{g_}:{g_+1}], v[{cs}:{cs+1}], v[{sc+2}:{sc+3}], v[{g_}:{g_+1}] op_sel_hi:[1,0,1]")
            for p in range(4):
                g_, u_, sc, cs = pr(p)
                A(f"v_pk_mul_f32 v[{T+2*p}:{T+2*p+1}], v[{g_}:{g_+1}], v[{sc}:{sc+1}] op_sel_hi:[1,0]")
            for p in range(4):
                g_, u_, sc, cs = pr(p)
                A(f"v_pk_fma_f32 v[{u_}:{u_+1}], v[{cs+4}:{cs+5}], v[{sc+2}:{sc+3}], v[{u_}:{u_+1}] op_sel_hi:[1,0,1]")
            for e in range(8): A(f"v_exp_f32 v{T+e}, v{T+e}")
            for p in range(4):
                g_, u_, sc, cs = pr(p)
                A(f"v_pk_mul_f32 v[{T+8+2*p}:{T+9+2*p}], v[{g_}:{g_+1}], v[{u_}:{u_+1}]")
            for p in range(4):
                g_, u_, sc, cs = pr(p)
                A(f"v_pk_fma_f32 v[{T+2*p}:{T+2*p+1}], v[{T+2*p}:{T+2*p+1}], v[{sc}:{sc+1}], v[{sc}:{sc+1}] op_sel:[0,1,1] op_sel_hi:[1,1,1]")
            for e in range(8): A(f"v_rcp_f32 v{T+e}, v{T+e}")
            for p in range(4): A(f"v_pk_mul_f32 v[{T+8+2*p}:{T+9+2*p}], v[{T+8+2*p}:{T+9+2*p}], v[{T+2*p}:{T+2*p+1}]")
            for p in range(4): A(f"v_cvt_pk_bf16_f32 v{d+p}, v{T+8+2*p}, v{T+9+2*p}")
            l = A.lab("Lhs")
            A(f"""s_add_u32 s59, s58, {j}
s_cmp_ge_u32 s59, 86
v_permlane16_swap_b32 v{d}, v{d+2}
v_permlane16_swap_b32 v{d+1}, v{d+3}
s_cbranch_scc1 {l}
s_add_u32 s59, s57, {ip*86*1024+j*1024}
buffer_store_dwordx4 v[{d}:{d+3}], v2, s[40:43], s59 offen sc1
{l}:""")
    A(f"""s_lshl_b32 s54, s56, 5
s_lshl_b32 s58, s7, 1
s_add_u32 s54, s54, s58
s_add_u32 s54, s54, s61
s_lshl_b32 s54, s54, 2
s_add_u32 s54, s54, {WS_FHL}""")
    A.stamp(7)
    conv(A)
    final(A)

def h_flags(A, block):
    l = A.lab("Lhf")
    if block: A(f"s_cmp_lg_u32 s49, 0\ns_cbranch_scc1 {l}")
    else: A(f"s_getreg_b32 s62, hwreg(HW_REG_IB_STS, 0, 4)\ns_or_b32 s62, s62, s49\ns_cbranch_scc1 {l}")
    A(f"""s_mov_b32 s49, 1
s_add_u32 s62, s54, {WS_FHG-WS_FHL}
s_waitcnt vmcnt(0)
s_mov_b64 exec, 1
buffer_store_dword v20, v21, s[40:43], s54 offen
buffer_store_dword v20, v21, s[40:43], s62 offen sc1
s_mov_b64 exec, -1
{l}:""")

def conv(A):
    o = A.o
    D = 32
    A(f"""L_conv:
s_mul_i32 s58, s61, {CONV_SZ}
s_add_u32 s58, s58, {L_CONV}
s_lshl_b32 s59, s60, 8
s_sub_u32 s59, s58, s59
v_and_b32 v10, 15, v0
v_lshrrev_b32 v11, 4, v0
v_and_b32 v18, 1, v0
v_cmp_eq_u32 vcc, 1, v18
v_sub_u32 v18, 2032, v10
v_lshrrev_b32 v18, 1, v18
v_lshl_add_u32 v18, v11, 2, v18
v_lshlrev_b32 v18, 2, v18
v_mov_b32 v19, {KT_O}
v_cndmask_b32 v19, v19, 0, vcc
v_add3_u32 v18, v18, v19, s59""")
    for p in range(4): A(f"v_subrev_u32 v{4+p}, {4*(128*(2*p+1)+48)}, v18")
    A(f"""v_lshlrev_b32 v8, 5, v10
v_lshl_add_u32 v8, v11, 4, v8
v_add_u32 v8, s59, v8
v_add_u32 v8, {U_OFF+512-32-192}, v8""")
    get_nonce(A)
    A("v_mov_b32 v20, s52\nv_mov_b32 v21, 0\ns_mov_b32 s49, s32")
    A.lds_wait("v15", F_KR, 2, "lg", 0)
    A.stamp(8)
    KB = (64, 128); UB = (96, 160)
    def reads(buf, cc):
        L = []
        for a in range(8):
            off = 128 * (1 - (a & 1)) + 16 * (3 - cc)
            for h in range(2):
                L.append(f"ds_read2_b32 v[{KB[buf]+4*a+2*h}:{KB[buf]+4*a+2*h+1}], v{4+a//2} offset0:{off+2*h} offset1:{off+2*h+1}")
            L.append(f"ds_read_b128 v[{UB[buf]+4*a}:{UB[buf]+4*a+3}], v8 offset:{512*a+64*(3-cc)}")
        return L
    cnt = [0]
    def mm(buf, fill, first):
        fill = list(fill)
        for a in range(8):
            for p in range(8 - a):
                q = D + 4 * (a + p)
                c = "0" if (first and a == 0) else f"v[{q}:{q+3}]"
                A(f"v_mfma_f32_16x16x32_bf16 v[{q}:{q+3}], v[{KB[buf]+4*a}:{KB[buf]+4*a+3}], v[{UB[buf]+4*p}:{UB[buf]+4*p+3}], {c}")
                if fill: A(fill.pop(0))
                cnt[0] += 1
                if cnt[0] == o.hflag_at: h_flags(A, True)
                elif cnt[0] < o.hflag_at and cnt[0] % o.hflag_ev == 0: h_flags(A, False)
        assert not fill
    xsetup = f"""s_xor_b32 s59, s3, 1
s_lshl_b32 s59, s59, 2
v_add_u32 v9, s59, v15
v_lshlrev_b32 v5, 4, v0
s_lshl_b32 s59, s60, 12
s_add_u32 s59, s59, s58
v_add_u32 v6, s59, v5
v_xor_b32 v7, 4096, v5
s_lshl_b32 s59, s60, 12
v_xor_b32 v7, s59, v7
v_add_u32 v7, s58, v7
s_lshl_b32 s56, s53, 1
s_add_u32 s56, s56, s61
s_lshl_b32 s57, s56, 8
s_lshl_b32 s59, s60, 21
s_add_u32 s57, s57, s59
s_add_u32 s57, s57, {WS_ST}
v_lshlrev_b32 v4, 17, v11
v_lshl_add_u32 v4, v10, 4, v4
v_and_b32 v2, 3, v0
v_lshlrev_b32 v2, 6, v2
v_and_b32 v3, 60, v0
v_add_u32 v2, v2, v3
v_mov_b32 v193, s52
v_mov_b32 v195, s52
v_mov_b32 v197, s52
v_mov_b32 v199, s52
v_mov_b32 v201, s52
v_mov_b32 v203, s52
v_mov_b32 v205, s52
v_mov_b32 v207, s52
ds_read_b32 v16, v9 offset:{F_CA}""".split("\n")
    xsetup = [x if x != "s_nop 0" else "" for x in xsetup]
    for x in reads(0, 0): A(x)
    for cc in range(4):
        A("s_waitcnt lgkmcnt(0)")
        if cc == 3:
            A(f"v_mov_b32 v12, 1\nds_write_b32 v13, v12 offset:{F_CA}")
        mm(cc % 2, reads((cc + 1) % 2, cc + 1) if cc < 3 else xsetup, cc == 0)
    A.stamp(9)
    A.lds_wait2("v9", F_CA, 1, pre=True)
    A("s_nop 1")
    A("s_cmp_eq_u32 s60, 0\ns_cbranch_scc1 L_cx0")
    for q in range(4): A(f"ds_write_b128 v6, v[{32+4*q}:{35+4*q}] offset:{q*1024}")
    for r in range(16): A(f"v_mov_b32 v{32+r}, v{48+r}")
    A("s_branch L_cx1\nL_cx0:")
    for q in range(4): A(f"ds_write_b128 v6, v[{48+4*q}:{51+4*q}] offset:{q*1024}")
    A(f"""L_cx1:
s_waitcnt lgkmcnt(0)
ds_write_b32 v13, v12 offset:{F_CB}""")
    A.lds_wait2("v9", F_CB, 1)
    for q in range(4): A(f"ds_read_b128 v[{48+4*q}:{51+4*q}], v7 offset:{q*1024}")
    for q in range(4):
        A(f"s_waitcnt lgkmcnt({3-q})")
        for p in range(4):
            a = 32 + 4*q + p
            A(f"v_add_f32 v{a}, v{a}, v{a+16}")
        A(f"v_cvt_pk_bf16_f32 v{240+2*q}, v{32+4*q}, v{33+4*q}\nv_cvt_pk_bf16_f32 v{241+2*q}, v{34+4*q}, v{35+4*q}")
    for q in range(4):
        A(f"ds_bpermute_b32 v{192+4*q}, v2, v{240+2*q}\nds_bpermute_b32 v{194+4*q}, v2, v{241+2*q}")
    for q in range(4):
        A(f"s_waitcnt lgkmcnt({6-2*q})\nbuffer_store_dwordx4 v[{192+4*q}:{195+4*q}], v4, s[40:43], s57 offen sc1\ns_add_u32 s57, s57, {4*131072}")
    A.stamp(10)

def final(A):
    o = A.o
    A.srd(44, 30, 2097152)
    A(f"""s_lshr_b32 s57, s5, 2
s_xor_b32 s57, s57, {A.o.cbx}
s_lshl_b32 s58, s57, 2
s_add_u32 s58, s58, s3
s_lshl_b32 s63, s58, 12
s_lshl_b32 s64, s33, 17
s_add_u32 s63, s63, s64
s_add_u32 s56, s63, {WS_ST}
s_mul_i32 s65, s61, {CONV_SZ}
s_lshl_b32 s66, s60, 11
s_add_u32 s65, s65, s66
s_add_u32 s65, s65, {L_CONV+S_OFF}
v_lshl_add_u32 v4, v0, 3, s65
v_bfe_u32 v3, v0, 2, 2
v_lshl_add_u32 v3, v11, 3, v3
v_lshlrev_b32 v6, 7, v3
v_and_b32 v3, 3, v0
v_lshl_add_u32 v6, v3, 3, v6
s_lshl_b32 s65, s3, 5
s_add_u32 s65, s65, {L_CONV+S_OFF}
v_add_u32 v6, s65, v6
v_lshl_add_u32 v8, v3, 2, v15
v_lshlrev_b32 v7, 10, v11
v_lshl_add_u32 v7, v10, 4, v7
s_lshl_b32 s65, s61, 13
s_lshl_b32 s66, s60, 8
s_add_u32 s65, s65, s66
s_add_u32 s65, s65, {SLOT}
v_add_u32 v7, s65, v7
v_and_b32 v9, 1, v0
v_lshlrev_b32 v9, 3, v9
s_lshl_b32 s65, s61, 2
v_add3_u32 v9, v9, s65, v15
v_add_u32 v18, 1024, v4
s_waitcnt vmcnt(4)""")
    A.stamp(11)
    for p in range(8): A(f"v_lshlrev_b32 v{80+2*p}, 16, v{248+p}\nv_and_b32 v{81+2*p}, 0xffff0000, v{248+p}")
    if o.mark == 99: A.lds_wait2("v8", F_PD, 1, sleep=2)
    elif o.mark: A.lds_wait2("v8", F_PG, 1 if o.mark < 30 else 3, sleep=2)
    A("L_s_fl:")
    for k in range(4): A(f"buffer_load_dwordx4 v[{112+4*k}:{115+4*k}], v5, s[40:43], s56 offen offset:{1024*k} sc1")
    A("s_waitcnt vmcnt(0)")
    for k in range(8): A(f"v_xor_b32 v{64+k}, s52, v{113+2*k}")
    A(f"""v_or3_b32 v64, v64, v65, v66
v_or3_b32 v67, v67, v68, v69
v_or3_b32 v64, v64, v70, v71
v_or_b32 v64, v64, v67
v_cmp_ne_u32 vcc, 0, v64
s_cbranch_vccz L_s_fld
s_sleep {o.ssleep}""")
    A.tmo("L_s_fl")
    A("L_s_fld:")
    A.stamp(12)
    for k in range(4): A(f"ds_write2_b32 v{4 if k < 2 else 18}, v{112+4*k}, v{114+4*k} offset0:{128*(k%2)} offset1:{128*(k%2)+1}")
    A(f"""s_waitcnt lgkmcnt(0)
ds_write_b32 v13, v12 offset:{F_SS}""")
    A.lds_wait2("v8", F_SS, 1)
    for nt in range(2):
        for h in range(2): A(f"ds_read_b64_tr_b16 v[{72+4*nt+2*h}:{73+4*nt+2*h}], v6 offset:{nt*CONV_SZ+h*512}")
    A(f"s_mov_b32 s64, {LOG2E ^ 0x80000000}\ns_mov_b32 s65, s64\ns_waitcnt lgkmcnt(0)")
    for p in range(8): A(f"v_lshlrev_b32 v{96+2*p}, 16, v{72+p}\nv_and_b32 v{97+2*p}, 0xffff0000, v{72+p}")
    A.stamp(13)
    A.lds_wait2("v9", F_PD, 1)
    A.stamp(14)
    for q in range(4):
        for kh in range(2):
            r = 32 + 16*kh + 4*q
            A(f"ds_read_b128 v[{r}:{r+3}], v7 offset:{kh*20480+(q>>1)*4096+(q&1)*512}")
    for q in range(4):
        A(f"s_waitcnt lgkmcnt({6-2*q})")
        for p in range(2):
            a = 32 + 4*q + 2*p
            A(f"v_pk_add_f32 v[{a}:{a+1}], v[{a}:{a+1}], v[{a+16}:{a+17}]")
        for p in range(2):
            a = 32 + 4*q + 2*p
            A(f"v_pk_mul_f32 v[{a+16}:{a+17}], v[{a}:{a+1}], s[64:65]")
        for e in range(4): A(f"v_exp_f32 v{48+4*q+e}, v{48+4*q+e}")
    for nt in range(2):
        for p in range(4*nt, 4*nt+4): A(f"v_pk_add_f32 v[{48+2*p}:{49+2*p}], v[{48+2*p}:{49+2*p}], 1.0 op_sel_hi:[1,0]")
        for p in range(4*nt, 4*nt+4): A(f"v_pk_mul_f32 v[{32+2*p}:{33+2*p}], v[{32+2*p}:{33+2*p}], v[{96+2*p}:{97+2*p}]")
        for e in range(8*nt, 8*nt+8): A(f"v_rcp_f32 v{48+e}, v{48+e}")
        for p in range(4*nt, 4*nt+4): A(f"v_pk_fma_f32 v[{32+2*p}:{33+2*p}], v[{32+2*p}:{33+2*p}], v[{48+2*p}:{49+2*p}], v[{80+2*p}:{81+2*p}]")
        for p in range(4*nt, 4*nt+4): A(f"v_cvt_pk_bf16_f32 v{64+p}, v{32+2*p}, v{33+2*p}")
        A(f"buffer_store_dwordx4 v[{64+4*nt}:{67+4*nt}], v31, s[44:47], s51 offen offset:{64*nt}{o.opol}")
    A.stamp(15)
    if o.probe >= 0:
        A(f"""s_cmp_lg_u32 s2, {o.probewg}
s_cbranch_scc1 L_prd
s_cmp_lg_u32 s3, 2
s_cbranch_scc1 L_prd
s_waitcnt lgkmcnt(0)
s_sub_u32 s64, s{68+2*o.probe}, s68
s_lshl_b32 s64, s64, 3
s_add_u32 s64, s64, 3000
L_pr:
s_memrealtime s[66:67]
s_waitcnt lgkmcnt(0)
s_sub_u32 s66, s66, s68
s_cmp_lt_u32 s66, s64
s_cbranch_scc1 L_pr
L_prd:""")
    A.put_stamps()
    A("s_endpgm")

NPRE = 13
WR = 64
HR = 168; NH = 18
WF = 240
GA = 116
def gemm2_setup(A):
    A(f"""s_and_b32 s66, s3, 1
s_bfe_u32 s48, s3, 0x10001
v_and_b32 v{GA+9}, 31, v0
v_lshrrev_b32 v{GA+1}, 5, v0
v_bfe_u32 v{GA+2}, v0, 2, 2
v_lshl_add_u32 v{GA+2}, v{GA+1}, 3, v{GA+2}
v_lshlrev_b32 v{GA}, 7, v{GA+2}
v_bfe_u32 v{GA+2}, v0, 3, 1
v_lshl_add_u32 v{GA}, v{GA+2}, 6, v{GA}
v_bfe_u32 v{GA+2}, v0, 4, 1
v_lshl_add_u32 v{GA}, v{GA+2}, 5, v{GA}
v_and_b32 v{GA+2}, 3, v0
v_lshl_add_u32 v{GA}, v{GA+2}, 3, v{GA}
s_mul_i32 s101, s48, 20480
v_add_u32 v{GA}, s101, v{GA}
v_xor_b32 v{GA+1}, 64, v{GA}
v_add_u32 v{GA+2}, {2*SLOT}, v{GA}
v_add_u32 v{GA+3}, {2*SLOT}, v{GA+1}
s_lshl_b32 s67, s48, 2
v_add_u32 v{GA+4}, s67, v15
v_lshlrev_b32 v{GA+5}, 4, v0
s_and_b32 s67, s3, 3
s_lshl_b32 s67, s67, 2
v_add_u32 v{GA+6}, s67, v15
v_xor_b32 v{GA+7}, 4, v{GA+6}
s_lshl_b32 s67, s66, 13
s_add_u32 s101, s101, s67
s_add_u32 s101, s101, {SLOT}
v_add_u32 v{GA+8}, s101, v{GA+5}
v_min_u32 v{GA+9}, 28, v{GA+9}
v_lshlrev_b32 v{GA+9}, 2, v{GA+9}
v_add_u32 v{GA+10}, {WS_FHG-WS_FHL}, v{GA+9}
v_and_b32 v{GA+11}, 1, v0
s_lshl_b32 s67, s66, 3
v_lshl_add_u32 v{GA+11}, v{GA+11}, 2, s67
v_add_u32 v{GA+11}, v{GA+11}, v15
v_mov_b32 v114, 1
v_mov_b32 v115, 2
s_lshl_b32 s101, s33, 1
s_add_u32 s101, s101, s66
s_mul_i32 s101, s101, {86*1024}
s_mul_i32 s67, s48, {43*1024}
s_add_u32 s101, s101, s67
s_add_u32 s101, s101, {WS_H}
s_lshl_b32 s48, s33, 7
s_add_u32 s48, s48, {WS_FHL}""")

def gemm2(A):
    o = A.o
    WRL = [32 + 8*i for i in range(10)] + [128 + 8*i for i in range(3)]
    AC = 152; HR = 184; NH = 18; PD = 3
    def wrd(i, b):
        c, ii = i // 10, i % 10
        sl = (8 + c) % 3
        L = []
        for nt in range(2):
            for t in range(2):
                ad = GA + ((2 + nt) if sl == 2 else nt)
                off = ii * 2048 + t * 512 + (SLOT if sl == 1 else 0)
                L.append(f"ds_read_b64_tr_b16 v[{b+4*nt+2*t}:{b+4*nt+2*t+1}], v{ad} offset:{off}")
        return L
    A("L_g2:")
    if o.g2prio: A(f"s_setprio {o.g2prio}")
    A.lds_wait2(f"v{GA+4}", F_FULL, 10, sleep=2)
    for i in range(NPRE):
        for x in wrd(i, WRL[i]): A(x)
    A(f"s_waitcnt lgkmcnt(0)\nds_write_b32 v{GA+6}, v114 offset:{F_PR}")
    A.stamp(8)
    A("s_cmp_lt_u32 s3, 6\ns_cbranch_scc1 L_g2_nl")
    A.lds_wait2(f"v{GA+11}", F_PR, 1, sleep=1)
    A(f"s_add_u32 s65, s59, {2*SLOT}")
    for i in range(10): wd_block(A, i, o.wrot)
    A(f"s_mov_b32 s65, s59\ns_add_u32 s57, s57, {10*16384}")
    for i in range(3): wd_block(A, i)
    get_nonce(A)
    A("v_mov_b32 v10, 13\ns_waitcnt vmcnt(0)\nds_write_b32 v9, v10\nL_g2_nl:")
    A.stamp(9)
    A.flag_wait(f"v{GA+9}", f"v{GA+10}", "s48", 0 if o.map == 3 else 48, sleep=o.hsleep)
    A.stamp(10)
    if o.g2prio: A(f"s_setprio {o.g2prio2}")
    A("v_mov_b32 v113, 3")
    def hld(i):
        r = HR + 4 * (i % NH)
        L = [f"buffer_load_dwordx4 v[{r}:{r+3}], v{GA+5}, s[40:43], s101 offen offset:{(i%4)*1024}{o.hld}"]
        if i % 4 == 3: L.append("s_add_u32 s101, s101, 4096")
        return L
    AHEAD = o.ahead
    assert AHEAD < NH
    for i in range(AHEAD):
        for x in hld(i): A(x)
    A(f"ds_read_b32 v16, v{GA+4} offset:{F_FULL}\ns_waitcnt vmcnt({AHEAD-1})")
    lds_q = []
    for i in range(43):
        nxt = i + 1
        b = WRL[i % NPRE]
        r = HR + 4 * (i % NH)
        if i + PD == 20: A.lds_wait2(f"v{GA+4}", F_FULL, 13, pre=True); lds_q = []
        w = wrd(i + PD, WRL[(i + PD) % NPRE]) if NPRE <= i + PD < 43 else []
        def mf(nt):
            c = "0" if i == 0 else f"v[{AC+16*nt}:{AC+16*nt+15}]"
            A(f"v_mfma_f32_32x32x16_bf16 v[{AC+16*nt}:{AC+16*nt+15}], v[{b+4*nt}:{b+4*nt+3}], v[{r}:{r+3}], {c}")
        mf(0)
        for x in w[:3]: A(x)
        mf(1)
        for x in w[3:]: A(x)
        lds_q += [i + PD] * len(w)
        if i + AHEAD < 43:
            for x in hld(i + AHEAD): A(x)
        if i == o.mark: A(f"ds_write_b32 v{GA+6}, v{114 if o.mark < 30 else 113} offset:{F_PG}"); lds_q.append(99)
        if i == 30: A(f"ds_write_b32 v{GA+6}, v115 offset:{F_PG}"); lds_q.append(99)
        if i == 41: A(f"ds_read_b32 v16, v{GA+7} offset:{F_PG}"); lds_q.append(99)
        if nxt < 43:
            out = min(43, i + AHEAD + 1) - (nxt + 1)
            lg = ""
            if nxt in lds_q:
                last = len(lds_q) - 1 - lds_q[::-1].index(nxt)
                lg = f" lgkmcnt({len(lds_q) - 1 - last})"
                lds_q = lds_q[last + 1:]
            A(f"s_waitcnt vmcnt({out}){lg}")
    A.stamp(11)
    A.lds_wait2(f"v{GA+7}", F_PG, 2, pre=True)
    A("s_nop 6")
    for q in range(8): A(f"ds_write_b128 v{GA+8}, v[{AC+4*q}:{AC+4*q+3}] offset:{q*1024}")
    A(f"s_waitcnt lgkmcnt(0)\nds_write_b32 v{GA+6}, v114 offset:{F_PD}\ns_waitcnt lgkmcnt(0)")
    A.stamp(12)
    A.put_stamps()
    A("s_endpgm")

def kgen(A):
    o = A.o
    A(f"""L_kgen:
s_sub_u32 s54, s3, 4
s_lshl_b32 s46, s53, 13
s_lshl_b32 s58, s54, 12
s_add_u32 s46, s46, s58
v_lshlrev_b32 v2, 4, v0""")
    sync_in(A)
    A.srd(36, 8, 2097152)
    for r in range(4): A(f"buffer_load_dwordx4 v[{128+4*r}:{131+4*r}], v2, s[36:39], s46 offen offset:{1024*r}{o.lnpol}")
    A(f"""s_lshl_b32 s56, s53, 1
s_add_u32 s56, s56, s54
s_lshl_b32 s57, s56, 1
v_mov_b32 v3, s57
global_load_ushort v9, v3, s[20:21]
v_mov_b32 v13, 0
buffer_load_dword v14, v13, s[40:43], 0 offen sc1
s_barrier
s_mul_i32 s58, s54, {CONV_SZ}
s_add_u32 s58, s58, {L_CONV}
v_mov_b32 v24, 0x3f803f80
v_mov_b32 v25, 0x00003f80
v_mov_b32 v26, 0x3f800000
s_mov_b32 s60, 0x3b000000
s_mov_b32 s59, 0x3727c5ac
v_mul_u32_u24 v4, 144, v0
s_lshl_b32 s57, s54, 3
s_add_u32 s57, s57, {BOUNCE}
v_add_u32 v4, s57, v4
v_lshrrev_b32 v5, 3, v0
v_mul_u32_u24 v5, 144, v5
v_and_b32 v6, 7, v0
v_lshl_add_u32 v5, v6, 4, v5
s_mul_i32 s57, s54, {32*144}
s_add_u32 s57, s57, {BOUNCE}
v_add_u32 v5, s57, v5
s_lshl_b32 s57, s54, 2
v_add_u32 v21, s57, v15
v_mov_b32 v22, 1
v_lshlrev_b32 v3, 3, v0
v_lshrrev_b32 v6, 1, v0""")
    for r in range(4):
        A(f"s_waitcnt vmcnt({5-r})")
        if r == 0: A.stamp(2)
        for i in range(4):
            c1 = "0" if i == 0 else f"v{160+r}"; c2 = "0" if i == 0 else f"v{164+r}"
            A(f"v_dot2_f32_bf16 v{160+r}, v{128+4*r+i}, v24, {c1}\nv_dot2_f32_bf16 v{164+r}, v{128+4*r+i}, v{128+4*r+i}, {c2}")
    for b in (160, 161, 164, 165): A(f"v_permlane32_swap_b32 v{b}, v{b+2}")
    for b in (160, 161, 164, 165): A(f"v_add_f32 v{b}, v{b}, v{b+2}")
    for b in (160, 164): A(f"v_permlane16_swap_b32 v{b}, v{b+1}")
    for b in (160, 164): A(f"v_add_f32 v{b}, v{b}, v{b+1}")
    for sh in (8, 4, 2, 1):
        for reg in (160, 164):
            A(f"v_add_f32_dpp v{reg}, v{reg}, v{reg} row_ror:{sh} row_mask:0xf bank_mask:0xf")
    A("""v_mul_f32 v160, s60, v160
v_mul_f32 v164, s60, v164
v_fma_f32 v164, -v160, v160, v164
v_max_f32 v164, 0, v164
v_cvt_pk_bf16_f32 v161, v164, -v160
v_and_b32 v160, 0xffff0000, v161
v_lshlrev_b32 v164, 16, v161
v_add_f32 v164, s59, v164
v_cvt_pk_bf16_f32 v164, v164, v164
v_and_b32 v164, 0xffff0000, v164
v_sqrt_f32 v164, v164""")
    for r in range(4): A(f"v_readlane_b32 s{8+r}, v160, {16*r}")
    A("""v_cvt_pk_bf16_f32 v112, v164, v160
v_lshlrev_b32 v164, 16, v112
v_rcp_f32 v164, v164""")
    N = 168
    for c in range(8):
        for r in range(4):
            A(f"v_dot2_f32_bf16 v{N+4*c+r}, v{128+4*r+c//2}, {'v25' if c % 2 == 0 else 'v26'}, s{8+r}")
        if c == 0:
            for r in range(4): A(f"v_readlane_b32 s{12+r}, v164, {16*r}")
    for c in range(8):
        for h in range(2): A(f"v_pk_mul_f32 v[{N+4*c+2*h}:{N+4*c+2*h+1}], v[{N+4*c+2*h}:{N+4*c+2*h+1}], s[{12+2*h}:{13+2*h}]")
    for c in range(8):
        for h in range(2): A(f"v_cvt_pk_bf16_f32 v{144+2*c+h}, v{N+4*c+2*h}, v{N+4*c+2*h+1}")
        A(f"ds_write_b64 v4, v[{144+2*c}:{145+2*c}] offset:{16*c}")
    A(f"""s_waitcnt vmcnt(0)
v_readfirstlane_b32 s52, v14
s_mul_i32 s52, s52, 0x9E3779B1
s_add_u32 s52, s52, 0x7F4A7C15
v_mov_b32 v17, s52
s_or_b32 s52, s52, 0x10000
v_mov_b32 v16, s52
s_cmp_lg_u32 s54, 0
s_cbranch_scc1 L_k_nn
ds_write_b64 v15, v[16:17] offset:{F_NONCE}
L_k_nn:
s_waitcnt lgkmcnt(0)
ds_write_b32 v21, v22 offset:{F_LN}""")
    A.lds_wait("v15", F_LN, 2, "lg", 0)
    for k in range(4): A(f"ds_read_b128 v[{96+4*k}:{99+4*k}], v5 offset:{k*8*144}")
    get_nonce(A)
    A(f"""ds_write_b32 v21, v22 offset:{F_BD}
v_mov_b32 v113, s52
s_lshr_b32 s47, s46, 7
s_add_u32 s47, s47, {WS_STATS}
s_mul_i32 s57, s53, {o.xpad}
s_add_u32 s46, s46, s57
s_add_u32 s46, s46, {WS_XNT}""")
    A.stamp(3)
    def ln_stores():
        for k in range(4): A(f"buffer_store_dwordx4 v[{96+4*k}:{99+4*k}], v2, s[40:43], s46 offen offset:{k*1024} sc1")
        A(f"""s_mov_b32 exec_lo, 0x00010001
s_mov_b32 exec_hi, 0x00010001
buffer_store_dwordx2 v[112:113], v6, s[40:43], s47 offen sc1
s_mov_b64 exec, -1""")
    if o.stat == 0: ln_stores()
    D = 32
    A(f"""s_lshl_b32 s57, s54, 3
v_add_u32 v7, s57, v15
v_add_u32 v14, s58, v2""")
    A.lds_wait("v7", F_KP, 2, "lg", 0, sleep=1)
    for q in range(4): A(f"ds_read_b128 v[{D+4*q}:{D+4*q+3}], v14 offset:{1024*q}")
    for q in range(4): A(f"ds_read_b128 v[{D+32+4*q}:{D+32+4*q+3}], v14 offset:{32*KROW+1024*q}")
    A("s_waitcnt lgkmcnt(0)")
    for r in range(16): A(f"v_add_f32 v{D+r}, v{D+r}, v{D+32+r}")
    A(f"""ds_write_b32 v21, v22 offset:{F_KD}
v_lshlrev_b32 v9, 16, v9
v_cmp_eq_u32 vcc, 0, v0
v_cndmask_b32 v9, 0, v9, vcc
v_sub_u32 v12, {4080-3072}, v2
v_add_u32 v12, s58, v12
v_and_b32 v13, 1, v0
v_cmp_eq_u32 vcc, 1, v13
v_mov_b32 v16, 0
v_mov_b32 v17, 0
v_mov_b32 v18, 0
v_mov_b32 v19, 0
v_add_f32 v{D}, v{D}, v9""")
    def wr(grp, k):
        t = 48 + 8 * (grp % 2)
        for u in range(4): A(f"v_cvt_pk_bf16_f32 v{t+u}, v{k[7-2*u]}, v{k[6-2*u]}")
        for u in range(4): A(f"v_cvt_pk_bf16_f32 v{t+4+u}, v{k[8-2*u]}, v{k[7-2*u]}")
        A(f"ds_write_b128 v12, v[{t}:{t+3}] offset:{3072-1024*grp}\nds_write_b128 v12, v[{t+4}:{t+7}] offset:{3072-1024*grp+KT_O}")
    wr(0, [D+i for i in range(9)])
    a, b, c = D+9, D+10, D+11
    wr(1, [a, a, a, b, b, b, c, c, c])
    for grp in (2, 3):
        a, b = D + 12 + 2*(grp-2), D + 13 + 2*(grp-2)
        A(f"v_cndmask_b32 v20, v{a}, v{b}, vcc")
        wr(grp, [a, a, a, a, 20, b, b, b, b])
    A(f"""s_mov_b64 exec, 0xf
ds_write_b128 v14, v[16:19] offset:4096
s_mov_b32 exec_lo, -1
ds_write_b128 v14, v[16:19] offset:{U_OFF}
s_mov_b64 exec, 1
v_cvt_pk_bf16_f32 v16, v{D}, 0
s_mov_b64 exec, 0xf
ds_write_b128 v14, v[16:19] offset:{4096+KT_O}
s_mov_b64 exec, -1""")
    A.stamp(4)
    if o.stat:
        A.lds_wait("v15", F_FULL, 2, "ge", o.stat, sleep=4)
        ln_stores()
    A(f"""s_lshl_b32 s57, s54, 8
s_add_u32 s57, s57, s53
s_lshl_b32 s57, s57, 2
s_add_u32 s57, s57, {WS_FLG}
s_waitcnt vmcnt(0)
s_mov_b64 exec, 1
buffer_store_dword v113, v2, s[40:43], s57 offen sc1
s_mov_b64 exec, -1""")
    A(f"""s_cmp_eq_u32 s32, 1
s_cbranch_scc1 L_k_ed
s_lshl_b32 s61, s6, 10
s_add_u32 s61, s61, {WS_STATS}
s_mul_i32 s62, s7, 1536
s_add_u32 s62, s62, {WS_CS}
s_cmp_eq_u32 s54, 0
s_cselect_b32 s61, s61, s62
s_cselect_b32 s62, 0, 1024
s_add_u32 s62, s62, s61
s_lshl_b32 s63, s54, 9
s_add_u32 s63, s63, {L_EPI}
v_lshl_add_u32 v4, v0, 2, s63""")
    if o.eat: A.lds_wait("v15", F_FULL, 2, "ge", o.eat, sleep=4)
    A(f"""L_k_el:
buffer_load_dwordx2 v[96:97], v3, s[40:43], s61 offen sc1
buffer_load_dwordx2 v[98:99], v3, s[40:43], s61 offen offset:512 sc1
buffer_load_dwordx2 v[100:101], v3, s[40:43], s62 offen sc1
s_waitcnt vmcnt(0)
v_xor_b32 v16, s52, v97
v_xor_b32 v17, s52, v99
v_xor_b32 v18, s52, v101
v_or3_b32 v16, v16, v17, v18
v_cmp_ne_u32 vcc, 0, v16
s_cbranch_vccz L_k_eo
s_sleep {o.esleep}""")
    A.tmo("L_k_el")
    A(f"""L_k_eo:
ds_write_b32 v4, v96
ds_write_b32 v4, v98 offset:256
s_cmp_eq_u32 s54, 0
s_cbranch_scc1 L_k_e2
ds_write_b32 v4, v100 offset:512
L_k_e2:
s_waitcnt lgkmcnt(0)
ds_write_b32 v21, v22 offset:{F_EP}
L_k_ed:""")
    A.stamp(7)
    A(f"""s_lshr_b32 s61, s53, 7
s_lshl_b32 s61, s61, 10
s_lshl_b32 s62, s54, 9
s_add_u32 s61, s61, s62
s_add_u32 s61, s61, {WS_FLG}
v_lshrrev_b32 v4, 1, v0
v_mul_u32_u24 v5, {8192+o.xpad}, v4
v_lshl_add_u32 v5, v13, 4, v5
v_mul_u32_u24 v6, {CONV_SZ}, v13
v_lshl_add_u32 v6, v4, 4, v6
s_lshl_b32 s62, s54, 11
s_add_u32 s62, s62, {L_CONV+U_OFF+512}
v_add_u32 v6, s62, v6
s_mul_i32 s62, s54, {128*(8192+o.xpad)}
s_lshl_b32 s63, s53, 5
s_add_u32 s62, s62, s63
s_add_u32 s62, s62, {WS_XNT}""")
    if o.uat: A.lds_wait("v15", F_FULL, 2, "ge", o.uat, sleep=4)
    A(f"""L_k_fl:
buffer_load_dwordx2 v[16:17], v3, s[40:43], s61 offen sc1
s_waitcnt vmcnt(0)
v_xor_b32 v16, s52, v16
v_xor_b32 v17, s52, v17
v_or_b32 v16, v16, v17
v_cmp_ne_u32 vcc, 0, v16
s_cbranch_vccz L_k_fld
s_sleep 16""")
    A.tmo("L_k_fl")
    A("L_k_fld:")
    A.stamp(5)
    for k in range(4):
        A(f"s_add_u32 s63, s62, {k*32*(8192+o.xpad)}\nbuffer_load_dwordx4 v[{96+4*k}:{99+4*k}], v5, s[40:43], s63 offen sc1")
    A.lds_wait("v15", F_KD, 2, "lg", 0)
    for k in range(4):
        A(f"s_waitcnt vmcnt({3-k})\nds_write_b128 v6, v[{96+4*k}:{99+4*k}] offset:{k*512}")
    A(f"""s_waitcnt lgkmcnt(0)
ds_write_b32 v21, v22 offset:{F_KR}""")
    A.stamp(6)
    A(f"""s_cmp_lg_u32 s56, 0
s_cbranch_scc1 L_k_nb""")
    A.lds_wait("v15", F_KR, 2, "lg", 0)
    A(f"""ds_read_b32 v4, v15 offset:{F_NONCE+4}
v_mov_b32 v5, 0
s_waitcnt lgkmcnt(0)
s_mov_b64 exec, 1
buffer_store_dword v4, v5, s[40:43], 0 offen sc1
s_mov_b64 exec, -1
L_k_nb:""")
    gemm2(A)

HEADER = open("header.txt").read().split("; Override launch")[0]

def build(o):
    A = G(o)
    prologue(A)
    loader(A)
    A("L_gemm:")
    gemm(A)
    kgen(A)
    A("L_exit:\ns_endpgm\nL_codeend:")
    lines, probs = hz.fix(A.L, o.verbose)
    for p in probs: print("HAZARD at branch:", p, file=sys.stderr)
    txt = HEADER + f"; @launch grid=(256,1,1) block=(512,1,1) lds={LDS_BYTES + (2048 if o.trace else 0)}\n"
    txt += f'.amdgcn_target "amdgcn-amd-amdhsa--gfx950"\n.text\n.globl {KN}\n.p2align 8\n.type {KN},@function\n{KN}:\n'
    txt += "\n".join(lines) + "\n"
    txt += f""".section .rodata,"a"
.p2align 6
.amdhsa_kernel {KN}
  .amdhsa_next_free_vgpr 256
  .amdhsa_next_free_sgpr 102
  .amdhsa_accum_offset 256
  .amdhsa_group_segment_fixed_size 0
  .amdhsa_kernarg_size 112
  .amdhsa_user_sgpr_count 2
  .amdhsa_user_sgpr_kernarg_segment_ptr 1
  .amdhsa_system_sgpr_workgroup_id_x 1
  .amdhsa_float_denorm_mode_32 3
.end_amdhsa_kernel
"""
    return txt

def parser():
    ap = argparse.ArgumentParser()
    ap.add_argument("-o", default="recurrent_scan__ssm_conv_s4d__swiglu_ffn__prompt.s")
    ap.add_argument("--stamps", action="store_true")
    ap.add_argument("--verbose", action="store_true")
    ap.add_argument("--cyc", action="store_true")
    ap.add_argument("--stg", action="store_true")
    ap.add_argument("--trace", action="store_true")
    ap.add_argument("--probe", type=int, default=-1)
    ap.add_argument("--probewg", type=int, default=100)
    ap.add_argument("--noload", action="store_true")
    ap.add_argument("--oob", action="store_true")
    ap.add_argument("--nomm", action="store_true")
    ap.add_argument("--nord", action="store_true")
    ap.add_argument("--ldprio", type=int, default=0)
    ap.add_argument("--kplain", type=int, default=0)
    ap.add_argument("--kprio", type=int, default=0)
    ap.add_argument("--padto", type=int, default=0)
    ap.add_argument("--tmo", type=int, default=200000)
    ap.add_argument("--codepf", type=int, default=1)
    ap.add_argument("--map", type=int, default=2)
    ap.add_argument("--irot", type=int, default=7)
    ap.add_argument("--idir", type=int, default=-1)
    ap.add_argument("--warm", default="1:1:8")
    ap.add_argument("--stat", type=int, default=2)
    ap.add_argument("--sc", type=int, default=10)
    ap.add_argument("--nohg", type=int, default=0)
    ap.add_argument("--cbx", type=int, default=4)
    ap.add_argument("--xsh", type=int, default=4)
    ap.add_argument("--krot", type=int, default=1)
    ap.add_argument("--wrot", type=int, default=0)
    ap.add_argument("--wdelay", type=int, default=0)
    ap.add_argument("--xpad", type=int, default=384)
    ap.add_argument("--wpf", default="")
    ap.add_argument("--g2prio2", type=int, default=0)
    ap.add_argument("--idelay", type=int, default=0)
    ap.add_argument("--nokp", type=int, default=0)
    ap.add_argument("--g2prio", type=int, default=3)
    ap.add_argument("--opol", default="")
    ap.add_argument("--wdw", type=int, default=1)
    ap.add_argument("--wdwait", type=int, default=0)
    ap.add_argument("--mark", type=int, default=25)
    ap.add_argument("--ssleep", type=int, default=6)
    ap.add_argument("--p1", type=int, default=16)
    ap.add_argument("--eat", type=int, default=7)
    ap.add_argument("--esleep", type=int, default=8)
    ap.add_argument("--xpol", default="")
    ap.add_argument("--wpol", default="")
    ap.add_argument("--lnpol", default=" nt")
    ap.add_argument("--ppol", default=" nt")
    ap.add_argument("--ra", type=int, default=0)
    ap.add_argument("--rb", type=int, default=0)
    ap.add_argument("--rc", type=int, default=0)
    ap.add_argument("--rm", type=int, default=7)
    ap.add_argument("--ldorder", type=int, default=0)
    ap.add_argument("--flagat", type=int, default=17)
    ap.add_argument("--j1", type=int, default=1)
    ap.add_argument("--j2", type=int, default=3)
    ap.add_argument("--j3", type=int, default=6)
    ap.add_argument("--j4", type=int, default=7)
    ap.add_argument("--rot2", type=int, default=1)
    ap.add_argument("--sigat", type=int, default=10)
    ap.add_argument("--preat", type=int, default=14)
    ap.add_argument("--sig7", type=int, default=1)
    ap.add_argument("--wpre", type=int, default=2)
    ap.add_argument("--lddelay", type=int, default=0)
    ap.add_argument("--lnsleep", type=int, default=2)
    ap.add_argument("--hsleep", type=int, default=2)
    ap.add_argument("--uat", type=int, default=8)
    ap.add_argument("--hflag_at", type=int, default=108)
    ap.add_argument("--hflag_ev", type=int, default=12)
    ap.add_argument("--wsig", type=int, default=5)
    ap.add_argument("--ahead", type=int, default=12)
    ap.add_argument("--hld", default=" sc1")
    ap.add_argument("--xld", default=" sc1")
    return ap

if __name__ == "__main__":
    o = parser().parse_args()
    WS_XNT += o.xsh * 128
    o.jobs = (1 << o.j1) | (1 << o.j2) | (1 << o.j3) | (1 << o.j4)
    open(o.o, "w").write(build(o))
```

```python
import re

def regs_of(tok):
    tok = tok.strip()
    tok = tok.lstrip('-')
    if tok.startswith('abs(') or tok.startswith('|'):
        tok = tok.replace('abs(', '').replace(')', '').replace('|', '')
    m = re.fullmatch(r'([vsa])(\d+)', tok)
    if m: return {(m.group(1), int(m.group(2)))}
    m = re.fullmatch(r'([vsa])\[(\d+):(\d+)\]', tok)
    if m: return {(m.group(1), i) for i in range(int(m.group(2)), int(m.group(3)) + 1)}
    if tok in ('vcc', 'vcc_lo', 'vcc_hi'): return {('x', 'vcc')}
    if tok in ('exec', 'exec_lo', 'exec_hi'): return {('x', 'exec')}
    if tok == 'm0': return {('x', 'm0')}
    return set()

TRANS = ('v_exp_f32', 'v_log_f32', 'v_rcp_f32', 'v_rsq_f32', 'v_sqrt_f32', 'v_sin_f32', 'v_cos_f32')

class Ins:
    def __init__(self, line):
        self.line = line
        s = line.split(';')[0].strip()
        self.op = s.split()[0] if s else ''
        rest = s[len(self.op):].strip()
        ops = []; depth = 0; cur = ''
        for ch in rest:
            if ch == '[': depth += 1
            if ch == ']': depth -= 1
            if ch == ',' and depth == 0: ops.append(cur.strip()); cur = ''
            else: cur += ch
        if cur.strip(): ops.append(cur.strip())
        self.mods = ''
        if ops:
            parts = ops[-1].split(None, 1)
            ops[-1] = parts[0]
            if len(parts) > 1: self.mods = parts[1]
        self.ops = ops
        op = self.op
        self.is_mfma = op.startswith('v_mfma')
        self.is_valu = op.startswith('v_') and not self.is_mfma
        self.is_salu = op.startswith('s_')
        self.is_ds = op.startswith('ds_')
        self.is_vmem = op.startswith('buffer_') or op.startswith('global_')
        self.is_trans = any(op.startswith(t) for t in TRANS)
        self.is_dot = op.startswith('v_dot')
        self.is_dpp = '_dpp' in op or 'row_' in self.mods or 'quad_perm' in self.mods or 'wave_' in self.mods
        self.is_perml = op.startswith('v_permlane')
        self.is_rdlane = op.startswith('v_readlane') or op.startswith('v_readfirstlane')
        self.is_ldsdma = self.is_vmem and (re.search(r'\blds\b', self.mods) is not None or 'load_lds' in op)
        self.w = set(); self.r = set()
        R = [regs_of(o) for o in ops]
        if self.is_mfma:
            self.w = R[0]; self.a = R[1]; self.b = R[2]; self.c = R[3]; self.r = R[1] | R[2] | R[3]
            self.passes = 8 if '32x32x16' in op else 4
        elif self.is_valu:
            if op.startswith('v_cmp'):
                self.w = R[0]; self.r = set().union(*R[1:])
            elif self.is_perml and 'swap' in op:
                self.w = R[0] | R[1]; self.r = R[0] | R[1]
            elif op.startswith('v_add_co') or op.startswith('v_addc_co') or op.startswith('v_sub_co'):
                self.w = R[0] | R[1]; self.r = set().union(*R[2:])
            elif op == 'v_nop':
                pass
            else:
                self.w = R[0]; self.r = set().union(*R[1:]) if len(R) > 1 else set()
                if op.startswith('v_fmac') or op.startswith('v_pk_fmac') or op.startswith('v_dot2c') or self.is_dpp or op.startswith('v_writelane'):
                    self.r |= R[0]
                if op.startswith('v_cndmask') and len(ops) == 3: self.r.add(('x', 'vcc'))
        elif self.is_ds:
            if op.startswith('ds_read') or op.startswith('ds_bpermute') or op.startswith('ds_swizzle') or '_rtn' in op:
                self.w = R[0]; self.r = set().union(*R[1:]) if len(R) > 1 else set()
            else:
                self.r = set().union(*R)
        elif self.is_vmem:
            if op.startswith('buffer_wbl2') or op.startswith('buffer_inv'):
                pass
            elif self.is_ldsdma:
                self.r = set().union(*R) | {('x', 'm0')}
            elif 'load' in op:
                self.w = R[0]; self.r = set().union(*R[1:])
                if 'd16' in op: self.r |= R[0]
            else:
                self.r = set().union(*R)
                if op.startswith('buffer_store'): self.data = R[0]
                else: self.data = R[1]
                self.wide = 'x3' in op or 'x4' in op
        elif self.is_salu:
            if op.startswith('s_cmp') or op.startswith('s_cbranch') or op in ('s_branch', 's_waitcnt', 's_barrier', 's_nop', 's_sleep', 's_endpgm', 's_setprio', 's_bitcmp1_b32', 's_bitcmp0_b32'):
                self.r = set().union(*R) if R else set()
                if 'vcc' in op: self.r.add(('x', 'vcc'))
            else:
                self.w = R[0] if R else set(); self.r = set().union(*R[1:]) if len(R) > 1 else set()
                if 'saveexec' in op: self.w = self.w | {('x', 'exec')}
    def states(self):
        if self.op == 's_nop': return int(self.ops[0], 0) + 1
        return 1

def need(p, c):
    n = 0
    vw = {x for x in p.w if x[0] in 'va'}
    sw = {x for x in p.w if x[0] == 's' or x == ('x', 'vcc')}
    if p.is_valu:
        if c.is_mfma and (vw & c.r): n = max(n, 3 if p.is_dot else 2)
        if c.is_rdlane and (vw & c.r): n = max(n, 1)
        if c.is_valu and c.is_dpp and (vw & c.r): n = max(n, 2)
        if c.is_perml and (vw & c.r): n = max(n, 2)
        if p.is_trans and (c.is_valu or c.is_mfma) and not c.is_trans and (vw & c.r): n = max(n, 1)
        if p.is_trans and (c.is_vmem or c.is_ds) and (vw & c.r): n = max(n, 1)
        if c.is_valu and (sw & c.r): n = max(n, 4 if (c.is_rdlane or c.op.startswith('v_writelane')) else 2)
        if c.is_vmem and (sw & c.r): n = max(n, 5)
        if c.is_salu and (sw & c.r): n = max(n, 1)
        if c.op.startswith('s_cbranch_vcc') and ('x', 'vcc') in p.w: n = max(n, 1)
        if ('x', 'exec') in p.w:
            if c.is_dpp: n = max(n, 5)
            if c.is_mfma or c.is_rdlane or c.is_perml: n = max(n, 4)
        if p.is_dot:
            same = c.op == p.op
            if (vw & (c.r | c.w)):
                if same and len(c.ops) == 4 and not (vw & (regs_of(c.ops[1]) | regs_of(c.ops[2]))): pass
                else: n = max(n, 3)
        if 'op_sel' in p.mods and not p.op.startswith('v_pk_') and c.is_valu and (vw & c.r): n = max(n, 1)
    if p.is_mfma:
        big = {4: 8, 8: 12}[p.passes]
        if c.is_mfma:
            if p.w & (c.a | c.b): n = max(n, big)
            if p.w & c.c:
                if not (c.c == p.w and c.passes == p.passes): n = max(n, {4: 6, 8: 10}[p.passes])
            elif p.w & c.w: n = max(n, big)
        elif (c.is_valu or c.is_vmem or c.is_ds) and (p.w & (c.r | c.w)): n = max(n, big)
        if c.is_valu and (p.c & c.w): n = max(n, {4: 3, 8: 7}[p.passes])
    if p.is_salu and ('x', 'm0') in p.w and (c.is_ldsdma or 'addtid' in c.op): n = max(n, 1)
    if p.is_salu and ('x', 'exec') in p.w and c.is_dpp: n = max(n, 1)
    if p.is_vmem and getattr(p, 'wide', False) and (p.data & c.w): n = max(n, 2)
    return n

def is_code(line):
    s = line.split(';')[0].strip()
    return bool(s) and not s.endswith(':') and not s.startswith('.')

def fix(lines, verbose=False):
    W = 24
    out = []
    hist = []
    def required(hist, ins):
        dist = 0; add = 0
        for p in reversed(hist[-W:]):
            n = need(p, ins)
            if n - dist > add: add = n - dist
            dist += p.states()
            if dist >= 20: break
        return add
    for line in lines:
        if not is_code(line):
            out.append(line); continue
        ins = Ins(line)
        add = required(hist, ins)
        if add > 0:
            if verbose: print("nop", add, "before", line.strip())
            nop = f"    s_nop {add-1}"
            out.append(nop); hist.append(Ins(nop))
        out.append(line); hist.append(ins)
        if ins.op in ('s_branch', 's_endpgm'): hist = [ins] if False else hist
    labels = {l.strip()[:-1]: i for i, l in enumerate(out) if l.strip().endswith(':') and not l.strip().startswith(';')}
    problems = []
    for i, l in enumerate(out):
        if not is_code(l): continue
        ins = Ins(l)
        if ins.op.startswith('s_cbranch') or ins.op == 's_branch':
            tgt = ins.ops[0]
            if tgt not in labels: continue
            h = [Ins(x) for x in out[max(0, i - W):i + 1] if is_code(x)]
            j = labels[tgt]; cnt = 0
            while j < len(out) and cnt < 20:
                if is_code(out[j]):
                    c = Ins(out[j])
                    add = required(h, c)
                    if add > 0: problems.append((l.strip(), out[j].strip(), add))
                    h.append(c); cnt += c.states()
                    if c.op in ('s_branch', 's_endpgm'): break
                j += 1
    return out, problems


def check_paths(lines, horizon=22):
    code = []; labels = {}
    for l in lines:
        t = l.split(';')[0].strip()
        if t.endswith(':'): labels[t[:-1]] = len(code)
        elif is_code(l): code.append(Ins(l))
    def succ(i):
        ins = code[i]
        if ins.op == 's_endpgm': return []
        if ins.op == 's_branch': return [labels[ins.ops[0]]]
        if ins.op.startswith('s_cbranch'): return [i + 1, labels[ins.ops[0]]]
        return [i + 1]
    bad = set()
    for i, p in enumerate(code):
        if not (p.is_valu or p.is_mfma or p.is_vmem or (p.is_salu and p.w)): continue
        best = {}
        stack = [(j, 0) for j in succ(i)]
        while stack:
            j, d = stack.pop()
            if j >= len(code) or d >= horizon: continue
            if best.get(j, 99) <= d: continue
            best[j] = d
            n = need(p, code[j])
            if n > d: bad.add((p.line.strip(), code[j].line.strip(), n - d))
            for k in succ(j): stack.append((k, d + code[j].states()))
    return sorted(bad)
```

```python
import sys, argparse, struct
sys.path.insert(0, "gen")
import hz

KN = "recurrent_scan__ssm_conv_s4d__swiglu_ffn__prompt_kernel"
WS_EPOCH = 0x0
WS_FLG   = 0x2000
WS_FHL   = 0x3000
WS_FHG   = 0x4000
WS_STATS = 0x8000
WS_CS    = 0xC000
WS_XNT   = 0x200000
WS_ST    = 0xC00000
WS_H     = 0x610000
WS_STAMP = 0x1000000
WS_BYTES = 268435456
SLOT = 40960
L_CONV = 3 * SLOT
KROW = 272
CONV_SZ = 2 * 32 * KROW
L_FLAGS = L_CONV + 2 * CONV_SZ
L_EPI = L_FLAGS + 256
L_TRACE = L_EPI + 512 + 768
LDS_BYTES = L_TRACE
F_FULL, F_FREE, F_NONCE, F_LN, F_KD, F_KR, F_CA, F_CB, F_SS, F_BD, F_EP, F_KP, F_PR, F_PG, F_PD, F_HD = 0, 16, 32, 48, 64, 72, 80, 96, 112, 128, 136, 144, 160, 176, 192, 208
KT_O, U_OFF, S_OFF = 4160, 8320, 12928
WBYTES = 512 * 1376 * 2
LOG2E = 0x3FB8AA3B

class G:
    def __init__(self, o):
        self.o = o; self.L = []; self.n = 0
    def __call__(self, s):
        for l in s.strip("\n").split("\n"):
            l = l.strip()
            if not l: continue
            self.L.append(l if l.endswith(":") or l.startswith(".") else "    " + l)
    def lab(self, p="L"):
        self.n += 1; return f"{p}{self.n}"
    def srd(self, d, b, nbytes):
        self(f"s_mov_b32 s{d}, s{b}\ns_and_b32 s{d+1}, s{b+1}, 0xffff\ns_mov_b32 s{d+2}, {nbytes}\ns_mov_b32 s{d+3}, 0x00020000")
    def stamp(self, i, force=False):
        if self.o.stg and i >= 8 and not force: return
        if self.o.stamps: self(f"{'s_memtime' if self.o.cyc else 's_memrealtime'} s[{68+2*i}:{69+2*i}]")
    def put_stamps(self):
        if not self.o.stamps or self.o.probe >= 0: return
        self(f"""s_waitcnt vmcnt(0) lgkmcnt(0)
s_lshl_b32 s64, s2, 3
s_add_u32 s64, s64, s3
s_lshl_b32 s64, s64, 7
s_add_u32 s64, s64, {WS_STAMP}
s_mov_b64 exec, 1
v_mov_b32 v2, 0""")
        for i in range(16):
            self(f"v_mov_b32 v4, s{68+2*i}\nv_mov_b32 v5, s{69+2*i}\nbuffer_store_dwordx2 v[4:5], v2, s[40:43], s64 offen offset:{8*i}\ns_nop 1")
        self("s_waitcnt vmcnt(0)")
    def tr_init(self):
        if self.o.trace: self(f"s_lshl_b32 s96, s3, 8\ns_add_u32 s96, s96, {L_TRACE}\nv_mov_b32 v150, s96\nv_lshl_add_u32 v151, v0, 2, v150\nv_mov_b32 v23, 0\nds_write_b32 v151, v23\ns_mov_b32 s95, s96")
    def tr_a(self):
        return ["s_memtime s[96:97]"] if self.o.trace else []
    def tr_b(self, tag):
        return [f"s_lshl_b32 s96, s96, 4", f"s_or_b32 s96, s96, {tag}", "v_mov_b32 v252, s96", "v_mov_b32 v253, s95", "ds_write_b32 v253, v252", "s_add_u32 s95, s95, 4"] if self.o.trace else []
    def trace(self, tag):
        if self.o.trace and tag not in (2, 5, 6, 7, 8):
            for x in self.tr_a() + ["s_waitcnt lgkmcnt(0)"] + self.tr_b(tag): self(x)
    def tr_dump(self):
        if self.o.trace:
            self(f"""s_mov_b64 exec, -1
s_waitcnt lgkmcnt(0)
s_lshl_b32 s96, s3, 8
s_add_u32 s96, s96, {L_TRACE}
v_lshl_add_u32 v254, v0, 2, s96
ds_read_b32 v252, v254
s_lshl_b32 s96, s2, 3
s_add_u32 s96, s96, s3
s_lshl_b32 s96, s96, 8
s_add_u32 s96, s96, {WS_STAMP + 0x100000}
v_lshlrev_b32 v253, 2, v0
s_waitcnt lgkmcnt(0)
buffer_store_dword v252, v253, s[40:43], s96 offen""")
    def tmo(self, back):
        self(f"s_sub_u32 s55, s55, 1\ns_max_i32 s55, s55, 0\ns_cmp_lg_u32 s55, 0\ns_cbranch_scc1 {back}")
    def lds_wait(self, addr, off, n, cmp, val, sleep=0, t=16):
        l = self.lab("Lw")
        rd = {1: f"ds_read_b32 v{t}", 2: f"ds_read_b64 v[{t}:{t+1}]", 4: f"ds_read_b128 v[{t}:{t+3}]"}[n]
        self(f"{l}:\n{rd}, {addr} offset:{off}\ns_waitcnt lgkmcnt(0)")
        if n >= 2: self(f"v_min_u32 v{t}, v{t}, v{t+1}")
        if n == 4: self(f"v_min3_u32 v{t}, v{t}, v{t+2}, v{t+3}")
        self(f"v_readfirstlane_b32 s67, v{t}\ns_cmp_{cmp}_u32 s67, {val}\ns_cbranch_scc1 {l}d")
        if sleep: self(f"s_sleep {sleep}")
        self.tmo(l)
        self(f"{l}d:")
    def lds_wait2(self, addr, off, val, sleep=0, t=16, pre=False, label=None):
        l = label or self.lab("Lv")
        if not pre: self(f"{l}:\nds_read_b32 v{t}, {addr} offset:{off}")
        else: self(f"{l}:")
        self(f"s_waitcnt lgkmcnt(0)\nv_cmp_gt_u32 vcc, {val}, v{t}\ns_cbranch_vccz {l}d")
        if sleep: self(f"s_sleep {sleep}")
        if pre: self(f"ds_read_b32 v{t}, {addr} offset:{off}")
        self.tmo(l)
        self(f"{l}d:")
    def flag_wait(self, vloc, vglob, soff, tries, sleep=0, t=20):
        l = self.lab("Lf")
        self(f"""s_mov_b32 s66, 0
{l}:
buffer_load_dword v{t}, {vloc}, s[40:43], {soff} offen sc1
s_add_u32 s66, s66, 1
s_cmp_le_u32 s66, {tries}
s_cbranch_scc1 {l}a
buffer_load_dword v{t+1}, {vglob}, s[40:43], {soff} offen sc1
s_waitcnt vmcnt(0)
v_cmp_eq_u32 vcc, s52, v{t+1}
v_cndmask_b32 v{t}, v{t}, v{t+1}, vcc
{l}a:
s_waitcnt vmcnt(0)
v_cmp_ne_u32 vcc, s52, v{t}
s_cbranch_vccz {l}d""")
        if sleep: self(f"s_sleep {sleep}")
        self.tmo(l)
        self(f"{l}d:")

MAP = {3: """s_and_b32 s56, s4, 3
s_lshr_b32 s57, s4, 2
s_and_b32 s58, s5, 3
s_lshl_b32 s6, s56, 2
s_add_u32 s6, s6, s58
s_lshr_b32 s7, s5, 2
s_mul_i32 s59, s57, 7
s_add_u32 s7, s7, s59
s_lshr_b32 s60, s58, 1
s_cmp_lg_u32 s60, s57
s_cselect_b32 s60, 7, -1
s_lshl_b32 s56, s56, 1
s_add_u32 s56, s56, s59
s_and_b32 s58, s58, 1
s_add_u32 s56, s56, s58
s_cmp_eq_u32 s7, s60
s_cselect_b32 s7, s56, s7
s_cselect_b32 s32, 1, 0
s_and_b32 s53, s4, 3
s_lshl_b32 s53, s53, 1
s_add_u32 s53, s53, s57
s_lshl_b32 s53, s53, 5
s_add_u32 s53, s53, s5
s_and_b32 s33, s5, 3
s_lshr_b32 s57, s53, 5
s_lshl_b32 s57, s57, 2
s_add_u32 s33, s33, s57""",
2: """s_and_b32 s6, s5, 1
s_lshl_b32 s7, s4, 1
s_add_u32 s6, s6, s7
s_lshr_b32 s7, s5, 1
s_cmp_eq_u32 s7, 15
s_cselect_b32 s7, s6, s7
s_cselect_b32 s32, 1, 0
s_lshl_b32 s53, s4, 5
s_add_u32 s53, s53, s5
s_and_b32 s33, s5, 3
s_lshl_b32 s57, s4, 2
s_add_u32 s33, s33, s57"""}

def prologue(A):
    o = A.o
    A(f"""s_cmp_ge_u32 s2, 256
s_cbranch_scc1 L_exit
v_lshrrev_b32 v1, 6, v0
v_and_b32 v0, 63, v0
v_readfirstlane_b32 s3, v1
v_mov_b32 v15, {L_FLAGS}
s_xor_b32 s3, s3, {o.rolex}
s_cmp_lg_u32 s3, 5
s_cbranch_scc1 L_noinit
v_mov_b32 v2, 0
v_lshl_add_u32 v3, v0, 2, v15
ds_write_b32 v3, v2""")
    if o.codepf:
        A(f"""s_getpc_b64 s[56:57]
L_pc:
s_lshr_b32 s58, s2, 3
s_lshl_b32 s58, s58, 10
v_lshl_add_u32 v3, v0, 7, s58
v_min_u32 v3, L_codeend-L_pc-4, v3
s_mov_b64 exec, 0xff
global_load_dword v255, v3, s[56:57]
s_mov_b64 exec, -1""")
    A(f"""s_waitcnt lgkmcnt(0)
L_noinit:
s_load_dwordx16 s[8:23], s[0:1], 0
s_load_dwordx8 s[24:31], s[0:1], 64
s_load_dwordx2 s[34:35], s[0:1], 104""")
    A.stamp(0)
    A(f"""s_and_b32 s4, s2, 7
s_lshr_b32 s5, s2, 3
{MAP[o.map]}
s_mov_b32 s55, {o.tmo}
s_barrier
s_cmp_ge_u32 s3, 4
s_cbranch_scc1 L_p47""")
    if o.gprio: A(f"s_setprio {o.gprio}")
    kpart_loads(A)
    A("s_branch L_gemm\nL_p47:\ns_cmp_ge_u32 s3, 6\ns_cbranch_scc1 L_loader")
    aux_loads(A)
    A("s_branch L_kgen")

def sync_in(A, barrier=False):
    A("s_waitcnt lgkmcnt(0)")
    A.srd(40, 34, WS_BYTES)
    A.tr_init(); A.trace(0)
    A.stamp(1)

def get_nonce(A):
    A.lds_wait("v15", F_NONCE, 1, "lg", 0)
    A("s_mov_b32 s52, s67")

def rot2(A, d, t):
    if A.o.rot2 == 0:
        A(f"s_mov_b32 s{d}, 0"); return
    A(f"""s_and_b32 s{d}, s5, 3
s_mul_i32 s{d}, s{d}, 11
s_lshr_b32 s{t}, s5, 2
s_add_u32 s{t}, s{t}, s4
s_and_b32 s{t}, s{t}, 7
s_mul_i32 s{t}, s{t}, 5
s_add_u32 s{d}, s{d}, s{t}
s_cmp_ge_u32 s{d}, 43
s_cselect_b32 s{t}, 43, 0
s_sub_u32 s{d}, s{d}, s{t}""")

def loader(A):
    o = A.o
    A("L_loader:\ns_sub_u32 s54, s3, 6")
    A(f"""v_lshrrev_b32 v3, 2, v0
v_mul_u32_u24 v3, 2752, v3
v_and_b32 v7, 3, v0
v_lshrrev_b32 v1, 5, v0
v_lshlrev_b32 v1, 1, v1
v_xor_b32 v7, v1, v7
v_lshl_add_u32 v7, v7, 4, v3
v_lshrrev_b32 v1, 3, v0
v_lshlrev_b32 v2, 10, v1
v_and_b32 v5, 7, v0
v_lshrrev_b32 v6, 4, v0
s_lshl_b32 s56, s54, 2
v_add_u32 v6, s56, v6
v_and_b32 v6, 7, v6
v_xor_b32 v6, v5, v6
v_lshl_add_u32 v6, v6, 4, v2
v_add_u32 v9, s56, v15
s_lshl_b32 s57, s6, 17
s_lshl_b32 s56, s54, 13
s_add_u32 s57, s57, s56
s_cmp_eq_u32 s32, 1
s_cselect_b32 s57, 0x40000000, s57
s_mul_i32 s58, s7, {0 if o.samefc else 192}
s_cmp_eq_u32 s7, 15
s_cselect_b32 s58, 0x40000000, s58
s_cmp_eq_u32 s7, 14
s_cselect_b32 s52, 0x40000000, 0
s_lshl_b32 s59, s54, 10
s_mul_i32 s60, s54, 12288
s_add_u32 s60, s60, 16384
s_and_b32 s63, s5, {3 if o.map == 3 else 1}
s_mul_i32 s63, s63, {o.ra}
s_mul_i32 s56, s4, {o.rb}
s_add_u32 s63, s63, s56
s_mul_i32 s56, s7, {o.rc}
s_add_u32 s63, s63, s56
s_and_b32 s63, s63, {o.rm}
s_cmp_eq_u32 s32, 1
s_cselect_b32 s63, {o.irot}, s63
s_mov_b32 s61, 0
s_mov_b32 s62, 0
s_mov_b32 s66, 0
v_and_b32 v11, 3, v0
v_lshl_add_u32 v11, v11, 2, v15
v_mov_b32 v10, 0
v_mov_b32 v16, 0
s_lshl_b32 s56, s7, 4
s_add_u32 s56, s56, s6
s_lshl_b32 s56, s56, 1
s_add_u32 s56, s56, s54
v_mul_u32_u24 v14, 480, v0
v_add_u32 v14, s56, v14
v_lshlrev_b32 v14, 7, v14
v_and_b32 v8, 2, v1
v_lshlrev_b32 v8, 1, v8
v_xor_b32 v8, v5, v8
v_lshl_add_u32 v8, v8, 4, v2""")
    if o.g2s == 0:
        gemm2_setup(A)
        A("s_mov_b32 s66, 0")
    sync_in(A)
    A("""s_cmp_eq_u32 s54, 1
s_cselect_b32 s24, s26, s24
s_cselect_b32 s25, s27, s25""")
    A.srd(36, 8, 2097152)
    A.srd(44, 24, WBYTES)
    A.srd(20, 28, WBYTES)
    def warm(a, b):
        A(f"""v_lshlrev_b32 v12, 8, v0
v_add_u32 v12, s2, v12
v_cmp_gt_u32 vcc, {1376*(b-a)}, v12
v_lshlrev_b32 v12, 7, v12
v_cndmask_b32 v12, 2.0, v12, vcc
s_mov_b32 s56, {1376*a*128}
buffer_load_dword v13, v12, s[44:47], s56 offen""")
    warms = {}
    for spec in o.warm.split(","):
        if spec:
            at, a, b = [int(x) for x in spec.split(":")]
            warms[at] = (a, b)
    if 0 in warms: warm(*warms[0])
    if o.wdw == 9:
        A("""s_cmp_eq_u32 s32, 1
s_cbranch_scc1 L_ld_nw9
s_mov_b64 exec, 0x7fffff
buffer_load_dword v13, v14, s[20:23], 0 offen
s_mov_b64 exec, -1
L_ld_nw9:""")
    if o.ldprio: A(f"s_setprio {o.ldprio}")
    if o.lddelay: A(f"s_sleep {o.lddelay}")
    def sig(n, val=None):
        if val is not None: A(f"v_mov_b32 v10, {val}")
        A(f"s_waitcnt vmcnt({n})\nds_write_b32 v9, v10")
    def pre_free():
        A(f"v_add_u32 v10, 1, v10\nds_read_b32 v16, v11 offset:{F_FREE}")
    def wait_free():
        A.lds_wait2("v11", F_FREE, "s66", sleep=1, pre=True)
    def advance():
        A(f"""s_sub_i32 s66, s61, 1
s_max_i32 s66, s66, 0
s_add_u32 s61, s61, 1
s_add_u32 s62, s62, {SLOT}
s_cmp_eq_u32 s62, {3*SLOT}
s_cselect_b32 s62, 0, s62""")
    def wd_warm_idle():
        A(f"""v_lshlrev_b32 v14, 4, v0
v_add_u32 v14, s6, v14
v_lshlrev_b32 v14, 7, v14
s_mul_i32 s56, s54, {43*16*1024}""")
        for k in range(6):
            if k == 5: A("s_mov_b64 exec, 0xffffff")
            A(f"buffer_load_dword v13, v14, s[20:23], s56 offen\ns_add_u32 s56, s56, {1024*128}")
        A("s_mov_b64 exec, -1")
    A(f"""s_cmp_eq_u32 s32, 0
s_cbranch_scc1 L_ld_st""")
    if o.wdw == 11:
        for at in sorted(warms):
            if at: warm(*warms[at])
        if o.idelay: A(f"s_sleep {o.idelay}")
        wd_warm_idle()
    A("L_lc_st:")
    wait_free()
    A(f"""s_mul_i32 s50, s63, {64*2752}
s_add_u32 s50, s50, s58
s_add_u32 s51, s50, s52
s_add_u32 s49, s62, s60""")
    for n in range(12):
        kg, jj = n // 3, n % 3
        if n == 8:
            sig(n)
            for at in sorted(warms):
                if at == 0 or o.wdw == 11: continue
                l = A.lab("Lwm")
                A(f"s_cmp_lg_u32 s61, {at-1}\ns_cbranch_scc1 {l}")
                warm(*warms[at])
                A(f"{l}:")
        if n == 9: pre_free()
        A(f"s_add_u32 m0, s49, {jj*4096+kg*1024}\ns_add_u32 s56, s{50 if jj == 0 else 51}, {kg*16*2752+jj*64}\nbuffer_load_dwordx4 v7, s[44:47], s56 offen{o.wpol} lds")
    A(f"s_add_u32 s63, s63, {o.idir & 7}\ns_and_b32 s63, s63, 7")
    advance()
    A("s_cmp_lt_u32 s61, 8\ns_cbranch_scc1 L_lc_st")
    A.lds_wait("v15", F_BD, 2, "lg", 0, sleep=1, t=18)
    sig(0)
    A.lds_wait("v15", F_EP, 2, "lg", 0, sleep=1, t=18)
    if o.wdw == 10: wd_warm_idle()
    A("s_branch L_ld_e\nL_ld_st:")
    wait_free()
    A.trace(5)
    A(f"""s_lshl_b32 s64, s63, 7
s_add_u32 s64, s64, s57
s_add_u32 s65, s62, s59
s_mul_i32 s50, s63, {64*2752}
s_add_u32 s50, s50, s58
s_add_u32 s51, s50, s52
s_add_u32 s49, s62, s60""")
    items = [("x", t) for t in (5, 6, 7)] + [("w", kg, jj) for kg in range(4) for jj in range(3)] + [("x", t) for t in range(5)]
    if o.ldorder == 1: items = items[3:15] + items[:3] + items[15:]
    if o.oob: A("s_mov_b32 s64, 0x40000000\ns_mov_b32 s50, s64\ns_mov_b32 s51, s64")
    for n, it in enumerate(items):
        if n == o.sigat:
            A.trace(6); sig(n); A.trace(7)
            for at in sorted(warms):
                if at == 0: continue
                l = A.lab("Lwm")
                A(f"s_cmp_lg_u32 s61, {at-1}\ns_cbranch_scc1 {l}")
                warm(*warms[at])
                A(f"{l}:")
        if n == o.sigat and 0 < o.wdw < 8:
            A(f"""s_cmp_lg_u32 s61, {o.wdw}
s_cbranch_scc1 L_ld_nw
s_mov_b64 exec, 0x7fffff
buffer_load_dword v13, v14, s[20:23], 0 offen
s_mov_b64 exec, -1
L_ld_nw:""")
        if n == o.preat:
            pre_free()
            for x in A.tr_a(): A(x)
        if n == 2:
            for x in A.tr_b(5): A(x)
        if it == ("x", 0) and not o.nokp:
            A("s_cmp_lg_u32 s61, 2\ns_cbranch_scc1 L_ld_nb")
            A.lds_wait("v15", F_BD, 2, "lg", 0, sleep=1, t=18)
            A("L_ld_nb:")
        if o.noload: continue
        if it[0] == "x":
            t = it[1]
            A(f"s_add_u32 m0, s65, {t*2048}\ns_add_u32 s56, s64, {t*16384}\nbuffer_load_dwordx4 v6, s[36:39], s56 offen{o.xpol} lds")
        else:
            _, kg, jj = it
            A(f"s_add_u32 m0, s49, {jj*4096+kg*1024}\ns_add_u32 s56, s{50 if jj == 0 else 51}, {kg*16*2752+jj*64}\nbuffer_load_dwordx4 v7, s[44:47], s56 offen{o.wpol} lds")
    A.trace(8)
    A("s_add_u32 s63, s63, 1\ns_and_b32 s63, s63, 7")
    advance()
    if o.stamps:
        A("s_cmp_lg_u32 s61, 1\ns_cbranch_scc1 L_ld_s1"); A.stamp(2); A("L_ld_s1:")
        A("s_cmp_lg_u32 s61, 3\ns_cbranch_scc1 L_ld_s2"); A.stamp(3); A("L_ld_s2:")
    A("s_cmp_lt_u32 s61, 8\ns_cbranch_scc1 L_ld_st")
    A("L_ld_e:")
    A.stamp(4)
    if o.g2s == 1:
        A("s_setprio 3\ns_mov_b32 s64, s66")
        gemm2_setup(A)
        A(f"s_mov_b32 s66, s64\ns_setprio {o.wprio}")
    if o.sig7: sig(0)
    if o.wdelay: A(f"s_sleep {o.wdelay}")
    if o.wdw == 8:
        A("""s_cmp_eq_u32 s32, 1
s_cbranch_scc1 L_ld_nw8
s_mov_b64 exec, 0x7fffff
buffer_load_dword v13, v14, s[20:23], 0 offen
s_mov_b64 exec, -1
L_ld_nw8:""")
    A.trace(9); A.tr_dump()
    A(f"""s_lshr_b32 s57, s5, 2
s_xor_b32 s57, s57, {A.o.cbx}
s_lshl_b32 s57, s57, 7
s_mul_i32 s58, s54, {43*16*1024}
s_add_u32 s57, s57, s58
s_mul_i32 s59, s54, 20480
s_and_b32 s13, s5, 3
s_mul_i32 s13, s13, 5
s_lshr_b32 s13, s13, 1
s_lshl_b32 s13, s13, 11""")
    for b0 in o.wpf.split(","):
        if not b0: continue
        b0 = int(b0); nrow = min(64, (43 - b0) * 4)
        A(f"""s_and_b32 s56, s5, 3
v_lshl_add_u32 v14, v0, 2, s56
v_lshlrev_b32 v14, 10, v14
s_add_u32 s56, s57, {b0*16384}
s_mov_b32 exec_hi, {hex(((1 << nrow) - 1) >> 32)}
buffer_load_dword v13, v14, s[20:23], s56 offen sc1
s_mov_b64 exec, -1""")
    if o.wdwait == 1: A.lds_wait("v15", F_KR, 2, "lg", 0, sleep=2, t=18)
    if o.wdwait == 2: A.lds_wait("v15", F_EP, 2, "lg", 0, sleep=1, t=18)
    A("L_ld_wc:")
    wait_free()
    if 0 < o.pause < 3:
        A(f"s_cmp_lg_u32 s61, {8+o.pause}\ns_cbranch_scc1 L_ld_np\ns_cmp_eq_u32 s32, 1\ns_cbranch_scc1 L_ld_np")
        sig(0)
        A.lds_wait2("v11", F_HD, 1, sleep=2, t=18)
        A("L_ld_np:")
    A("s_add_u32 s65, s62, s59")
    for i in range(10):
        if i == o.wsig: sig(2*i)
        if i == 8: pre_free()
        wd_block(A, i, o.wrot)
    A(f"s_add_u32 s57, s57, {10*16384}")
    advance()
    A("s_cmp_lt_u32 s61, 11\ns_cbranch_scc1 L_ld_wc")
    A.stamp(5)
    A("s_branch L_g2")

def wd_block(A, i, rot=False):
    if rot:
        A(f"""s_add_u32 m0, s65, s13
s_lshl_b32 s56, s13, 3
s_add_u32 s56, s56, s57
buffer_load_dwordx4 v8, s[20:23], s56 offen lds
s_add_u32 m0, m0, 1024
s_add_u32 s56, s56, 8192
s_add_u32 s13, s13, 2048
buffer_load_dwordx4 v8, s[20:23], s56 offen lds
s_cmp_eq_u32 s13, 20480
s_cselect_b32 s13, 0, s13""")
        return
    A(f"""s_add_u32 m0, s65, {i*2048}
s_add_u32 s56, s57, {i*16384}
buffer_load_dwordx4 v8, s[20:23], s56 offen lds
s_add_u32 m0, s65, {i*2048+1024}
s_add_u32 s56, s57, {i*16384+8192}
buffer_load_dwordx4 v8, s[20:23], s56 offen lds""")

BOUNCE = 2 * SLOT
def kpart_loads(A):
    o = A.o
    A(f"""s_and_b32 s60, s3, 1
s_lshr_b32 s61, s3, 1
s_lshl_b32 s56, s53, 1
s_add_u32 s56, s56, s61
s_lshl_b32 s57, s56, 8
s_lshl_b32 s58, s60, 7
s_add_u32 s57, s57, s58
v_lshl_add_u32 v16, v0, 1, s57
s_lshl_b32 s57, s56, 1
v_mov_b32 v17, s57""")
    sync_in(A)
    A(f"""global_load_short_d16_hi v20, v16, s[10:11]{o.ppol}
global_load_short_d16_hi v21, v17, s[18:19]
global_load_short_d16_hi v22, v16, s[12:13]{o.ppol}
global_load_short_d16_hi v24, v16, s[14:15]{o.ppol}
global_load_short_d16_hi v25, v16, s[16:17]{o.ppol}""")

def kpart(A):
    o = A.o
    A(f"""s_mul_i32 s58, s3, {32*KROW}
s_add_u32 s58, s58, {L_CONV}
v_lshl_add_u32 v16, v0, 2, s58
v_and_b32 v17, 31, v0
v_mul_u32_u24 v17, {KROW}, v17
v_lshrrev_b32 v18, 5, v0
v_lshl_add_u32 v17, v18, 4, v17
v_add_u32 v17, s58, v17
v_lshl_add_u32 v18, v0, 4, s58
s_mov_b32 s59, {LOG2E}
s_mov_b32 s56, 0x3e22f983
s_waitcnt vmcnt(3)""")
    A.stamp(2)
    A("""v_and_b32 v20, 0xffff0000, v20
v_and_b32 v21, 0xffff0000, v21
v_mul_f32 v20, s59, v20
v_mul_f32 v21, s59, v21
v_exp_f32 v20, v20
v_exp_f32 v21, v21
v_cvt_pk_bf16_f32 v20, v20, v21
v_and_b32 v21, 0xffff0000, v20
v_lshlrev_b32 v20, 16, v20
v_mul_f32 v20, v20, v21
v_mul_f32 v20, s59, v20
s_waitcnt vmcnt(2)
v_and_b32 v22, 0xffff0000, v22
v_mul_f32 v22, v22, v21
v_mul_f32 v22, s56, v22""")
    Z1, Z8, Z256, Z2, Z4, Z32 = 128, 130, 132, 134, 136, 138
    zs = ((Z8, 8.0), (Z1, 1.0), (Z256, 256.0))
    for n, (dst, p) in enumerate(zs):
        pf = struct.unpack("<I", struct.pack("<f", p))[0]
        A(f"v_mul_f32 v{26+n}, {hex(pf ^ 0x80000000)}, v20\nv_mul_f32 v{29+n}, {hex(pf)}, v22")
    for n in range(3): A(f"v_exp_f32 v{26+n}, v{26+n}\nv_fract_f32 v{29+n}, v{29+n}")
    for n, (dst, p) in enumerate(zs): A(f"v_cos_f32 v{dst}, v{29+n}\nv_sin_f32 v{dst+1}, v{29+n}")
    for n, (dst, p) in enumerate(zs): A(f"v_mul_f32 v{dst}, v{dst}, v{26+n}\nv_mul_f32 v{dst+1}, v{dst+1}, v{26+n}")
    TM = 140
    PK = 152
    pk = [0]
    def cms(ops):
        for n, (d, a, z) in enumerate(ops):
            A(f"v_pk_mul_f32 v[{TM+2*n}:{TM+2*n+1}], v[{a}:{a+1}], v[{z}:{z+1}] op_sel:[0,0] op_sel_hi:[0,1]")
        for n, (d, a, z) in enumerate(ops):
            A(f"v_pk_fma_f32 v[{d}:{d+1}], v[{a}:{a+1}], v[{z}:{z+1}], v[{TM+2*n}:{TM+2*n+1}] op_sel:[1,1,0] op_sel_hi:[1,0,1] neg_lo:[1,0,0]")
    def puts(items, neg):
        ts = []
        for src, rows in items:
            t = PK + pk[0] % 8; pk[0] += 1; ts.append(t)
            A(f"v_cvt_pk_bf16_f32 v{t}, v{src}, {'-' if neg else ''}v{src+1}")
        for t, (src, rows) in zip(ts, items):
            for r in rows: A(f"ds_write_b32 v16, v{t} offset:{r*KROW}")
    E = 160
    C = 180
    A(f"""s_waitcnt vmcnt(0)
v_add_f32 v21, v21, v21
v_and_b32 v24, 0xffff0000, v24
v_and_b32 v25, 0xffff0000, v25
v_mov_b32 v19, 0x3f80
v_mul_f32 v{E}, v24, v21
v_mul_f32 v{E+1}, v25, v21
ds_write_b32 v16, v19""")
    cms([(C+2, Z8, Z8), (Z2, Z1, Z1), (E+2, E, Z1), (E+16, E, Z8)])
    cms([(C+4, C+2, Z8), (Z32, C+2, C+2), (Z4, Z2, Z2), (E+4, E, Z2), (E+6, E+2, Z2)])
    puts([(Z8, [1]), (C+2, [2]), (C+4, [3]), (Z32, [4])], False)
    cms([(C, Z8, Z32), (C+2, C+2, Z32), (C+4, C+4, Z32), (C+6, Z32, Z32)])
    for j0 in range(5, 32, 4):
        n = min(4, 32 - j0)
        puts([(C+2*c, [j0+c]) for c in range(n)], False)
        n2 = min(4, 32 - j0 - 4)
        if n2 > 0: cms([(C+2*c, C+2*c, Z32) for c in range(n2)])
    cms([(E+8+2*i, E+2*i, Z4) for i in range(4)])
    RF, LF = 192, 224
    A("s_waitcnt lgkmcnt(0)")
    for k in range(8): A(f"ds_read_b128 v[{RF+4*k}:{RF+4*k+3}], v17 offset:{32*k}")
    def row(reg, hf): return 8 * (reg >> 2) + 4 * hf + (reg & 3)
    for i in range(8): A(f"v_cvt_pk_bf16_f32 v{PK+i}, v{E+2*i}, -v{E+2*i+1}")
    A(f"v_cvt_pk_bf16_f32 v19, v{E+16}, -v{E+17}")
    cms([(E+2*i, E+2*i, Z256) for i in (0, 2, 4, 6, 8)])
    A("s_waitcnt lgkmcnt(0)")
    for i in range(8): A(f"ds_write_b32 v16, v{PK+i} offset:{row(i, 0)*KROW}")
    A(f"ds_write_b32 v16, v19 offset:{row(8, 0)*KROW}")
    dup = {0: [0, 1], 2: [2], 4: [3, 4, 5], 6: [6], 8: [7, 8]}
    cms([(Z2, Z256, Z256)] + [(C+2*n, E+2*i, Z256) for n, i in enumerate((0, 4, 8))])
    puts([(E+2*i, [row(r, 1) for r in dup[i]]) for i in (0, 2, 4, 6, 8)], True)
    cms([(E+2*i, E+2*i, Z2) for i in (0, 4, 8)] + [(E+2, C, Z2), (E+6, C+4, Z2)])
    puts([(C+2*n, [row(9+n, 0)]) for n in range(3)], True)
    cms([(C, E, Z2), (C+2, E+16, Z2), (C+4, E+2, Z2), (C+6, E+6, Z2)])
    puts([(E+2*i, [row(9+n, 1)]) for n, i in enumerate((0, 4, 8))] + [(E+2, [row(12, 0)]), (E+6, [row(13, 0)])], True)
    cms([(E, C, Z2), (E+16, C+2, Z2)])
    puts([(C, [row(12, 1)]), (C+2, [row(13, 1)]), (C+4, [row(14, 0)]), (C+6, [row(15, 0)])], True)
    puts([(E, [row(14, 1)]), (E+16, [row(15, 1)])], True)
    A("s_waitcnt lgkmcnt(0)")
    for k in range(8): A(f"ds_read_b128 v[{LF+4*k}:{LF+4*k+3}], v17 offset:{32*k}")
    D = 128
    for k in range(8):
        A(f"s_waitcnt lgkmcnt({7-k})")
        c = "0" if k == 0 else f"v[{D}:{D+15}]"
        A(f"v_mfma_f32_32x32x16_bf16 v[{D}:{D+15}], v[{LF+4*k}:{LF+4*k+3}], v[{RF+4*k}:{RF+4*k+3}], {c}")
    for q in range(4): A(f"ds_write_b128 v18, v[{D+4*q}:{D+4*q+3}] offset:{1024*q}")
    A(f"""v_mov_b32 v12, 1
s_waitcnt lgkmcnt(0)
ds_write_b32 v13, v12 offset:{F_KP}""")
    A.stamp(3)

ACC = 32
def acc(i, jn): return ACC + 4 * (4 * jn + i)
BUF = (128, 168)
R1B, R1A = 208, 224
def g1_reads(buf, ks):
    b = BUF[buf]; L = []
    def w(jn):
        for t in range(2):
            L.append(f"ds_read_b64_tr_b16 v[{b+16+4*jn+2*t}:{b+16+4*jn+2*t+1}], v{4+jn//2} offset:{(jn&1)*12288+ks*2048+t*256}")
    w(0)
    for i in range(4): L.append(f"ds_read_b128 v[{b+4*i}:{b+4*i+3}], v{2+ks} offset:{i*2048}")
    for jn in range(1, 6): w(jn)
    return L
def g1_mm(A, buf, fill, k0=0, k1=24):
    b = BUF[buf]; k = -1
    for jn in range(6):
        for i in (range(4) if jn % 2 == 0 else range(3, -1, -1)):
            k += 1
            if not (k0 <= k < k1): continue
            a = acc(i, jn)
            if not A.o.nomm: A(f"v_mfma_f32_16x16x32_bf16 v[{a}:{a+3}], v[{b+16+4*jn}:{b+16+4*jn+3}], v[{b+4*i}:{b+4*i+3}], v[{a}:{a+3}]")
            for x in fill.get(k, []):
                if A.o.nord and ("_tr_" in x or "b128" in x): continue
                A(x)
def spread(L, start, per):
    d = {}
    for n, x in enumerate(L): d.setdefault(start + n // per, []).append(x)
    return d

def gemm(A):
    o = A.o
    A.srd(36, 8, 2097152)
    A("s_lshl_b32 s56, s3, 2\nv_add_u32 v13, s56, v15\nv_mov_b32 v14, 0x3f803f80")
    A(f"""v_and_b32 v10, 15, v0
v_lshrrev_b32 v11, 4, v0
v_lshrrev_b32 v18, 1, v10
v_xor_b32 v18, v11, v18
s_lshl_b32 s56, s60, 6
v_add_u32 v19, s56, v10
v_lshlrev_b32 v19, 7, v19
v_lshl_add_u32 v2, v18, 4, v19
v_xor_b32 v3, 64, v2
v_and_b32 v18, 1, v11
v_lshlrev_b32 v18, 5, v18
v_lshl_add_u32 v18, v11, 9, v18
v_bfe_u32 v19, v0, 2, 2
v_lshl_add_u32 v18, v19, 6, v18
v_and_b32 v19, 3, v0
v_lshl_add_u32 v18, v19, 3, v18
v_add_u32 v18, 16384, v18""")
    for j in range(3):
        A(f"""s_mul_i32 s56, s61, 3
s_add_u32 s56, s56, {j}
s_and_b32 s57, s56, 1
s_lshl_b32 s57, s57, 5
s_lshr_b32 s56, s56, 1
s_lshl_b32 s56, s56, 12
v_xor_b32 v{4+j}, s57, v18
v_add_u32 v{4+j}, s56, v{4+j}""")
    A(f"""s_mov_b32 s62, 0
s_mov_b32 s63, 0
s_mov_b32 s64, {SLOT}
s_mov_b32 s65, {-2*SLOT & 0xffffffff}
s_mov_b32 s49, 0
s_lshl_b32 s56, s60, 8
s_add_u32 s56, s56, {L_EPI}
v_lshl_add_u32 v7, v10, 2, s56
s_mul_i32 s56, s61, 384
s_add_u32 s56, s56, {L_EPI+512}
v_lshl_add_u32 v8, v11, 4, s56
v_and_b32 v9, 1, v0
v_lshl_add_u32 v9, v9, 2, v15
s_mov_b32 s48, 1""")
    for r in range(96): A(f"v_mov_b32 v{ACC+r}, 0")
    if o.nokp: A(f"v_mov_b32 v12, 1\nds_write_b32 v13, v12 offset:{F_KP}")
    else: kpart(A)
    A(f"""s_lshr_b32 s57, s5, 2
s_xor_b32 s57, s57, {A.o.cbx}
s_lshl_b32 s51, s33, 2
s_add_u32 s51, s51, s3
s_lshl_b32 s51, s51, 14
s_lshl_b32 s58, s57, 7
s_add_u32 s51, s51, s58
v_lshlrev_b32 v31, 10, v10
v_lshl_add_u32 v31, v11, 4, v31
buffer_load_dwordx4 v[248:251], v31, s[36:39], s51 offen
buffer_load_dwordx4 v[252:255], v31, s[36:39], s51 offen offset:64""")
    A(f"""v_lshrrev_b32 v23, 3, v0
v_cmp_lt_u32 vcc, 2, v23
v_subrev_u32 v22, 3, v23
v_cndmask_b32 v22, v23, v22, vcc
v_mov_b32 v23, {86*1024}
v_cndmask_b32 v23, 0, v23, vcc
v_lshl_add_u32 v23, v22, 10, v23
v_and_b32 v24, 7, v0
v_lshl_add_u32 v23, v24, 7, v23
s_mul_i32 s56, s7, 6
s_mul_i32 s57, s61, 3
s_add_u32 s56, s56, s57
s_sub_u32 s56, 86, s56
s_min_i32 s56, s56, 3
v_cmp_gt_i32 vcc, s56, v22
v_cndmask_b32 v23, 2.0, v23, vcc
s_mov_b32 s50, 0""")
    A("s_cmp_eq_u32 s32, 1\ns_cbranch_scc1 L_cs")
    A.lds_wait2("v9", F_FULL, "s48")
    A.stamp(4)
    for x in g1_reads(0, 0): A(x)
    A(".p2align 3\nL_g1_loop:")
    if o.stg:
        for k in range(8):
            A(f"s_cmp_lg_u32 s62, {k}\ns_cbranch_scc1 L_stg{k}"); A.stamp(8 + k, True); A(f"L_stg{k}:")
    for x in A.tr_a(): A(x)
    A("s_waitcnt lgkmcnt(0)")
    f = spread(g1_reads(1, 1), 0, 1)
    if o.trace:
        for n, x in enumerate(A.tr_b(1)): f[9 + n] += [x]
    f[0] += ["s_add_u32 s62, s62, 1"]
    f[1] += [f"s_add_u32 s63, s63, {SLOT}"]
    f[2] += [f"s_cmp_eq_u32 s63, {3*SLOT}"]
    f[3] += ["s_cselect_b32 s57, s65, s64"]
    f[4] += ["s_cselect_b32 s63, 0, s63"]
    f[6] += ["v_add_u32 v2, s57, v2"]
    f[7] += ["v_add_u32 v3, s57, v3"]
    f[8] += ["v_add_u32 v4, s57, v4"]
    f[12] += ["v_add_u32 v5, s57, v5"]
    f[5] += ["s_add_u32 s48, s62, 1"]
    f[16] = ["v_add_u32 v6, s57, v6"]
    f[17] = [f"ds_read_b32 v16, v9 offset:{F_FULL}", "v_mov_b32 v12, s62"]
    f[22] = ["s_waitcnt lgkmcnt(0)", f"ds_write_b32 v13, v12 offset:{F_FREE}", "v_cmp_gt_u32 vcc, s48, v16"]
    f[23] = ["s_cmp_eq_u32 s62, 8"]
    g1_mm(A, 0, f)
    A(f"""s_cbranch_scc1 L_g1_end
s_cbranch_vccnz L_g1_slow""")
    g1_mm(A, 1, spread(g1_reads(0, 0), 0, 1))
    A("s_branch L_g1_loop\nL_g1_slow:")
    g1_mm(A, 1, {o.sc - 5: [f"ds_read_b32 v16, v9 offset:{F_FULL}"], o.sc - 1: ["s_waitcnt lgkmcnt(0)", "v_cmp_gt_u32 vcc, s48, v16"]}, 0, o.sc)
    A("s_cbranch_vccnz L_g1_slow2")
    rd = g1_reads(0, 0); n2 = 16 - (22 - o.sc)
    f = spread(rd[:2*n2], o.sc, 2); f.update(spread(rd[2*n2:], o.sc + n2, 1))
    g1_mm(A, 1, f, o.sc, 24)
    A("s_branch L_g1_loop\nL_g1_slow2:")
    g1_mm(A, 1, {18: [f"ds_read_b32 v16, v9 offset:{F_FULL}"]}, o.sc, 24)
    A.lds_wait2("v9", F_FULL, "s48", pre=True)
    for x in g1_reads(0, 0): A(x)
    A("s_branch L_g1_loop")
    A(f"""L_cs:
s_cmp_eq_u32 s60, 0
s_cbranch_scc1 L_cs_go
v_mov_b32 v12, 8
ds_write_b32 v13, v12 offset:{F_FREE}
s_branch L_conv
L_cs_go:""")
    for r in range(4): A(f"v_mov_b32 v{128+r}, v14")
    A("L_cs_loop:")
    A.lds_wait("v15", F_FULL, 2, "gt", "s62")
    for ks in range(2):
        for x in g1_reads(ks, ks):
            if "_tr_" in x: A(x)
    A(f"""s_add_u32 s62, s62, 1
s_add_u32 s63, s63, {SLOT}
s_cmp_eq_u32 s63, {3*SLOT}
s_cselect_b32 s57, s65, s64
s_cselect_b32 s63, 0, s63
v_mov_b32 v12, s62
v_add_u32 v4, s57, v4
v_add_u32 v5, s57, v5
v_add_u32 v6, s57, v6
s_waitcnt lgkmcnt(0)
ds_write_b32 v13, v12 offset:{F_FREE}""")
    for ks in range(2):
        for jn in range(6):
            a = ACC + 4 * jn; b = BUF[ks]
            A(f"v_mfma_f32_16x16x32_bf16 v[{a}:{a+3}], v[128:131], v[{b+16+4*jn}:{b+16+4*jn+3}], v[{a}:{a+3}]")
    A("s_cmp_lt_u32 s62, 8\ns_cbranch_scc1 L_cs_loop")
    get_nonce(A)
    A(f"""s_lshl_b32 s56, s4, 4
s_add_u32 s56, s56, s7
s_cmp_eq_u32 s56, {4*16+7 if o.map == 3 else 999}
s_cselect_b32 s56, 15, s7
s_lshl_b32 s56, s56, 1
s_add_u32 s56, s56, s61
s_mul_i32 s56, s56, 768
s_add_u32 s56, s56, {WS_CS}
v_lshlrev_b32 v18, 3, v0
s_mov_b64 exec, 0xffff""")
    for jn in range(6):
        a = ACC + 4 * jn
        A(f"""v_mov_b32 v{a+1}, s52
buffer_store_dwordx2 v[{a}:{a+1}], v18, s[40:43], s56 offen offset:{128*jn} sc1""")
    A(f"""s_mov_b64 exec, -1
s_lshl_b32 s56, s61, 2
v_add_u32 v18, s56, v15
ds_write_b32 v18, v12 offset:{F_EP}""")
    A.stamp(5)
    A("s_branch L_conv")
    CS, ST = 208, 232
    rd = [f"ds_read_b32 v{ST+4*i+3}, v7 offset:{64*i}" for i in range(4)] + [f"ds_read_b128 v[{CS+4*jn}:{CS+4*jn+3}], v8 offset:{64*jn}" for jn in range(6)]
    prep = [f"v_lshlrev_b32 v{ST+4*i+1}, 16, v{ST+4*i+3}" for i in range(4)] + [f"v_rcp_f32 v{ST+4*i}, v{ST+4*i+1}" for i in range(4)]
    prep += [f"v_and_b32 v{ST+4*i+2}, 0xffff0000, v{ST+4*i+3}" for i in range(4)]
    for i in range(4): prep += [f"v_mul_f32 v{ST+4*i+1}, v{ST+4*i+1}, v{ST+4*i+1}", f"v_mul_f32 v{ST+4*i}, s50, v{ST+4*i}"]
    sal = f"""s_lshl_b32 s56, s6, 1
s_add_u32 s56, s56, s60
s_mul_i32 s57, s56, {2*86*1024}
s_mul_i32 s58, s7, 6
s_mul_i32 s59, s61, 3
s_add_u32 s58, s58, s59
s_lshl_b32 s59, s58, 10
s_add_u32 s57, s57, s59
s_add_u32 s57, s57, {WS_H}
s_mov_b32 s50, {LOG2E ^ 0x80000000}""".split("\n")
    A("L_g1_end:")
    f = spread(sal, 0, 2)
    f[0] = [f"ds_read_b32 v16, v9 offset:{F_EP}"] + f[0]
    f[5] = ["v_lshlrev_b32 v2, 4, v0", "s_waitcnt lgkmcnt(0)", "v_cmp_eq_u32 vcc, 0, v16"]
    g1_mm(A, 1, f, 0, 6)
    A("s_cbranch_vccnz L_g1_late")
    f = spread(rd, 6, 2)
    f.update(spread(prep, 14, 2)); f[14] = ["s_waitcnt lgkmcnt(6)"] + f[14]
    g1_mm(A, 1, f, 6, 24)
    A.stamp(5)
    A("s_branch L_g1_epi\nL_g1_late:")
    g1_mm(A, 1, {}, 6, 24)
    A.stamp(5)
    A.lds_wait2("v9", F_EP, 1)
    for x in rd: A(x)
    A("s_waitcnt lgkmcnt(6)")
    for x in prep: A(x)
    A("L_g1_epi:\ns_waitcnt lgkmcnt(0)")
    A.trace(4); A.tr_dump()
    A.stamp(6)
    T = 128
    for j in range(3):
        for ip in range(2):
            d = 192 + 4 * ((2*j+ip) % 3)
            def pr(p):
                i = 2*ip + p//2
                return acc(i, 2*j) + 2*(p % 2), acc(i, 2*j+1) + 2*(p % 2), ST + 4*i, CS + 8*j + 2*(p % 2)
            for p in range(4):
                g_, u_, sc, cs = pr(p)
                A(f"v_pk_fma_f32 v[{g_}:{g_+1}], v[{cs}:{cs+1}], v[{sc+2}:{sc+3}], v[{g_}:{g_+1}] op_sel_hi:[1,0,1]")
            for p in range(4):
                g_, u_, sc, cs = pr(p)
                A(f"v_pk_mul_f32 v[{T+2*p}:{T+2*p+1}], v[{g_}:{g_+1}], v[{sc}:{sc+1}] op_sel_hi:[1,0]")
            for p in range(4):
                g_, u_, sc, cs = pr(p)
                A(f"v_pk_fma_f32 v[{u_}:{u_+1}], v[{cs+4}:{cs+5}], v[{sc+2}:{sc+3}], v[{u_}:{u_+1}] op_sel_hi:[1,0,1]")
            for e in range(8): A(f"v_exp_f32 v{T+e}, v{T+e}")
            for p in range(4):
                g_, u_, sc, cs = pr(p)
                A(f"v_pk_mul_f32 v[{T+8+2*p}:{T+9+2*p}], v[{g_}:{g_+1}], v[{u_}:{u_+1}]")
            for p in range(4):
                g_, u_, sc, cs = pr(p)
                A(f"v_pk_fma_f32 v[{T+2*p}:{T+2*p+1}], v[{T+2*p}:{T+2*p+1}], v[{sc}:{sc+1}], v[{sc}:{sc+1}] op_sel:[0,1,1] op_sel_hi:[1,1,1]")
            for e in range(8): A(f"v_rcp_f32 v{T+e}, v{T+e}")
            for p in range(4): A(f"v_pk_mul_f32 v[{T+8+2*p}:{T+9+2*p}], v[{T+8+2*p}:{T+9+2*p}], v[{T+2*p}:{T+2*p+1}]")
            for p in range(4): A(f"v_cvt_pk_bf16_f32 v{d+p}, v{T+8+2*p}, v{T+9+2*p}")
            l = A.lab("Lhs")
            A(f"""s_add_u32 s59, s58, {j}
s_cmp_ge_u32 s59, 86
v_permlane16_swap_b32 v{d}, v{d+2}
v_permlane16_swap_b32 v{d+1}, v{d+3}
s_cbranch_scc1 {l}
s_add_u32 s59, s57, {ip*86*1024+j*1024}
buffer_store_dwordx4 v[{d}:{d+3}], v2, s[40:43], s59 offen sc1
{l}:""")
    A(f"""s_mov_b32 s50, s57
s_lshl_b32 s54, s56, 5
s_lshl_b32 s58, s7, 1
s_add_u32 s54, s54, s58
s_add_u32 s54, s54, s61
s_lshl_b32 s54, s54, 2
s_add_u32 s54, s54, {WS_FHL}""")
    A.stamp(7)
    conv(A)
    final(A)

def h_flags(A, block):
    l = A.lab("Lhf")
    if block: A(f"s_cmp_lg_u32 s49, 0\ns_cbranch_scc1 {l}")
    else: A(f"s_getreg_b32 s62, hwreg(HW_REG_IB_STS, 0, 4)\ns_or_b32 s62, s62, s49\ns_cbranch_scc1 {l}")
    A(f"""s_mov_b32 s49, 1
s_add_u32 s62, s54, {WS_FHG-WS_FHL}
s_waitcnt vmcnt(0)
s_mov_b64 exec, 1
buffer_store_dword v20, v21, s[40:43], s54 offen
buffer_store_dword v20, v21, s[40:43], s62 offen sc1
s_mov_b64 exec, -1
{"buffer_load_dword v22, v23, s[40:43], s50 offen sc1" if A.o.hpf else ""}
{"ds_write_b32 v13, v20 offset:" + str(F_HD) if A.o.pause else ""}
{l}:""")

def conv(A):
    o = A.o
    D = 32
    A(f"""L_conv:
s_mul_i32 s58, s61, {CONV_SZ}
s_add_u32 s58, s58, {L_CONV}
s_lshl_b32 s59, s60, 8
s_sub_u32 s59, s58, s59
v_and_b32 v10, 15, v0
v_lshrrev_b32 v11, 4, v0
v_and_b32 v18, 1, v0
v_cmp_eq_u32 vcc, 1, v18
v_sub_u32 v18, 2032, v10
v_lshrrev_b32 v18, 1, v18
v_lshl_add_u32 v18, v11, 2, v18
v_lshlrev_b32 v18, 2, v18
v_mov_b32 v19, {KT_O}
v_cndmask_b32 v19, v19, 0, vcc
v_add3_u32 v18, v18, v19, s59""")
    for p in range(4): A(f"v_subrev_u32 v{4+p}, {4*(128*(2*p+1)+48)}, v18")
    A(f"""v_lshlrev_b32 v8, 5, v10
v_lshl_add_u32 v8, v11, 4, v8
v_add_u32 v8, s59, v8
v_add_u32 v8, {U_OFF+512-32-192}, v8""")
    get_nonce(A)
    A("v_mov_b32 v20, s52\nv_mov_b32 v21, 0\ns_mov_b32 s49, s32")
    A.lds_wait("v15", F_KR, 2, "lg", 0)
    A.stamp(8)
    KB = (64, 128); UB = (96, 160)
    def reads(buf, cc):
        L = []
        for a in range(8):
            off = 128 * (1 - (a & 1)) + 16 * (3 - cc)
            for h in range(2):
                L.append(f"ds_read2_b32 v[{KB[buf]+4*a+2*h}:{KB[buf]+4*a+2*h+1}], v{4+a//2} offset0:{off+2*h} offset1:{off+2*h+1}")
            L.append(f"ds_read_b128 v[{UB[buf]+4*a}:{UB[buf]+4*a+3}], v8 offset:{512*a+64*(3-cc)}")
        return L
    cnt = [0]
    def mm(buf, fill, first):
        fill = list(fill)
        for a in range(8):
            for p in range(8 - a):
                q = D + 4 * (a + p)
                c = "0" if (first and a == 0) else f"v[{q}:{q+3}]"
                A(f"v_mfma_f32_16x16x32_bf16 v[{q}:{q+3}], v[{KB[buf]+4*a}:{KB[buf]+4*a+3}], v[{UB[buf]+4*p}:{UB[buf]+4*p+3}], {c}")
                if fill: A(fill.pop(0))
                cnt[0] += 1
                if cnt[0] == o.hflag_at: h_flags(A, True)
                elif cnt[0] < o.hflag_at and cnt[0] % o.hflag_ev == 0: h_flags(A, False)
        assert not fill
    xsetup = f"""s_xor_b32 s59, s3, 1
s_lshl_b32 s59, s59, 2
v_add_u32 v9, s59, v15
v_lshlrev_b32 v5, 4, v0
s_lshl_b32 s59, s60, 12
s_add_u32 s59, s59, s58
v_add_u32 v6, s59, v5
v_xor_b32 v7, 4096, v5
s_lshl_b32 s59, s60, 12
v_xor_b32 v7, s59, v7
v_add_u32 v7, s58, v7
s_lshl_b32 s56, s53, 1
s_add_u32 s56, s56, s61
s_lshl_b32 s57, s56, 8
s_lshl_b32 s59, s60, 21
s_add_u32 s57, s57, s59
s_add_u32 s57, s57, {WS_ST}
v_lshlrev_b32 v4, 17, v11
v_lshl_add_u32 v4, v10, 4, v4
v_and_b32 v2, 3, v0
v_lshlrev_b32 v2, 6, v2
v_and_b32 v3, 60, v0
v_add_u32 v2, v2, v3
v_mov_b32 v193, s52
v_mov_b32 v195, s52
v_mov_b32 v197, s52
v_mov_b32 v199, s52
v_mov_b32 v201, s52
v_mov_b32 v203, s52
v_mov_b32 v205, s52
v_mov_b32 v207, s52
ds_read_b32 v16, v9 offset:{F_CA}""".split("\n")
    xsetup = [x if x != "s_nop 0" else "" for x in xsetup]
    for x in reads(0, 0): A(x)
    for cc in range(4):
        A("s_waitcnt lgkmcnt(0)")
        if cc == 3:
            A(f"v_mov_b32 v12, 1\nds_write_b32 v13, v12 offset:{F_CA}")
        mm(cc % 2, reads((cc + 1) % 2, cc + 1) if cc < 3 else xsetup, cc == 0)
    A.stamp(9)
    A.lds_wait2("v9", F_CA, 1, pre=True)
    A("s_nop 1")
    A("s_cmp_eq_u32 s60, 0\ns_cbranch_scc1 L_cx0")
    for q in range(4): A(f"ds_write_b128 v6, v[{32+4*q}:{35+4*q}] offset:{q*1024}")
    for r in range(16): A(f"v_mov_b32 v{32+r}, v{48+r}")
    A("s_branch L_cx1\nL_cx0:")
    for q in range(4): A(f"ds_write_b128 v6, v[{48+4*q}:{51+4*q}] offset:{q*1024}")
    A(f"""L_cx1:
s_waitcnt lgkmcnt(0)
ds_write_b32 v13, v12 offset:{F_CB}""")
    A.lds_wait2("v9", F_CB, 1)
    for q in range(4): A(f"ds_read_b128 v[{48+4*q}:{51+4*q}], v7 offset:{q*1024}")
    for q in range(4):
        A(f"s_waitcnt lgkmcnt({3-q})")
        for p in range(4):
            a = 32 + 4*q + p
            A(f"v_add_f32 v{a}, v{a}, v{a+16}")
        A(f"v_cvt_pk_bf16_f32 v{240+2*q}, v{32+4*q}, v{33+4*q}\nv_cvt_pk_bf16_f32 v{241+2*q}, v{34+4*q}, v{35+4*q}")
    for q in range(4):
        A(f"ds_bpermute_b32 v{192+4*q}, v2, v{240+2*q}\nds_bpermute_b32 v{194+4*q}, v2, v{241+2*q}")
    for q in range(4):
        A(f"s_waitcnt lgkmcnt({6-2*q})\nbuffer_store_dwordx4 v[{192+4*q}:{195+4*q}], v4, s[40:43], s57 offen sc1\ns_add_u32 s57, s57, {4*131072}")
    A.stamp(10)

def final(A):
    o = A.o
    A.srd(44, 30, 2097152)
    A(f"""s_lshr_b32 s57, s5, 2
s_xor_b32 s57, s57, {A.o.cbx}
s_lshl_b32 s58, s57, 2
s_add_u32 s58, s58, s3
s_lshl_b32 s63, s58, 12
s_lshl_b32 s64, s33, 17
s_add_u32 s63, s63, s64
s_add_u32 s56, s63, {WS_ST}
s_mul_i32 s65, s61, {CONV_SZ}
s_lshl_b32 s66, s60, 11
s_add_u32 s65, s65, s66
s_add_u32 s65, s65, {L_CONV+S_OFF}
v_lshl_add_u32 v4, v0, 3, s65
v_bfe_u32 v3, v0, 2, 2
v_lshl_add_u32 v3, v11, 3, v3
v_lshlrev_b32 v6, 7, v3
v_and_b32 v3, 3, v0
v_lshl_add_u32 v6, v3, 3, v6
s_lshl_b32 s65, s3, 5
s_add_u32 s65, s65, {L_CONV+S_OFF}
v_add_u32 v6, s65, v6
v_lshl_add_u32 v8, v3, 2, v15
v_lshlrev_b32 v7, 10, v11
v_lshl_add_u32 v7, v10, 4, v7
s_lshl_b32 s65, s61, 13
s_lshl_b32 s66, s60, 8
s_add_u32 s65, s65, s66
s_add_u32 s65, s65, {SLOT}
v_add_u32 v7, s65, v7
v_and_b32 v9, 1, v0
v_lshlrev_b32 v9, 3, v9
s_lshl_b32 s65, s61, 2
v_add3_u32 v9, v9, s65, v15
v_add_u32 v18, 1024, v4
s_waitcnt vmcnt(4)""")
    A.stamp(11)
    for p in range(8): A(f"v_lshlrev_b32 v{80+2*p}, 16, v{248+p}\nv_and_b32 v{81+2*p}, 0xffff0000, v{248+p}")
    if o.mark == 99: A.lds_wait2("v8", F_PD, 1, sleep=2)
    elif o.mark: A.lds_wait2("v8", F_PG, 1 if o.mark < 30 else 3, sleep=2)
    A("L_s_fl:")
    for k in range(4): A(f"buffer_load_dwordx4 v[{112+4*k}:{115+4*k}], v5, s[40:43], s56 offen offset:{1024*k} sc1")
    A("s_waitcnt vmcnt(0)")
    for k in range(8): A(f"v_xor_b32 v{64+k}, s52, v{113+2*k}")
    A(f"""v_or3_b32 v64, v64, v65, v66
v_or3_b32 v67, v67, v68, v69
v_or3_b32 v64, v64, v70, v71
v_or_b32 v64, v64, v67
v_cmp_ne_u32 vcc, 0, v64
s_cbranch_vccz L_s_fld
s_sleep {o.ssleep}""")
    A.tmo("L_s_fl")
    A("L_s_fld:")
    A.stamp(12)
    for k in range(4): A(f"ds_write2_b32 v{4 if k < 2 else 18}, v{112+4*k}, v{114+4*k} offset0:{128*(k%2)} offset1:{128*(k%2)+1}")
    A(f"""s_waitcnt lgkmcnt(0)
ds_write_b32 v13, v12 offset:{F_SS}""")
    A.lds_wait2("v8", F_SS, 1)
    for nt in range(2):
        for h in range(2): A(f"ds_read_b64_tr_b16 v[{72+4*nt+2*h}:{73+4*nt+2*h}], v6 offset:{nt*CONV_SZ+h*512}")
    A(f"s_mov_b32 s64, {LOG2E ^ 0x80000000}\ns_mov_b32 s65, s64\ns_waitcnt lgkmcnt(0)")
    for p in range(8): A(f"v_lshlrev_b32 v{96+2*p}, 16, v{72+p}\nv_and_b32 v{97+2*p}, 0xffff0000, v{72+p}")
    A.stamp(13)
    A.lds_wait2("v9", F_PD, 1)
    A.stamp(14)
    for q in range(4):
        for kh in range(2):
            r = 32 + 16*kh + 4*q
            A(f"ds_read_b128 v[{r}:{r+3}], v7 offset:{kh*20480+(q>>1)*4096+(q&1)*512}")
    for q in range(4):
        A(f"s_waitcnt lgkmcnt({6-2*q})")
        for p in range(2):
            a = 32 + 4*q + 2*p
            A(f"v_pk_add_f32 v[{a}:{a+1}], v[{a}:{a+1}], v[{a+16}:{a+17}]")
        for p in range(2):
            a = 32 + 4*q + 2*p
            A(f"v_pk_mul_f32 v[{a+16}:{a+17}], v[{a}:{a+1}], s[64:65]")
        for e in range(4): A(f"v_exp_f32 v{48+4*q+e}, v{48+4*q+e}")
    for nt in range(2):
        for p in range(4*nt, 4*nt+4): A(f"v_pk_add_f32 v[{48+2*p}:{49+2*p}], v[{48+2*p}:{49+2*p}], 1.0 op_sel_hi:[1,0]")
        for p in range(4*nt, 4*nt+4): A(f"v_pk_mul_f32 v[{32+2*p}:{33+2*p}], v[{32+2*p}:{33+2*p}], v[{96+2*p}:{97+2*p}]")
        for e in range(8*nt, 8*nt+8): A(f"v_rcp_f32 v{48+e}, v{48+e}")
        for p in range(4*nt, 4*nt+4): A(f"v_pk_fma_f32 v[{32+2*p}:{33+2*p}], v[{32+2*p}:{33+2*p}], v[{48+2*p}:{49+2*p}], v[{80+2*p}:{81+2*p}]")
        for p in range(4*nt, 4*nt+4): A(f"v_cvt_pk_bf16_f32 v{64+p}, v{32+2*p}, v{33+2*p}")
        A(f"buffer_store_dwordx4 v[{64+4*nt}:{67+4*nt}], v31, s[44:47], s51 offen offset:{64*nt}{o.opol}")
    A.stamp(15)
    if o.probe >= 0:
        A(f"""s_cmp_lg_u32 s2, {o.probewg}
s_cbranch_scc1 L_prd
s_cmp_lg_u32 s3, 2
s_cbranch_scc1 L_prd
s_waitcnt lgkmcnt(0)
s_sub_u32 s64, s{68+2*o.probe}, s68
s_lshl_b32 s64, s64, 3
s_add_u32 s64, s64, 3000
L_pr:
s_memrealtime s[66:67]
s_waitcnt lgkmcnt(0)
s_sub_u32 s66, s66, s68
s_cmp_lt_u32 s66, s64
s_cbranch_scc1 L_pr
L_prd:""")
    A.put_stamps()
    A("s_endpgm")

NPRE = 13
WR = 64
HR = 168; NH = 18
WF = 240
GA = 116
def gemm2_setup(A):
    A(f"""s_and_b32 s66, s3, 1
s_bfe_u32 s48, s3, 0x10001
v_and_b32 v{GA+9}, 31, v0
v_lshrrev_b32 v{GA+1}, 5, v0
v_bfe_u32 v{GA+2}, v0, 2, 2
v_lshl_add_u32 v{GA+2}, v{GA+1}, 3, v{GA+2}
v_lshlrev_b32 v{GA}, 7, v{GA+2}
v_bfe_u32 v{GA+2}, v0, 3, 1
v_lshl_add_u32 v{GA}, v{GA+2}, 6, v{GA}
v_bfe_u32 v{GA+2}, v0, 4, 1
v_lshl_add_u32 v{GA}, v{GA+2}, 5, v{GA}
v_and_b32 v{GA+2}, 3, v0
v_lshl_add_u32 v{GA}, v{GA+2}, 3, v{GA}
s_mul_i32 s101, s48, 20480
v_add_u32 v{GA}, s101, v{GA}
v_xor_b32 v{GA+1}, 64, v{GA}
v_add_u32 v{GA+2}, {2*SLOT}, v{GA}
v_add_u32 v{GA+3}, {2*SLOT}, v{GA+1}
s_lshl_b32 s67, s48, 2
v_add_u32 v{GA+4}, s67, v15
v_lshlrev_b32 v{GA+5}, 4, v0
s_and_b32 s67, s3, 3
s_lshl_b32 s67, s67, 2
v_add_u32 v{GA+6}, s67, v15
v_xor_b32 v{GA+7}, 4, v{GA+6}
s_lshl_b32 s67, s66, 13
s_add_u32 s101, s101, s67
s_add_u32 s101, s101, {SLOT}
v_add_u32 v{GA+8}, s101, v{GA+5}
v_min_u32 v{GA+9}, 28, v{GA+9}
v_lshlrev_b32 v{GA+9}, 2, v{GA+9}
v_add_u32 v{GA+10}, {WS_FHG-WS_FHL}, v{GA+9}
v_and_b32 v{GA+11}, 1, v0
s_lshl_b32 s67, s66, 3
v_lshl_add_u32 v{GA+11}, v{GA+11}, 2, s67
v_add_u32 v{GA+11}, v{GA+11}, v15
v_mov_b32 v114, 1
v_mov_b32 v115, 2
s_lshl_b32 s101, s33, 1
s_add_u32 s101, s101, s66
s_mul_i32 s101, s101, {86*1024}
s_mul_i32 s67, s48, {43*1024}
s_add_u32 s101, s101, s67
s_add_u32 s101, s101, {WS_H}
s_lshl_b32 s48, s33, 7
s_add_u32 s48, s48, {WS_FHL}""")

def gemm2(A):
    o = A.o
    WRL = [32 + 8*i for i in range(10)] + [128 + 8*i for i in range(3)]
    AC = 152; HR = 184; NH = 18; PD = 3
    def wrd(i, b):
        c, ii = i // 10, i % 10
        sl = (8 + c) % 3
        L = []
        for nt in range(2):
            for t in range(2):
                ad = GA + ((2 + nt) if sl == 2 else nt)
                off = ii * 2048 + t * 512 + (SLOT if sl == 1 else 0)
                L.append(f"ds_read_b64_tr_b16 v[{b+4*nt+2*t}:{b+4*nt+2*t+1}], v{ad} offset:{off}")
        return L
    A("L_g2:")
    if o.g2prio: A(f"s_setprio {o.g2prio}")
    A.lds_wait2(f"v{GA+4}", F_FULL, 10, sleep=2)
    for i in range(NPRE):
        for x in wrd(i, WRL[i]): A(x)
    A(f"s_waitcnt lgkmcnt(0)\nds_write_b32 v{GA+6}, v114 offset:{F_PR}")
    A.stamp(8)
    A("s_cmp_lt_u32 s3, 6\ns_cbranch_scc1 L_g2_nl")
    A.lds_wait2(f"v{GA+11}", F_PR, 1, sleep=1)
    if o.pause == 3:
        A("s_cmp_eq_u32 s32, 1\ns_cbranch_scc1 L_g2_np")
        A.lds_wait2("v11", F_HD, 1, sleep=2, t=18)
        A("L_g2_np:")
    A(f"s_add_u32 s65, s59, {2*SLOT}")
    for i in range(10): wd_block(A, i, o.wrot)
    A(f"s_mov_b32 s65, s59\ns_add_u32 s57, s57, {10*16384}")
    for i in range(3): wd_block(A, i)
    get_nonce(A)
    A("v_mov_b32 v10, 13\ns_waitcnt vmcnt(0)\nds_write_b32 v9, v10\nL_g2_nl:")
    A.stamp(9)
    A.flag_wait(f"v{GA+9}", f"v{GA+10}", "s48", 0 if o.map == 3 else 48, sleep=o.hsleep)
    A.stamp(10)
    if o.g2prio: A(f"s_setprio {o.g2prio2}")
    A("v_mov_b32 v113, 3")
    def hld(i):
        r = HR + 4 * (i % NH)
        L = [f"buffer_load_dwordx4 v[{r}:{r+3}], v{GA+5}, s[40:43], s101 offen offset:{(i%4)*1024}{o.hld}"]
        if i % 4 == 3: L.append("s_add_u32 s101, s101, 4096")
        return L
    AHEAD = o.ahead
    assert AHEAD < NH
    for i in range(AHEAD):
        for x in hld(i): A(x)
    A(f"ds_read_b32 v16, v{GA+4} offset:{F_FULL}\ns_waitcnt vmcnt({AHEAD-1})")
    lds_q = []
    for i in range(43):
        nxt = i + 1
        b = WRL[i % NPRE]
        r = HR + 4 * (i % NH)
        if i + PD == 20: A.lds_wait2(f"v{GA+4}", F_FULL, 13, pre=True); lds_q = []
        w = wrd(i + PD, WRL[(i + PD) % NPRE]) if NPRE <= i + PD < 43 else []
        def mf(nt):
            c = "0" if i == 0 else f"v[{AC+16*nt}:{AC+16*nt+15}]"
            A(f"v_mfma_f32_32x32x16_bf16 v[{AC+16*nt}:{AC+16*nt+15}], v[{b+4*nt}:{b+4*nt+3}], v[{r}:{r+3}], {c}")
        mf(0)
        for x in w[:3]: A(x)
        mf(1)
        for x in w[3:]: A(x)
        lds_q += [i + PD] * len(w)
        if i + AHEAD < 43:
            for x in hld(i + AHEAD): A(x)
        if i == o.mark: A(f"ds_write_b32 v{GA+6}, v{114 if o.mark < 30 else 113} offset:{F_PG}"); lds_q.append(99)
        if i == 30: A(f"ds_write_b32 v{GA+6}, v115 offset:{F_PG}"); lds_q.append(99)
        if i == 41: A(f"ds_read_b32 v16, v{GA+7} offset:{F_PG}"); lds_q.append(99)
        if nxt < 43:
            out = min(43, i + AHEAD + 1) - (nxt + 1)
            lg = ""
            if nxt in lds_q:
                last = len(lds_q) - 1 - lds_q[::-1].index(nxt)
                lg = f" lgkmcnt({len(lds_q) - 1 - last})"
                lds_q = lds_q[last + 1:]
            A(f"s_waitcnt vmcnt({out}){lg}")
    A.stamp(11)
    A.lds_wait2(f"v{GA+7}", F_PG, 2, pre=True)
    A("s_nop 6")
    for q in range(8): A(f"ds_write_b128 v{GA+8}, v[{AC+4*q}:{AC+4*q+3}] offset:{q*1024}")
    A(f"s_waitcnt lgkmcnt(0)\nds_write_b32 v{GA+6}, v114 offset:{F_PD}\ns_waitcnt lgkmcnt(0)")
    A.stamp(12)
    A.put_stamps()
    A("s_endpgm")

def aux_loads(A):
    o = A.o
    A(f"""s_sub_u32 s54, s3, 4
s_lshl_b32 s46, s53, 13
s_lshl_b32 s58, s54, 12
s_add_u32 s46, s46, s58
v_lshlrev_b32 v2, 4, v0
s_lshl_b32 s56, s53, 1
s_add_u32 s56, s56, s54
s_lshl_b32 s57, s56, 1
v_mov_b32 v3, s57
v_mov_b32 v13, 0""")
    sync_in(A)
    A.srd(36, 8, 2097152)
    for r in range(4): A(f"buffer_load_dwordx4 v[{128+4*r}:{131+4*r}], v2, s[36:39], s46 offen offset:{1024*r}{o.lnpol}")
    A("""global_load_ushort v9, v3, s[20:21]
buffer_load_dword v14, v13, s[40:43], 0 offen sc1""")

def kgen(A):
    o = A.o
    A("L_kgen:")
    gemm2_setup(A)
    A(f"""s_mul_i32 s58, s54, {CONV_SZ}
s_add_u32 s58, s58, {L_CONV}
v_mov_b32 v24, 0x3f803f80
v_mov_b32 v25, 0x00003f80
v_mov_b32 v26, 0x3f800000
s_mov_b32 s60, 0x3b000000
s_mov_b32 s59, 0x3727c5ac
v_mul_u32_u24 v4, 144, v0
s_lshl_b32 s57, s54, 3
s_add_u32 s57, s57, {BOUNCE}
v_add_u32 v4, s57, v4
v_lshrrev_b32 v5, 3, v0
v_mul_u32_u24 v5, 144, v5
v_and_b32 v6, 7, v0
v_lshl_add_u32 v5, v6, 4, v5
s_mul_i32 s57, s54, {32*144}
s_add_u32 s57, s57, {BOUNCE}
v_add_u32 v5, s57, v5
s_lshl_b32 s57, s54, 2
v_add_u32 v21, s57, v15
v_mov_b32 v22, 1
v_lshlrev_b32 v3, 3, v0
v_lshrrev_b32 v6, 1, v0""")
    for r in range(4):
        A(f"s_waitcnt vmcnt({5-r})")
        if r == 0: A.stamp(2)
        for i in range(4):
            c1 = "0" if i == 0 else f"v{160+r}"; c2 = "0" if i == 0 else f"v{164+r}"
            A(f"v_dot2_f32_bf16 v{160+r}, v{128+4*r+i}, v24, {c1}\nv_dot2_f32_bf16 v{164+r}, v{128+4*r+i}, v{128+4*r+i}, {c2}")
    for b in (160, 161, 164, 165): A(f"v_permlane32_swap_b32 v{b}, v{b+2}")
    for b in (160, 161, 164, 165): A(f"v_add_f32 v{b}, v{b}, v{b+2}")
    for b in (160, 164): A(f"v_permlane16_swap_b32 v{b}, v{b+1}")
    for b in (160, 164): A(f"v_add_f32 v{b}, v{b}, v{b+1}")
    for sh in (8, 4, 2, 1):
        for reg in (160, 164):
            A(f"v_add_f32_dpp v{reg}, v{reg}, v{reg} row_ror:{sh} row_mask:0xf bank_mask:0xf")
    A("""v_mul_f32 v160, s60, v160
v_mul_f32 v164, s60, v164
v_fma_f32 v164, -v160, v160, v164
v_max_f32 v164, 0, v164
v_cvt_pk_bf16_f32 v161, v164, -v160
v_and_b32 v160, 0xffff0000, v161
v_lshlrev_b32 v164, 16, v161
v_add_f32 v164, s59, v164
v_cvt_pk_bf16_f32 v164, v164, v164
v_and_b32 v164, 0xffff0000, v164
v_sqrt_f32 v164, v164""")
    for r in range(4): A(f"v_readlane_b32 s{8+r}, v160, {16*r}")
    A("""v_cvt_pk_bf16_f32 v112, v164, v160
v_lshlrev_b32 v164, 16, v112
v_rcp_f32 v164, v164""")
    N = 168
    for c in range(8):
        for r in range(4):
            A(f"v_dot2_f32_bf16 v{N+4*c+r}, v{128+4*r+c//2}, {'v25' if c % 2 == 0 else 'v26'}, s{8+r}")
        if c == 0:
            for r in range(4): A(f"v_readlane_b32 s{12+r}, v164, {16*r}")
    for c in range(8):
        for h in range(2): A(f"v_pk_mul_f32 v[{N+4*c+2*h}:{N+4*c+2*h+1}], v[{N+4*c+2*h}:{N+4*c+2*h+1}], s[{12+2*h}:{13+2*h}]")
    for c in range(8):
        for h in range(2): A(f"v_cvt_pk_bf16_f32 v{144+2*c+h}, v{N+4*c+2*h}, v{N+4*c+2*h+1}")
        A(f"ds_write_b64 v4, v[{144+2*c}:{145+2*c}] offset:{16*c}")
    A(f"""s_waitcnt vmcnt(0)
v_readfirstlane_b32 s52, v14
s_mul_i32 s52, s52, 0x9E3779B1
s_add_u32 s52, s52, 0x7F4A7C15
v_mov_b32 v17, s52
s_or_b32 s52, s52, 0x10000
v_mov_b32 v16, s52
s_cmp_lg_u32 s54, 0
s_cbranch_scc1 L_k_nn
ds_write_b64 v15, v[16:17] offset:{F_NONCE}
L_k_nn:
s_waitcnt lgkmcnt(0)
ds_write_b32 v21, v22 offset:{F_LN}""")
    A.lds_wait("v15", F_LN, 2, "lg", 0)
    for k in range(4): A(f"ds_read_b128 v[{96+4*k}:{99+4*k}], v5 offset:{k*8*144}")
    get_nonce(A)
    A(f"""ds_write_b32 v21, v22 offset:{F_BD}
v_mov_b32 v113, s52
s_lshr_b32 s47, s46, 7
s_add_u32 s47, s47, {WS_STATS}
s_mul_i32 s57, s53, {o.xpad}
s_add_u32 s46, s46, s57
s_add_u32 s46, s46, {WS_XNT}""")
    A.stamp(3)
    def ln_stores():
        for k in range(4): A(f"buffer_store_dwordx4 v[{96+4*k}:{99+4*k}], v2, s[40:43], s46 offen offset:{k*1024} sc1")
        A(f"""s_mov_b32 exec_lo, 0x00010001
s_mov_b32 exec_hi, 0x00010001
buffer_store_dwordx2 v[112:113], v6, s[40:43], s47 offen sc1
s_mov_b64 exec, -1""")
    if o.stat == 0: ln_stores()
    D = 32
    A(f"""s_lshl_b32 s57, s54, 3
v_add_u32 v7, s57, v15
v_add_u32 v14, s58, v2""")
    A.lds_wait("v7", F_KP, 2, "lg", 0, sleep=1)
    for q in range(4): A(f"ds_read_b128 v[{D+4*q}:{D+4*q+3}], v14 offset:{1024*q}")
    for q in range(4): A(f"ds_read_b128 v[{D+32+4*q}:{D+32+4*q+3}], v14 offset:{32*KROW+1024*q}")
    A("s_waitcnt lgkmcnt(0)")
    for r in range(16): A(f"v_add_f32 v{D+r}, v{D+r}, v{D+32+r}")
    A(f"""ds_write_b32 v21, v22 offset:{F_KD}
v_lshlrev_b32 v9, 16, v9
v_cmp_eq_u32 vcc, 0, v0
v_cndmask_b32 v9, 0, v9, vcc
v_sub_u32 v12, {4080-3072}, v2
v_add_u32 v12, s58, v12
v_and_b32 v13, 1, v0
v_cmp_eq_u32 vcc, 1, v13
v_mov_b32 v16, 0
v_mov_b32 v17, 0
v_mov_b32 v18, 0
v_mov_b32 v19, 0
v_add_f32 v{D}, v{D}, v9""")
    def wr(grp, k):
        t = 48 + 8 * (grp % 2)
        for u in range(4): A(f"v_cvt_pk_bf16_f32 v{t+u}, v{k[7-2*u]}, v{k[6-2*u]}")
        for u in range(4): A(f"v_cvt_pk_bf16_f32 v{t+4+u}, v{k[8-2*u]}, v{k[7-2*u]}")
        A(f"ds_write_b128 v12, v[{t}:{t+3}] offset:{3072-1024*grp}\nds_write_b128 v12, v[{t+4}:{t+7}] offset:{3072-1024*grp+KT_O}")
    wr(0, [D+i for i in range(9)])
    a, b, c = D+9, D+10, D+11
    wr(1, [a, a, a, b, b, b, c, c, c])
    for grp in (2, 3):
        a, b = D + 12 + 2*(grp-2), D + 13 + 2*(grp-2)
        A(f"v_cndmask_b32 v20, v{a}, v{b}, vcc")
        wr(grp, [a, a, a, a, 20, b, b, b, b])
    A(f"""s_mov_b64 exec, 0xf
ds_write_b128 v14, v[16:19] offset:4096
s_mov_b32 exec_lo, -1
ds_write_b128 v14, v[16:19] offset:{U_OFF}
s_mov_b64 exec, 1
v_cvt_pk_bf16_f32 v16, v{D}, 0
s_mov_b64 exec, 0xf
ds_write_b128 v14, v[16:19] offset:{4096+KT_O}
s_mov_b64 exec, -1""")
    A.stamp(4)
    if o.stat:
        A.lds_wait("v15", F_FULL, 2, "ge", o.stat, sleep=4)
        ln_stores()
    A(f"""s_lshl_b32 s57, s54, 8
s_add_u32 s57, s57, s53
s_lshl_b32 s57, s57, 2
s_add_u32 s57, s57, {WS_FLG}
s_waitcnt vmcnt(0)
s_mov_b64 exec, 1
buffer_store_dword v113, v2, s[40:43], s57 offen sc1
s_mov_b64 exec, -1""")
    A(f"""s_cmp_eq_u32 s32, 1
s_cbranch_scc1 L_k_ed
s_lshl_b32 s61, s6, 10
s_add_u32 s61, s61, {WS_STATS}
s_mul_i32 s62, s7, 1536
s_add_u32 s62, s62, {WS_CS}
s_cmp_eq_u32 s54, 0
s_cselect_b32 s61, s61, s62
s_cselect_b32 s62, 0, 1024
s_add_u32 s62, s62, s61
s_lshl_b32 s63, s54, 9
s_add_u32 s63, s63, {L_EPI}
v_lshl_add_u32 v4, v0, 2, s63""")
    if o.eat:
        A(f"s_cmp_eq_u32 s54, 0\ns_cselect_b32 s57, {o.eat0 or o.eat}, {o.eat}")
        A.lds_wait("v15", F_FULL, 2, "ge", "s57", sleep=o.easl)
    A(f"""L_k_el:
buffer_load_dwordx2 v[96:97], v3, s[40:43], s61 offen sc1
buffer_load_dwordx2 v[98:99], v3, s[40:43], s61 offen offset:512 sc1
buffer_load_dwordx2 v[100:101], v3, s[40:43], s62 offen sc1
s_waitcnt vmcnt(0)
v_xor_b32 v16, s52, v97
v_xor_b32 v17, s52, v99
v_xor_b32 v18, s52, v101
v_or3_b32 v16, v16, v17, v18
v_cmp_ne_u32 vcc, 0, v16
s_cbranch_vccz L_k_eo
s_sleep {o.esleep}""")
    A.tmo("L_k_el")
    A(f"""L_k_eo:
ds_write_b32 v4, v96
ds_write_b32 v4, v98 offset:256
s_cmp_eq_u32 s54, 0
s_cbranch_scc1 L_k_e2
ds_write_b32 v4, v100 offset:512
L_k_e2:
s_waitcnt lgkmcnt(0)
ds_write_b32 v21, v22 offset:{F_EP}
L_k_ed:""")
    A.stamp(7)
    A(f"""s_lshr_b32 s61, s53, 7
s_lshl_b32 s61, s61, 10
s_lshl_b32 s62, s54, 9
s_add_u32 s61, s61, s62
s_add_u32 s61, s61, {WS_FLG}
v_lshrrev_b32 v4, 1, v0
v_mul_u32_u24 v5, {8192+o.xpad}, v4
v_lshl_add_u32 v5, v13, 4, v5
v_mul_u32_u24 v6, {CONV_SZ}, v13
v_lshl_add_u32 v6, v4, 4, v6
s_lshl_b32 s62, s54, 11
s_add_u32 s62, s62, {L_CONV+U_OFF+512}
v_add_u32 v6, s62, v6
s_mul_i32 s62, s54, {128*(8192+o.xpad)}
s_lshl_b32 s63, s53, 5
s_add_u32 s62, s62, s63
s_add_u32 s62, s62, {WS_XNT}""")
    if o.uat: A.lds_wait("v15", F_FULL, 2, "ge", o.uat, sleep=4)
    A(f"""L_k_fl:
buffer_load_dwordx2 v[16:17], v3, s[40:43], s61 offen sc1
s_waitcnt vmcnt(0)
v_xor_b32 v16, s52, v16
v_xor_b32 v17, s52, v17
v_or_b32 v16, v16, v17
v_cmp_ne_u32 vcc, 0, v16
s_cbranch_vccz L_k_fld
s_sleep 16""")
    A.tmo("L_k_fl")
    A("L_k_fld:")
    A.stamp(5)
    for k in range(4):
        A(f"s_add_u32 s63, s62, {k*32*(8192+o.xpad)}\nbuffer_load_dwordx4 v[{96+4*k}:{99+4*k}], v5, s[40:43], s63 offen sc1")
    A.lds_wait("v15", F_KD, 2, "lg", 0)
    for k in range(4):
        A(f"s_waitcnt vmcnt({3-k})\nds_write_b128 v6, v[{96+4*k}:{99+4*k}] offset:{k*512}")
    A(f"""s_waitcnt lgkmcnt(0)
ds_write_b32 v21, v22 offset:{F_KR}""")
    A.stamp(6)
    A(f"""s_cmp_lg_u32 s56, 0
s_cbranch_scc1 L_k_nb""")
    A.lds_wait("v15", F_KR, 2, "lg", 0)
    A(f"""ds_read_b32 v4, v15 offset:{F_NONCE+4}
v_mov_b32 v5, 0
s_waitcnt lgkmcnt(0)
s_mov_b64 exec, 1
buffer_store_dword v4, v5, s[40:43], 0 offen sc1
s_mov_b64 exec, -1
L_k_nb:""")
    gemm2(A)

HEADER = open("header.txt").read().split("; Override launch")[0]

def build(o):
    A = G(o)
    prologue(A)
    loader(A)
    A("L_gemm:")
    gemm(A)
    kgen(A)
    A("L_exit:\ns_endpgm\nL_codeend:")
    lines, probs = hz.fix(A.L, o.verbose)
    for p in hz.check_paths(lines): print("HAZARD on some path:", p, file=sys.stderr)
    txt = HEADER + f"; @launch grid=(256,1,1) block=(512,1,1) lds={LDS_BYTES + (2048 if o.trace else 0)}\n"
    txt += f'.amdgcn_target "amdgcn-amd-amdhsa--gfx950"\n.text\n.globl {KN}\n.p2align 8\n.type {KN},@function\n{KN}:\n'
    txt += "\n".join(lines) + "\n"
    txt += f""".section .rodata,"a"
.p2align 6
.amdhsa_kernel {KN}
  .amdhsa_next_free_vgpr 256
  .amdhsa_next_free_sgpr 102
  .amdhsa_accum_offset 256
  .amdhsa_group_segment_fixed_size 0
  .amdhsa_kernarg_size 112
  .amdhsa_user_sgpr_count 2
  .amdhsa_user_sgpr_kernarg_segment_ptr 1
  .amdhsa_system_sgpr_workgroup_id_x 1
  .amdhsa_float_denorm_mode_32 3
.end_amdhsa_kernel
"""
    return txt

def parser():
    ap = argparse.ArgumentParser()
    ap.add_argument("-o", default="recurrent_scan__ssm_conv_s4d__swiglu_ffn__prompt.s")
    ap.add_argument("--stamps", action="store_true")
    ap.add_argument("--verbose", action="store_true")
    ap.add_argument("--cyc", action="store_true")
    ap.add_argument("--stg", action="store_true")
    ap.add_argument("--trace", action="store_true")
    ap.add_argument("--probe", type=int, default=-1)
    ap.add_argument("--probewg", type=int, default=100)
    ap.add_argument("--noload", action="store_true")
    ap.add_argument("--oob", action="store_true")
    ap.add_argument("--nomm", action="store_true")
    ap.add_argument("--nord", action="store_true")
    ap.add_argument("--ldprio", type=int, default=0)
    ap.add_argument("--kplain", type=int, default=0)
    ap.add_argument("--kprio", type=int, default=0)
    ap.add_argument("--padto", type=int, default=0)
    ap.add_argument("--tmo", type=int, default=200000)
    ap.add_argument("--codepf", type=int, default=1)
    ap.add_argument("--map", type=int, default=2)
    ap.add_argument("--irot", type=int, default=7)
    ap.add_argument("--idir", type=int, default=-1)
    ap.add_argument("--warm", default="1:1:8")
    ap.add_argument("--stat", type=int, default=2)
    ap.add_argument("--sc", type=int, default=10)
    ap.add_argument("--nohg", type=int, default=0)
    ap.add_argument("--cbx", type=int, default=4)
    ap.add_argument("--xsh", type=int, default=4)
    ap.add_argument("--krot", type=int, default=1)
    ap.add_argument("--wrot", type=int, default=0)
    ap.add_argument("--wdelay", type=int, default=0)
    ap.add_argument("--xpad", type=int, default=384)
    ap.add_argument("--wpf", default="")
    ap.add_argument("--g2prio2", type=int, default=0)
    ap.add_argument("--idelay", type=int, default=0)
    ap.add_argument("--pause", type=int, default=0)
    ap.add_argument("--eat0", type=int, default=0)
    ap.add_argument("--easl", type=int, default=4)
    ap.add_argument("--hpf", type=int, default=0)
    ap.add_argument("--samefc", type=int, default=0)
    ap.add_argument("--rolex", type=int, default=0)
    ap.add_argument("--gprio", type=int, default=0)
    ap.add_argument("--g2s", type=int, default=1)
    ap.add_argument("--wprio", type=int, default=3)
    ap.add_argument("--nokp", type=int, default=0)
    ap.add_argument("--g2prio", type=int, default=3)
    ap.add_argument("--opol", default="")
    ap.add_argument("--wdw", type=int, default=1)
    ap.add_argument("--wdwait", type=int, default=0)
    ap.add_argument("--mark", type=int, default=25)
    ap.add_argument("--ssleep", type=int, default=6)
    ap.add_argument("--p1", type=int, default=16)
    ap.add_argument("--eat", type=int, default=7)
    ap.add_argument("--esleep", type=int, default=8)
    ap.add_argument("--xpol", default="")
    ap.add_argument("--wpol", default="")
    ap.add_argument("--lnpol", default=" nt")
    ap.add_argument("--ppol", default=" nt")
    ap.add_argument("--ra", type=int, default=0)
    ap.add_argument("--rb", type=int, default=0)
    ap.add_argument("--rc", type=int, default=0)
    ap.add_argument("--rm", type=int, default=7)
    ap.add_argument("--ldorder", type=int, default=0)
    ap.add_argument("--flagat", type=int, default=17)
    ap.add_argument("--j1", type=int, default=1)
    ap.add_argument("--j2", type=int, default=3)
    ap.add_argument("--j3", type=int, default=6)
    ap.add_argument("--j4", type=int, default=7)
    ap.add_argument("--rot2", type=int, default=1)
    ap.add_argument("--sigat", type=int, default=10)
    ap.add_argument("--preat", type=int, default=14)
    ap.add_argument("--sig7", type=int, default=1)
    ap.add_argument("--wpre", type=int, default=2)
    ap.add_argument("--lddelay", type=int, default=0)
    ap.add_argument("--lnsleep", type=int, default=2)
    ap.add_argument("--hsleep", type=int, default=2)
    ap.add_argument("--uat", type=int, default=8)
    ap.add_argument("--hflag_at", type=int, default=108)
    ap.add_argument("--hflag_ev", type=int, default=12)
    ap.add_argument("--wsig", type=int, default=5)
    ap.add_argument("--ahead", type=int, default=12)
    ap.add_argument("--hld", default=" sc1")
    ap.add_argument("--xld", default=" sc1")
    return ap

if __name__ == "__main__":
    o = parser().parse_args()
    WS_XNT += o.xsh * 128
    o.jobs = (1 << o.j1) | (1 << o.j2) | (1 << o.j3) | (1 << o.j4)
    open(o.o, "w").write(build(o))
```

```python
import sys, argparse, struct
sys.path.insert(0, "gen")
import hz

KN = "recurrent_scan__ssm_conv_s4d__swiglu_ffn__prompt_kernel"
WS_EPOCH = 0x0
WS_FLG   = 0x2000
WS_FHL   = 0x3000
WS_FHG   = 0x4000
WS_STATS = 0x8000
WS_CS    = 0xC000
WS_XNT   = 0x200000
WS_ST    = 0xC00000
WS_H     = 0x610000
WS_STAMP = 0x1000000
WS_BYTES = 268435456
SLOT = 40960
L_CONV = 3 * SLOT
KROW = 272
CONV_SZ = 2 * 32 * KROW
L_FLAGS = L_CONV + 2 * CONV_SZ
L_EPI = L_FLAGS + 256
L_TRACE = L_EPI + 512 + 768
LDS_BYTES = L_TRACE
F_FULL, F_FREE, F_NONCE, F_LN, F_KD, F_KR, F_CA, F_CB, F_SS, F_BD, F_EP, F_KP, F_PR, F_PG, F_PD, F_HD = 0, 16, 32, 48, 64, 72, 80, 96, 112, 128, 136, 144, 160, 176, 192, 208
KT_O, U_OFF, S_OFF = 4160, 8320, 12928
WBYTES = 512 * 1376 * 2
LOG2E = 0x3FB8AA3B

class G:
    def __init__(self, o):
        self.o = o; self.L = []; self.n = 0
    def __call__(self, s):
        for l in s.strip("\n").split("\n"):
            l = l.strip()
            if not l: continue
            self.L.append(l if l.endswith(":") or l.startswith(".") else "    " + l)
    def lab(self, p="L"):
        self.n += 1; return f"{p}{self.n}"
    def srd(self, d, b, nbytes):
        self(f"s_mov_b32 s{d}, s{b}\ns_and_b32 s{d+1}, s{b+1}, 0xffff\ns_mov_b32 s{d+2}, {nbytes}\ns_mov_b32 s{d+3}, 0x00020000")
    def stamp(self, i, force=False):
        if self.o.stg and i >= 8 and not force: return
        if self.o.stamps: self(f"{'s_memtime' if self.o.cyc else 's_memrealtime'} s[{68+2*i}:{69+2*i}]")
    def put_stamps(self):
        if not self.o.stamps or self.o.probe >= 0: return
        self(f"""s_waitcnt vmcnt(0) lgkmcnt(0)
s_lshl_b32 s64, s2, 3
s_add_u32 s64, s64, s3
s_lshl_b32 s64, s64, 7
s_add_u32 s64, s64, {WS_STAMP}
s_mov_b64 exec, 1
v_mov_b32 v2, 0""")
        for i in range(16):
            self(f"v_mov_b32 v4, s{68+2*i}\nv_mov_b32 v5, s{69+2*i}\nbuffer_store_dwordx2 v[4:5], v2, s[40:43], s64 offen offset:{8*i}\ns_nop 1")
        self("s_waitcnt vmcnt(0)")
    def tr_init(self):
        if self.o.trace: self(f"s_lshl_b32 s96, s3, 8\ns_add_u32 s96, s96, {L_TRACE}\nv_mov_b32 v150, s96\nv_lshl_add_u32 v151, v0, 2, v150\nv_mov_b32 v23, 0\nds_write_b32 v151, v23\ns_mov_b32 s95, s96")
    def tr_a(self):
        return ["s_memtime s[96:97]"] if self.o.trace else []
    def tr_b(self, tag):
        return [f"s_lshl_b32 s96, s96, 4", f"s_or_b32 s96, s96, {tag}", "v_mov_b32 v252, s96", "v_mov_b32 v253, s95", "ds_write_b32 v253, v252", "s_add_u32 s95, s95, 4"] if self.o.trace else []
    def trace(self, tag):
        if self.o.trace and tag not in (2, 5, 6, 7, 8):
            for x in self.tr_a() + ["s_waitcnt lgkmcnt(0)"] + self.tr_b(tag): self(x)
    def tr_dump(self):
        if self.o.trace:
            self(f"""s_mov_b64 exec, -1
s_waitcnt lgkmcnt(0)
s_lshl_b32 s96, s3, 8
s_add_u32 s96, s96, {L_TRACE}
v_lshl_add_u32 v254, v0, 2, s96
ds_read_b32 v252, v254
s_lshl_b32 s96, s2, 3
s_add_u32 s96, s96, s3
s_lshl_b32 s96, s96, 8
s_add_u32 s96, s96, {WS_STAMP + 0x100000}
v_lshlrev_b32 v253, 2, v0
s_waitcnt lgkmcnt(0)
buffer_store_dword v252, v253, s[40:43], s96 offen""")
    def tmo(self, back):
        self(f"s_sub_u32 s55, s55, 1\ns_max_i32 s55, s55, 0\ns_cmp_lg_u32 s55, 0\ns_cbranch_scc1 {back}")
    def lds_wait(self, addr, off, n, cmp, val, sleep=0, t=16):
        l = self.lab("Lw")
        rd = {1: f"ds_read_b32 v{t}", 2: f"ds_read_b64 v[{t}:{t+1}]", 4: f"ds_read_b128 v[{t}:{t+3}]"}[n]
        self(f"{l}:\n{rd}, {addr} offset:{off}\ns_waitcnt lgkmcnt(0)")
        if n >= 2: self(f"v_min_u32 v{t}, v{t}, v{t+1}")
        if n == 4: self(f"v_min3_u32 v{t}, v{t}, v{t+2}, v{t+3}")
        self(f"v_readfirstlane_b32 s67, v{t}\ns_cmp_{cmp}_u32 s67, {val}\ns_cbranch_scc1 {l}d")
        if sleep: self(f"s_sleep {sleep}")
        self.tmo(l)
        self(f"{l}d:")
    def lds_wait2(self, addr, off, val, sleep=0, t=16, pre=False, label=None):
        l = label or self.lab("Lv")
        if not pre: self(f"{l}:\nds_read_b32 v{t}, {addr} offset:{off}")
        else: self(f"{l}:")
        self(f"s_waitcnt lgkmcnt(0)\nv_cmp_gt_u32 vcc, {val}, v{t}\ns_cbranch_vccz {l}d")
        if sleep: self(f"s_sleep {sleep}")
        if pre: self(f"ds_read_b32 v{t}, {addr} offset:{off}")
        self.tmo(l)
        self(f"{l}d:")
    def flag_wait(self, vloc, vglob, soff, tries, sleep=0, t=20):
        l = self.lab("Lf")
        self(f"""s_mov_b32 s66, 0
{l}:
buffer_load_dword v{t}, {vloc}, s[40:43], {soff} offen sc1
s_add_u32 s66, s66, 1
s_cmp_le_u32 s66, {tries}
s_cbranch_scc1 {l}a
buffer_load_dword v{t+1}, {vglob}, s[40:43], {soff} offen sc1
s_waitcnt vmcnt(0)
v_cmp_eq_u32 vcc, s52, v{t+1}
v_cndmask_b32 v{t}, v{t}, v{t+1}, vcc
{l}a:
s_waitcnt vmcnt(0)
v_cmp_ne_u32 vcc, s52, v{t}
s_cbranch_vccz {l}d""")
        if sleep: self(f"s_sleep {sleep}")
        self.tmo(l)
        self(f"{l}d:")

MAP = {3: """s_and_b32 s56, s4, 3
s_lshr_b32 s57, s4, 2
s_and_b32 s58, s5, 3
s_lshl_b32 s6, s56, 2
s_add_u32 s6, s6, s58
s_lshr_b32 s7, s5, 2
s_mul_i32 s59, s57, 7
s_add_u32 s7, s7, s59
s_lshr_b32 s60, s58, 1
s_cmp_lg_u32 s60, s57
s_cselect_b32 s60, 7, -1
s_lshl_b32 s56, s56, 1
s_add_u32 s56, s56, s59
s_and_b32 s58, s58, 1
s_add_u32 s56, s56, s58
s_cmp_eq_u32 s7, s60
s_cselect_b32 s7, s56, s7
s_cselect_b32 s32, 1, 0
s_and_b32 s53, s4, 3
s_lshl_b32 s53, s53, 1
s_add_u32 s53, s53, s57
s_lshl_b32 s53, s53, 5
s_add_u32 s53, s53, s5
s_and_b32 s33, s5, 3
s_lshr_b32 s57, s53, 5
s_lshl_b32 s57, s57, 2
s_add_u32 s33, s33, s57""",
2: """s_and_b32 s6, s5, 1
s_lshl_b32 s7, s4, 1
s_add_u32 s6, s6, s7
s_lshr_b32 s7, s5, 1
s_cmp_eq_u32 s7, 15
s_cselect_b32 s7, s6, s7
s_cselect_b32 s32, 1, 0
s_lshl_b32 s53, s4, 5
s_add_u32 s53, s53, s5
s_and_b32 s33, s5, 3
s_lshl_b32 s57, s4, 2
s_add_u32 s33, s33, s57"""}

def prologue(A):
    o = A.o
    A(f"""s_cmp_ge_u32 s2, 256
s_cbranch_scc1 L_exit
v_lshrrev_b32 v1, 6, v0
v_and_b32 v0, 63, v0
v_readfirstlane_b32 s3, v1
v_mov_b32 v15, {L_FLAGS}
s_xor_b32 s3, s3, {o.rolex}
s_cmp_lg_u32 s3, 5
s_cbranch_scc1 L_noinit
v_mov_b32 v2, 0
v_lshl_add_u32 v3, v0, 2, v15
ds_write_b32 v3, v2""")
    if o.codepf:
        A(f"""s_getpc_b64 s[56:57]
L_pc:
s_lshr_b32 s58, s2, 3
s_lshl_b32 s58, s58, 10
v_lshl_add_u32 v3, v0, 7, s58
v_min_u32 v3, L_codeend-L_pc-4, v3
s_mov_b64 exec, 0xff
global_load_dword v255, v3, s[56:57]
s_mov_b64 exec, -1""")
    A(f"""s_waitcnt lgkmcnt(0)
L_noinit:
s_load_dwordx16 s[8:23], s[0:1], 0
s_load_dwordx8 s[24:31], s[0:1], 64
s_load_dwordx2 s[34:35], s[0:1], 104""")
    A.stamp(0)
    A(f"""s_and_b32 s4, s2, 7
s_lshr_b32 s5, s2, 3
{MAP[o.map]}
s_mov_b32 s55, {o.tmo}
s_barrier
s_cmp_ge_u32 s3, 6
s_cbranch_scc1 L_loader
s_cmp_ge_u32 s3, 4
s_cbranch_scc1 L_p47""")
    if o.gprio: A(f"s_setprio {o.gprio}")
    kpart_loads(A)
    A("s_branch L_gemm\nL_p47:")
    aux_loads(A)
    A("s_branch L_kgen")

def sync_in(A, barrier=False):
    A("s_waitcnt lgkmcnt(0)")
    A.srd(40, 34, WS_BYTES)
    A.tr_init(); A.trace(0)
    A.stamp(1)

def get_nonce(A):
    A.lds_wait("v15", F_NONCE, 1, "lg", 0)
    A("s_mov_b32 s52, s67")

def rot2(A, d, t):
    if A.o.rot2 == 0:
        A(f"s_mov_b32 s{d}, 0"); return
    A(f"""s_and_b32 s{d}, s5, 3
s_mul_i32 s{d}, s{d}, 11
s_lshr_b32 s{t}, s5, 2
s_add_u32 s{t}, s{t}, s4
s_and_b32 s{t}, s{t}, 7
s_mul_i32 s{t}, s{t}, 5
s_add_u32 s{d}, s{d}, s{t}
s_cmp_ge_u32 s{d}, 43
s_cselect_b32 s{t}, 43, 0
s_sub_u32 s{d}, s{d}, s{t}""")

def loader(A):
    o = A.o
    A(f"""L_loader:
s_sub_u32 s54, s3, 6
v_lshrrev_b32 v3, 2, v0
v_mul_u32_u24 v3, 2752, v3
v_and_b32 v11, 3, v0
v_lshrrev_b32 v1, 5, v0
v_lshlrev_b32 v1, 1, v1
v_xor_b32 v7, v1, v11
v_lshl_add_u32 v7, v7, 4, v3
v_lshrrev_b32 v1, 3, v0
v_lshlrev_b32 v2, 10, v1
v_and_b32 v5, 7, v0
v_lshrrev_b32 v6, 4, v0
s_lshl_b32 s56, s54, 2
v_add_u32 v6, s56, v6
v_xor_b32 v6, v5, v6
v_lshl_add_u32 v6, v6, 4, v2
v_add_u32 v9, s56, v15
v_lshl_add_u32 v11, v11, 2, v15
v_mov_b32 v10, 0
v_mov_b32 v16, 0
v_lshlrev_b32 v14, 7, v0
s_lshl_b32 s64, s6, 17
s_lshl_b32 s56, s54, 13
s_add_u32 s64, s64, s56
s_mul_i32 s50, s7, 192
s_cmp_eq_u32 s7, 14
s_cselect_b32 s52, 0x40000000, 0
s_lshl_b32 s59, s54, 10
s_mul_i32 s60, s54, 12288
s_add_u32 s60, s60, 16384
s_mov_b32 s61, 0
s_mov_b32 s62, 0
s_mov_b32 s66, 0
s_mov_b32 s38, 2097152
s_mov_b32 s39, 0x00020000
s_mov_b32 s46, {WBYTES}
s_mov_b32 s47, 0x00020000
s_cmp_eq_u32 s54, 1
s_waitcnt lgkmcnt(0)
s_cselect_b32 s44, s26, s24
s_cselect_b32 s45, s27, s25
s_mov_b32 s36, s8
s_and_b32 s37, s9, 0xffff
s_and_b32 s45, s45, 0xffff""")
    A.stamp(1)
    a, b = [int(x) for x in o.warm.split(":")]
    nw = -(-1376 * (b - a) // 256)
    def warm():
        A(f"""s_mul_i32 s56, s2, {nw*128}
s_add_u32 s56, s56, {1376*a*128}
s_mov_b32 exec_hi, {hex(((1 << nw) - 1) >> 32)}
{"s_mov_b32 exec_lo, " + hex((1 << nw) - 1) if nw < 32 else ""}
buffer_load_dword v13, v14, s[44:47], s56 offen
s_mov_b64 exec, -1""")
    def sig(n, val=None):
        if val is not None: A(f"v_mov_b32 v10, {val}")
        A(f"s_waitcnt vmcnt({n})\nds_write_b32 v9, v10")
    def pre_free():
        A(f"v_add_u32 v10, 1, v10\nds_read_b32 v16, v11 offset:{F_FREE}")
    def wait_free():
        A.lds_wait2("v11", F_FREE, "s66", sleep=1, pre=True)
    def advance():
        A(f"""s_sub_i32 s66, s61, 1
s_max_i32 s66, s66, 0
s_add_u32 s61, s61, 1
s_add_u32 s62, s62, {SLOT}
s_cmp_eq_u32 s62, {3*SLOT}
s_cselect_b32 s62, 0, s62""")
    def w_ins(kg, jj):
        A(f"s_add_u32 m0, s49, {jj*4096+kg*1024}\ns_add_u32 s56, s{50 if jj == 0 else 51}, {kg*16*2752+jj*64}\nbuffer_load_dwordx4 v7, s[44:47], s56 offen lds")
    A("s_cmp_eq_u32 s32, 1\ns_cbranch_scc1 L_lc\ns_branch L_ld_is\nL_ld_st:")
    wait_free()
    A(f"""L_ld_is:
s_add_u32 s65, s62, s59
s_add_u32 s51, s50, s52
s_add_u32 s49, s62, s60""")
    items = [("x", t) for t in (5, 6, 7)] + [("w", kg, jj) for kg in range(4) for jj in range(3)] + [("x", t) for t in range(5)]
    for n, it in enumerate(items):
        if n == o.sigat:
            sig(n)
            A("s_cmp_gt_u32 s61, 1\ns_cbranch_scc1 L_ld_nw\ns_cmp_eq_u32 s61, 1\ns_cbranch_scc1 L_ld_w1")
            warm()
            A("s_branch L_ld_nw\nL_ld_w1:")
            A.srd(20, 28, WBYTES)
            A(f"""s_lshl_b32 s56, s7, 4
s_add_u32 s56, s56, s6
s_lshl_b32 s56, s56, 1
s_add_u32 s56, s56, s54
s_mul_i32 s56, s56, {23*128}
s_mov_b64 exec, 0x7fffff
buffer_load_dword v13, v14, s[20:23], s56 offen
s_mov_b64 exec, -1
L_ld_nw:""")
        if n == o.preat: pre_free()
        if it == ("x", 0):
            A("s_cmp_lg_u32 s61, 2\ns_cbranch_scc1 L_ld_nb")
            A.lds_wait("v15", F_BD, 2, "lg", 0, sleep=1, t=18)
            A("L_ld_nb:")
        if it[0] == "x":
            t = it[1]
            A(f"s_add_u32 m0, s65, {t*2048}\ns_add_u32 s56, s64, {t*16384}\nbuffer_load_dwordx4 v6, s[36:39], s56 offen lds")
        else: w_ins(it[1], it[2])
    A(f"s_add_u32 s64, s64, 128\ns_add_u32 s50, s50, {64*2752}")
    advance()
    if o.stamps:
        A("s_cmp_lg_u32 s61, 1\ns_cbranch_scc1 L_ld_s1"); A.stamp(2); A("L_ld_s1:")
        A("s_cmp_lg_u32 s61, 3\ns_cbranch_scc1 L_ld_s2"); A.stamp(3); A("L_ld_s2:")
    A("s_cmp_lt_u32 s61, 8\ns_cbranch_scc1 L_ld_st")
    A("L_ld_e:")
    A.stamp(4)
    A("s_setprio 3\ns_mov_b32 s64, s66")
    gemm2_setup(A)
    A.srd(40, 34, WS_BYTES)
    A.srd(20, 28, WBYTES)
    A(f"""s_mov_b32 s66, s64
v_and_b32 v8, 2, v1
v_lshlrev_b32 v8, 1, v8
v_xor_b32 v8, v5, v8
v_lshl_add_u32 v8, v8, 4, v2
s_lshr_b32 s57, s5, 2
s_xor_b32 s57, s57, {o.cbx}
s_lshl_b32 s57, s57, 7
s_mul_i32 s58, s54, {43*16*1024}
s_add_u32 s57, s57, s58
s_mul_i32 s59, s54, 20480""")
    sig(0)
    A("L_ld_wc:")
    wait_free()
    A("s_add_u32 s65, s62, s59")
    for i in range(10):
        if i == o.wsig: sig(2*i)
        if i == 8: pre_free()
        wd_block(A, i)
    A(f"s_add_u32 s57, s57, {10*16384}")
    advance()
    A("s_cmp_lt_u32 s61, 11\ns_cbranch_scc1 L_ld_wc")
    A.stamp(5)
    A("s_branch L_g2")
    A(f"""L_lc:
s_add_u32 s50, s50, {7*64*2752}
s_cmp_eq_u32 s7, 15
s_cselect_b32 s50, 0x40000000, s50
L_lc_st:""")
    wait_free()
    A("s_add_u32 s51, s50, s52\ns_add_u32 s49, s62, s60")
    for n in range(12):
        if n == 8:
            sig(n)
            A("s_cmp_lg_u32 s61, 0\ns_cbranch_scc1 L_lc_nw")
            warm()
            A("L_lc_nw:")
        if n == 9: pre_free()
        w_ins(n // 3, n % 3)
    A(f"s_sub_u32 s50, s50, {64*2752}")
    advance()
    A("s_cmp_lt_u32 s61, 8\ns_cbranch_scc1 L_lc_st")
    A.lds_wait("v15", F_BD, 2, "lg", 0, sleep=1, t=18)
    sig(0)
    A.lds_wait("v15", F_EP, 2, "lg", 0, sleep=1, t=18)
    A("s_branch L_ld_e")

def wd_block(A, i, rot=False):
    if rot:
        A(f"""s_add_u32 m0, s65, s13
s_lshl_b32 s56, s13, 3
s_add_u32 s56, s56, s57
buffer_load_dwordx4 v8, s[20:23], s56 offen lds
s_add_u32 m0, m0, 1024
s_add_u32 s56, s56, 8192
s_add_u32 s13, s13, 2048
buffer_load_dwordx4 v8, s[20:23], s56 offen lds
s_cmp_eq_u32 s13, 20480
s_cselect_b32 s13, 0, s13""")
        return
    A(f"""s_add_u32 m0, s65, {i*2048}
s_add_u32 s56, s57, {i*16384}
buffer_load_dwordx4 v8, s[20:23], s56 offen lds
s_add_u32 m0, s65, {i*2048+1024}
s_add_u32 s56, s57, {i*16384+8192}
buffer_load_dwordx4 v8, s[20:23], s56 offen lds""")

BOUNCE = 2 * SLOT
def kpart_loads(A):
    o = A.o
    A(f"""s_and_b32 s60, s3, 1
s_lshr_b32 s61, s3, 1
s_lshl_b32 s56, s53, 1
s_add_u32 s56, s56, s61
s_lshl_b32 s57, s56, 8
s_lshl_b32 s58, s60, 7
s_add_u32 s57, s57, s58
v_lshl_add_u32 v16, v0, 1, s57
s_lshl_b32 s57, s56, 1
v_mov_b32 v17, s57""")
    sync_in(A)
    A(f"""global_load_short_d16_hi v20, v16, s[10:11]{o.ppol}
global_load_short_d16_hi v21, v17, s[18:19]
global_load_short_d16_hi v22, v16, s[12:13]{o.ppol}
global_load_short_d16_hi v24, v16, s[14:15]{o.ppol}
global_load_short_d16_hi v25, v16, s[16:17]{o.ppol}""")

def kpart(A):
    o = A.o
    A(f"""s_mul_i32 s58, s3, {32*KROW}
s_add_u32 s58, s58, {L_CONV}
v_lshl_add_u32 v16, v0, 2, s58
v_and_b32 v17, 31, v0
v_mul_u32_u24 v17, {KROW}, v17
v_lshrrev_b32 v18, 5, v0
v_lshl_add_u32 v17, v18, 4, v17
v_add_u32 v17, s58, v17
v_lshl_add_u32 v18, v0, 4, s58
s_mov_b32 s59, {LOG2E}
s_mov_b32 s56, 0x3e22f983
s_waitcnt vmcnt(3)""")
    A.stamp(2)
    A("""v_and_b32 v20, 0xffff0000, v20
v_and_b32 v21, 0xffff0000, v21
v_mul_f32 v20, s59, v20
v_mul_f32 v21, s59, v21
v_exp_f32 v20, v20
v_exp_f32 v21, v21
v_cvt_pk_bf16_f32 v20, v20, v21
v_and_b32 v21, 0xffff0000, v20
v_lshlrev_b32 v20, 16, v20
v_mul_f32 v20, v20, v21
v_mul_f32 v20, s59, v20
s_waitcnt vmcnt(2)
v_and_b32 v22, 0xffff0000, v22
v_mul_f32 v22, v22, v21
v_mul_f32 v22, s56, v22""")
    Z1, Z8, Z256, Z2, Z4, Z32 = 128, 130, 132, 134, 136, 138
    zs = ((Z8, 8.0), (Z1, 1.0), (Z256, 256.0))
    for n, (dst, p) in enumerate(zs):
        pf = struct.unpack("<I", struct.pack("<f", p))[0]
        A(f"v_mul_f32 v{26+n}, {hex(pf ^ 0x80000000)}, v20\nv_mul_f32 v{29+n}, {hex(pf)}, v22")
    for n in range(3): A(f"v_exp_f32 v{26+n}, v{26+n}\nv_fract_f32 v{29+n}, v{29+n}")
    for n, (dst, p) in enumerate(zs): A(f"v_cos_f32 v{dst}, v{29+n}\nv_sin_f32 v{dst+1}, v{29+n}")
    for n, (dst, p) in enumerate(zs): A(f"v_mul_f32 v{dst}, v{dst}, v{26+n}\nv_mul_f32 v{dst+1}, v{dst+1}, v{26+n}")
    TM = 140
    PK = 152
    pk = [0]
    def cms(ops):
        for n, (d, a, z) in enumerate(ops):
            A(f"v_pk_mul_f32 v[{TM+2*n}:{TM+2*n+1}], v[{a}:{a+1}], v[{z}:{z+1}] op_sel:[0,0] op_sel_hi:[0,1]")
        for n, (d, a, z) in enumerate(ops):
            A(f"v_pk_fma_f32 v[{d}:{d+1}], v[{a}:{a+1}], v[{z}:{z+1}], v[{TM+2*n}:{TM+2*n+1}] op_sel:[1,1,0] op_sel_hi:[1,0,1] neg_lo:[1,0,0]")
    def puts(items, neg):
        ts = []
        for src, rows in items:
            t = PK + pk[0] % 8; pk[0] += 1; ts.append(t)
            A(f"v_cvt_pk_bf16_f32 v{t}, v{src}, {'-' if neg else ''}v{src+1}")
        for t, (src, rows) in zip(ts, items):
            for r in rows: A(f"ds_write_b32 v16, v{t} offset:{r*KROW}")
    E = 160
    C = 180
    A(f"""s_waitcnt vmcnt(0)
v_add_f32 v21, v21, v21
v_and_b32 v24, 0xffff0000, v24
v_and_b32 v25, 0xffff0000, v25
v_mov_b32 v19, 0x3f80
v_mul_f32 v{E}, v24, v21
v_mul_f32 v{E+1}, v25, v21
ds_write_b32 v16, v19""")
    cms([(C+2, Z8, Z8), (Z2, Z1, Z1), (E+2, E, Z1), (E+16, E, Z8)])
    cms([(C+4, C+2, Z8), (Z32, C+2, C+2), (Z4, Z2, Z2), (E+4, E, Z2), (E+6, E+2, Z2)])
    puts([(Z8, [1]), (C+2, [2]), (C+4, [3]), (Z32, [4])], False)
    cms([(C, Z8, Z32), (C+2, C+2, Z32), (C+4, C+4, Z32), (C+6, Z32, Z32)])
    for j0 in range(5, 32, 4):
        n = min(4, 32 - j0)
        puts([(C+2*c, [j0+c]) for c in range(n)], False)
        n2 = min(4, 32 - j0 - 4)
        if n2 > 0: cms([(C+2*c, C+2*c, Z32) for c in range(n2)])
    cms([(E+8+2*i, E+2*i, Z4) for i in range(4)])
    RF, LF = 192, 224
    A("s_waitcnt lgkmcnt(0)")
    for k in range(8): A(f"ds_read_b128 v[{RF+4*k}:{RF+4*k+3}], v17 offset:{32*k}")
    def row(reg, hf): return 8 * (reg >> 2) + 4 * hf + (reg & 3)
    for i in range(8): A(f"v_cvt_pk_bf16_f32 v{PK+i}, v{E+2*i}, -v{E+2*i+1}")
    A(f"v_cvt_pk_bf16_f32 v19, v{E+16}, -v{E+17}")
    cms([(E+2*i, E+2*i, Z256) for i in (0, 2, 4, 6, 8)])
    A("s_waitcnt lgkmcnt(0)")
    for i in range(8): A(f"ds_write_b32 v16, v{PK+i} offset:{row(i, 0)*KROW}")
    A(f"ds_write_b32 v16, v19 offset:{row(8, 0)*KROW}")
    dup = {0: [0, 1], 2: [2], 4: [3, 4, 5], 6: [6], 8: [7, 8]}
    cms([(Z2, Z256, Z256)] + [(C+2*n, E+2*i, Z256) for n, i in enumerate((0, 4, 8))])
    puts([(E+2*i, [row(r, 1) for r in dup[i]]) for i in (0, 2, 4, 6, 8)], True)
    cms([(E+2*i, E+2*i, Z2) for i in (0, 4, 8)] + [(E+2, C, Z2), (E+6, C+4, Z2)])
    puts([(C+2*n, [row(9+n, 0)]) for n in range(3)], True)
    cms([(C, E, Z2), (C+2, E+16, Z2), (C+4, E+2, Z2), (C+6, E+6, Z2)])
    puts([(E+2*i, [row(9+n, 1)]) for n, i in enumerate((0, 4, 8))] + [(E+2, [row(12, 0)]), (E+6, [row(13, 0)])], True)
    cms([(E, C, Z2), (E+16, C+2, Z2)])
    puts([(C, [row(12, 1)]), (C+2, [row(13, 1)]), (C+4, [row(14, 0)]), (C+6, [row(15, 0)])], True)
    puts([(E, [row(14, 1)]), (E+16, [row(15, 1)])], True)
    A("s_waitcnt lgkmcnt(0)")
    for k in range(8): A(f"ds_read_b128 v[{LF+4*k}:{LF+4*k+3}], v17 offset:{32*k}")
    D = 128
    for k in range(8):
        A(f"s_waitcnt lgkmcnt({7-k})")
        c = "0" if k == 0 else f"v[{D}:{D+15}]"
        A(f"v_mfma_f32_32x32x16_bf16 v[{D}:{D+15}], v[{LF+4*k}:{LF+4*k+3}], v[{RF+4*k}:{RF+4*k+3}], {c}")
    for q in range(4): A(f"ds_write_b128 v18, v[{D+4*q}:{D+4*q+3}] offset:{1024*q}")
    A(f"""v_mov_b32 v12, 1
s_waitcnt lgkmcnt(0)
ds_write_b32 v13, v12 offset:{F_KP}""")
    A.stamp(3)

ACC = 32
def acc(i, jn): return ACC + 4 * (4 * jn + i)
BUF = (128, 168)
R1B, R1A = 208, 224
def g1_reads(buf, ks):
    b = BUF[buf]; L = []
    def w(jn):
        for t in range(2):
            L.append(f"ds_read_b64_tr_b16 v[{b+16+4*jn+2*t}:{b+16+4*jn+2*t+1}], v{4+jn//2} offset:{(jn&1)*12288+ks*2048+t*256}")
    w(0)
    for i in range(4): L.append(f"ds_read_b128 v[{b+4*i}:{b+4*i+3}], v{2+ks} offset:{i*2048}")
    for jn in range(1, 6): w(jn)
    return L
def g1_mm(A, buf, fill, k0=0, k1=24):
    b = BUF[buf]; k = -1
    for jn in range(6):
        for i in (range(4) if jn % 2 == 0 else range(3, -1, -1)):
            k += 1
            if not (k0 <= k < k1): continue
            a = acc(i, jn)
            if not A.o.nomm: A(f"v_mfma_f32_16x16x32_bf16 v[{a}:{a+3}], v[{b+16+4*jn}:{b+16+4*jn+3}], v[{b+4*i}:{b+4*i+3}], v[{a}:{a+3}]")
            for x in fill.get(k, []):
                if A.o.nord and ("_tr_" in x or "b128" in x): continue
                A(x)
def spread(L, start, per):
    d = {}
    for n, x in enumerate(L): d.setdefault(start + n // per, []).append(x)
    return d

def gemm(A):
    o = A.o
    A.srd(36, 8, 2097152)
    A("s_lshl_b32 s56, s3, 2\nv_add_u32 v13, s56, v15\nv_mov_b32 v14, 0x3f803f80")
    A(f"""v_and_b32 v10, 15, v0
v_lshrrev_b32 v11, 4, v0
v_lshrrev_b32 v18, 1, v10
v_xor_b32 v18, v11, v18
s_lshl_b32 s56, s60, 6
v_add_u32 v19, s56, v10
v_lshlrev_b32 v19, 7, v19
v_lshl_add_u32 v2, v18, 4, v19
v_xor_b32 v3, 64, v2
v_and_b32 v18, 1, v11
v_lshlrev_b32 v18, 5, v18
v_lshl_add_u32 v18, v11, 9, v18
v_bfe_u32 v19, v0, 2, 2
v_lshl_add_u32 v18, v19, 6, v18
v_and_b32 v19, 3, v0
v_lshl_add_u32 v18, v19, 3, v18
v_add_u32 v18, 16384, v18""")
    for j in range(3):
        A(f"""s_mul_i32 s56, s61, 3
s_add_u32 s56, s56, {j}
s_and_b32 s57, s56, 1
s_lshl_b32 s57, s57, 5
s_lshr_b32 s56, s56, 1
s_lshl_b32 s56, s56, 12
v_xor_b32 v{4+j}, s57, v18
v_add_u32 v{4+j}, s56, v{4+j}""")
    A(f"""s_mov_b32 s62, 0
s_mov_b32 s63, 0
s_mov_b32 s64, {SLOT}
s_mov_b32 s65, {-2*SLOT & 0xffffffff}
s_mov_b32 s49, 0
s_lshl_b32 s56, s60, 8
s_add_u32 s56, s56, {L_EPI}
v_lshl_add_u32 v7, v10, 2, s56
s_mul_i32 s56, s61, 384
s_add_u32 s56, s56, {L_EPI+512}
v_lshl_add_u32 v8, v11, 4, s56
v_and_b32 v9, 1, v0
v_lshl_add_u32 v9, v9, 2, v15
s_mov_b32 s48, 1""")
    for r in range(96): A(f"v_mov_b32 v{ACC+r}, 0")
    if o.nokp: A(f"v_mov_b32 v12, 1\nds_write_b32 v13, v12 offset:{F_KP}")
    else: kpart(A)
    A(f"""s_lshr_b32 s57, s5, 2
s_xor_b32 s57, s57, {A.o.cbx}
s_lshl_b32 s51, s33, 2
s_add_u32 s51, s51, s3
s_lshl_b32 s51, s51, 14
s_lshl_b32 s58, s57, 7
s_add_u32 s51, s51, s58
v_lshlrev_b32 v31, 10, v10
v_lshl_add_u32 v31, v11, 4, v31
buffer_load_dwordx4 v[248:251], v31, s[36:39], s51 offen
buffer_load_dwordx4 v[252:255], v31, s[36:39], s51 offen offset:64""")
    A(f"""v_lshrrev_b32 v23, 3, v0
v_cmp_lt_u32 vcc, 2, v23
v_subrev_u32 v22, 3, v23
v_cndmask_b32 v22, v23, v22, vcc
v_mov_b32 v23, {86*1024}
v_cndmask_b32 v23, 0, v23, vcc
v_lshl_add_u32 v23, v22, 10, v23
v_and_b32 v24, 7, v0
v_lshl_add_u32 v23, v24, 7, v23
s_mul_i32 s56, s7, 6
s_mul_i32 s57, s61, 3
s_add_u32 s56, s56, s57
s_sub_u32 s56, 86, s56
s_min_i32 s56, s56, 3
v_cmp_gt_i32 vcc, s56, v22
v_cndmask_b32 v23, 2.0, v23, vcc
s_mov_b32 s50, 0""")
    A("s_cmp_eq_u32 s32, 1\ns_cbranch_scc1 L_cs")
    A.lds_wait2("v9", F_FULL, "s48")
    A.stamp(4)
    for x in g1_reads(0, 0): A(x)
    A(".p2align 3\nL_g1_loop:")
    if o.stg:
        for k in range(8):
            A(f"s_cmp_lg_u32 s62, {k}\ns_cbranch_scc1 L_stg{k}"); A.stamp(8 + k, True); A(f"L_stg{k}:")
    for x in A.tr_a(): A(x)
    A("s_waitcnt lgkmcnt(0)")
    f = spread(g1_reads(1, 1), 0, 1)
    if o.trace:
        for n, x in enumerate(A.tr_b(1)): f[9 + n] += [x]
    f[0] += ["s_add_u32 s62, s62, 1"]
    f[1] += [f"s_add_u32 s63, s63, {SLOT}"]
    f[2] += [f"s_cmp_eq_u32 s63, {3*SLOT}"]
    f[3] += ["s_cselect_b32 s57, s65, s64"]
    f[4] += ["s_cselect_b32 s63, 0, s63"]
    f[6] += ["v_add_u32 v2, s57, v2"]
    f[7] += ["v_add_u32 v3, s57, v3"]
    f[8] += ["v_add_u32 v4, s57, v4"]
    f[12] += ["v_add_u32 v5, s57, v5"]
    f[5] += ["s_add_u32 s48, s62, 1"]
    f[16] = ["v_add_u32 v6, s57, v6"]
    f[17] = [f"ds_read_b32 v16, v9 offset:{F_FULL}", "v_mov_b32 v12, s62"]
    f[22] = ["s_waitcnt lgkmcnt(0)", f"ds_write_b32 v13, v12 offset:{F_FREE}", "v_cmp_gt_u32 vcc, s48, v16"]
    f[23] = ["s_cmp_eq_u32 s62, 8"]
    g1_mm(A, 0, f)
    A(f"""s_cbranch_scc1 L_g1_end
s_cbranch_vccnz L_g1_slow""")
    g1_mm(A, 1, spread(g1_reads(0, 0), 0, 1))
    A("s_branch L_g1_loop\nL_g1_slow:")
    g1_mm(A, 1, {o.sc - 5: [f"ds_read_b32 v16, v9 offset:{F_FULL}"], o.sc - 1: ["s_waitcnt lgkmcnt(0)", "v_cmp_gt_u32 vcc, s48, v16"]}, 0, o.sc)
    A("s_cbranch_vccnz L_g1_slow2")
    rd = g1_reads(0, 0); n2 = 16 - (22 - o.sc)
    f = spread(rd[:2*n2], o.sc, 2); f.update(spread(rd[2*n2:], o.sc + n2, 1))
    g1_mm(A, 1, f, o.sc, 24)
    A("s_branch L_g1_loop\nL_g1_slow2:")
    g1_mm(A, 1, {18: [f"ds_read_b32 v16, v9 offset:{F_FULL}"]}, o.sc, 24)
    A.lds_wait2("v9", F_FULL, "s48", pre=True)
    for x in g1_reads(0, 0): A(x)
    A("s_branch L_g1_loop")
    A(f"""L_cs:
s_cmp_eq_u32 s60, 0
s_cbranch_scc1 L_cs_go
v_mov_b32 v12, 8
ds_write_b32 v13, v12 offset:{F_FREE}
s_branch L_conv
L_cs_go:""")
    for r in range(4): A(f"v_mov_b32 v{128+r}, v14")
    A("L_cs_loop:")
    A.lds_wait("v15", F_FULL, 2, "gt", "s62")
    for ks in range(2):
        for x in g1_reads(ks, ks):
            if "_tr_" in x: A(x)
    A(f"""s_add_u32 s62, s62, 1
s_add_u32 s63, s63, {SLOT}
s_cmp_eq_u32 s63, {3*SLOT}
s_cselect_b32 s57, s65, s64
s_cselect_b32 s63, 0, s63
v_mov_b32 v12, s62
v_add_u32 v4, s57, v4
v_add_u32 v5, s57, v5
v_add_u32 v6, s57, v6
s_waitcnt lgkmcnt(0)
ds_write_b32 v13, v12 offset:{F_FREE}""")
    for ks in range(2):
        for jn in range(6):
            a = ACC + 4 * jn; b = BUF[ks]
            A(f"v_mfma_f32_16x16x32_bf16 v[{a}:{a+3}], v[128:131], v[{b+16+4*jn}:{b+16+4*jn+3}], v[{a}:{a+3}]")
    A("s_cmp_lt_u32 s62, 8\ns_cbranch_scc1 L_cs_loop")
    get_nonce(A)
    A(f"""s_lshl_b32 s56, s4, 4
s_add_u32 s56, s56, s7
s_cmp_eq_u32 s56, {4*16+7 if o.map == 3 else 999}
s_cselect_b32 s56, 15, s7
s_lshl_b32 s56, s56, 1
s_add_u32 s56, s56, s61
s_mul_i32 s56, s56, 768
s_add_u32 s56, s56, {WS_CS}
v_lshlrev_b32 v18, 3, v0
s_mov_b64 exec, 0xffff""")
    for jn in range(6):
        a = ACC + 4 * jn
        A(f"""v_mov_b32 v{a+1}, s52
buffer_store_dwordx2 v[{a}:{a+1}], v18, s[40:43], s56 offen offset:{128*jn} sc1""")
    A(f"""s_mov_b64 exec, -1
s_lshl_b32 s56, s61, 2
v_add_u32 v18, s56, v15
ds_write_b32 v18, v12 offset:{F_EP}""")
    A.stamp(5)
    A("s_branch L_conv")
    CS, ST = 208, 232
    rd = [f"ds_read_b32 v{ST+4*i+3}, v7 offset:{64*i}" for i in range(4)] + [f"ds_read_b128 v[{CS+4*jn}:{CS+4*jn+3}], v8 offset:{64*jn}" for jn in range(6)]
    prep = [f"v_lshlrev_b32 v{ST+4*i+1}, 16, v{ST+4*i+3}" for i in range(4)] + [f"v_rcp_f32 v{ST+4*i}, v{ST+4*i+1}" for i in range(4)]
    prep += [f"v_and_b32 v{ST+4*i+2}, 0xffff0000, v{ST+4*i+3}" for i in range(4)]
    for i in range(4): prep += [f"v_mul_f32 v{ST+4*i+1}, v{ST+4*i+1}, v{ST+4*i+1}", f"v_mul_f32 v{ST+4*i}, s50, v{ST+4*i}"]
    sal = f"""s_lshl_b32 s56, s6, 1
s_add_u32 s56, s56, s60
s_mul_i32 s57, s56, {2*86*1024}
s_mul_i32 s58, s7, 6
s_mul_i32 s59, s61, 3
s_add_u32 s58, s58, s59
s_lshl_b32 s59, s58, 10
s_add_u32 s57, s57, s59
s_add_u32 s57, s57, {WS_H}
s_mov_b32 s50, {LOG2E ^ 0x80000000}""".split("\n")
    A("L_g1_end:")
    f = spread(sal, 0, 2)
    f[0] = [f"ds_read_b32 v16, v9 offset:{F_EP}"] + f[0]
    f[5] = ["v_lshlrev_b32 v2, 4, v0", "s_waitcnt lgkmcnt(0)", "v_cmp_eq_u32 vcc, 0, v16"]
    g1_mm(A, 1, f, 0, 6)
    A("s_cbranch_vccnz L_g1_late")
    f = spread(rd, 6, 2)
    f.update(spread(prep, 14, 2)); f[14] = ["s_waitcnt lgkmcnt(6)"] + f[14]
    g1_mm(A, 1, f, 6, 24)
    A.stamp(5)
    A("s_branch L_g1_epi\nL_g1_late:")
    g1_mm(A, 1, {}, 6, 24)
    A.stamp(5)
    A.lds_wait2("v9", F_EP, 1)
    for x in rd: A(x)
    A("s_waitcnt lgkmcnt(6)")
    for x in prep: A(x)
    A("L_g1_epi:\ns_waitcnt lgkmcnt(0)")
    A.trace(4); A.tr_dump()
    A.stamp(6)
    T = 128
    for j in range(3):
        for ip in range(2):
            d = 192 + 4 * ((2*j+ip) % 3)
            def pr(p):
                i = 2*ip + p//2
                return acc(i, 2*j) + 2*(p % 2), acc(i, 2*j+1) + 2*(p % 2), ST + 4*i, CS + 8*j + 2*(p % 2)
            for p in range(4):
                g_, u_, sc, cs = pr(p)
                A(f"v_pk_fma_f32 v[{g_}:{g_+1}], v[{cs}:{cs+1}], v[{sc+2}:{sc+3}], v[{g_}:{g_+1}] op_sel_hi:[1,0,1]")
            for p in range(4):
                g_, u_, sc, cs = pr(p)
                A(f"v_pk_mul_f32 v[{T+2*p}:{T+2*p+1}], v[{g_}:{g_+1}], v[{sc}:{sc+1}] op_sel_hi:[1,0]")
            for p in range(4):
                g_, u_, sc, cs = pr(p)
                A(f"v_pk_fma_f32 v[{u_}:{u_+1}], v[{cs+4}:{cs+5}], v[{sc+2}:{sc+3}], v[{u_}:{u_+1}] op_sel_hi:[1,0,1]")
            for e in range(8): A(f"v_exp_f32 v{T+e}, v{T+e}")
            for p in range(4):
                g_, u_, sc, cs = pr(p)
                A(f"v_pk_mul_f32 v[{T+8+2*p}:{T+9+2*p}], v[{g_}:{g_+1}], v[{u_}:{u_+1}]")
            for p in range(4):
                g_, u_, sc, cs = pr(p)
                A(f"v_pk_fma_f32 v[{T+2*p}:{T+2*p+1}], v[{T+2*p}:{T+2*p+1}], v[{sc}:{sc+1}], v[{sc}:{sc+1}] op_sel:[0,1,1] op_sel_hi:[1,1,1]")
            for e in range(8): A(f"v_rcp_f32 v{T+e}, v{T+e}")
            for p in range(4): A(f"v_pk_mul_f32 v[{T+8+2*p}:{T+9+2*p}], v[{T+8+2*p}:{T+9+2*p}], v[{T+2*p}:{T+2*p+1}]")
            for p in range(4): A(f"v_cvt_pk_bf16_f32 v{d+p}, v{T+8+2*p}, v{T+9+2*p}")
            l = A.lab("Lhs")
            A(f"""s_add_u32 s59, s58, {j}
s_cmp_ge_u32 s59, 86
v_permlane16_swap_b32 v{d}, v{d+2}
v_permlane16_swap_b32 v{d+1}, v{d+3}
s_cbranch_scc1 {l}
s_add_u32 s59, s57, {ip*86*1024+j*1024}
buffer_store_dwordx4 v[{d}:{d+3}], v2, s[40:43], s59 offen sc1
{l}:""")
    A(f"""s_mov_b32 s50, s57
s_lshl_b32 s54, s56, 5
s_lshl_b32 s58, s7, 1
s_add_u32 s54, s54, s58
s_add_u32 s54, s54, s61
s_lshl_b32 s54, s54, 2
s_add_u32 s54, s54, {WS_FHL}""")
    A.stamp(7)
    conv(A)
    final(A)

def h_flags(A, block):
    l = A.lab("Lhf")
    if block: A(f"s_cmp_lg_u32 s49, 0\ns_cbranch_scc1 {l}")
    else: A(f"s_getreg_b32 s62, hwreg(HW_REG_IB_STS, 0, 4)\ns_or_b32 s62, s62, s49\ns_cbranch_scc1 {l}")
    A(f"""s_mov_b32 s49, 1
s_add_u32 s62, s54, {WS_FHG-WS_FHL}
s_waitcnt vmcnt(0)
s_mov_b64 exec, 1
buffer_store_dword v20, v21, s[40:43], s54 offen
buffer_store_dword v20, v21, s[40:43], s62 offen sc1
s_mov_b64 exec, -1
{"buffer_load_dword v22, v23, s[40:43], s50 offen sc1" if A.o.hpf else ""}
{"ds_write_b32 v13, v20 offset:" + str(F_HD) if A.o.pause else ""}
{l}:""")

def conv(A):
    o = A.o
    D = 32
    A(f"""L_conv:
s_mul_i32 s58, s61, {CONV_SZ}
s_add_u32 s58, s58, {L_CONV}
s_lshl_b32 s59, s60, 8
s_sub_u32 s59, s58, s59
v_and_b32 v10, 15, v0
v_lshrrev_b32 v11, 4, v0
v_and_b32 v18, 1, v0
v_cmp_eq_u32 vcc, 1, v18
v_sub_u32 v18, 2032, v10
v_lshrrev_b32 v18, 1, v18
v_lshl_add_u32 v18, v11, 2, v18
v_lshlrev_b32 v18, 2, v18
v_mov_b32 v19, {KT_O}
v_cndmask_b32 v19, v19, 0, vcc
v_add3_u32 v18, v18, v19, s59""")
    for p in range(4): A(f"v_subrev_u32 v{4+p}, {4*(128*(2*p+1)+48)}, v18")
    A(f"""v_lshlrev_b32 v8, 5, v10
v_lshl_add_u32 v8, v11, 4, v8
v_add_u32 v8, s59, v8
v_add_u32 v8, {U_OFF+512-32-192}, v8""")
    get_nonce(A)
    A("v_mov_b32 v20, s52\nv_mov_b32 v21, 0\ns_mov_b32 s49, s32")
    A.lds_wait("v15", F_KR, 2, "lg", 0)
    A.stamp(8)
    KB = (64, 128); UB = (96, 160)
    def reads(buf, cc):
        L = []
        for a in range(8):
            off = 128 * (1 - (a & 1)) + 16 * (3 - cc)
            for h in range(2):
                L.append(f"ds_read2_b32 v[{KB[buf]+4*a+2*h}:{KB[buf]+4*a+2*h+1}], v{4+a//2} offset0:{off+2*h} offset1:{off+2*h+1}")
            L.append(f"ds_read_b128 v[{UB[buf]+4*a}:{UB[buf]+4*a+3}], v8 offset:{512*a+64*(3-cc)}")
        return L
    cnt = [0]
    def mm(buf, fill, first):
        fill = list(fill)
        for a in range(8):
            for p in range(8 - a):
                q = D + 4 * (a + p)
                c = "0" if (first and a == 0) else f"v[{q}:{q+3}]"
                A(f"v_mfma_f32_16x16x32_bf16 v[{q}:{q+3}], v[{KB[buf]+4*a}:{KB[buf]+4*a+3}], v[{UB[buf]+4*p}:{UB[buf]+4*p+3}], {c}")
                if fill: A(fill.pop(0))
                cnt[0] += 1
                if cnt[0] == o.hflag_at: h_flags(A, True)
                elif cnt[0] < o.hflag_at and cnt[0] % o.hflag_ev == 0: h_flags(A, False)
        assert not fill
    xsetup = f"""s_xor_b32 s59, s3, 1
s_lshl_b32 s59, s59, 2
v_add_u32 v9, s59, v15
v_lshlrev_b32 v5, 4, v0
s_lshl_b32 s59, s60, 12
s_add_u32 s59, s59, s58
v_add_u32 v6, s59, v5
v_xor_b32 v7, 4096, v5
s_lshl_b32 s59, s60, 12
v_xor_b32 v7, s59, v7
v_add_u32 v7, s58, v7
s_lshl_b32 s56, s53, 1
s_add_u32 s56, s56, s61
s_lshl_b32 s57, s56, 8
s_lshl_b32 s59, s60, 21
s_add_u32 s57, s57, s59
s_add_u32 s57, s57, {WS_ST}
v_lshlrev_b32 v4, 17, v11
v_lshl_add_u32 v4, v10, 4, v4
v_and_b32 v2, 3, v0
v_lshlrev_b32 v2, 6, v2
v_and_b32 v3, 60, v0
v_add_u32 v2, v2, v3
v_mov_b32 v193, s52
v_mov_b32 v195, s52
v_mov_b32 v197, s52
v_mov_b32 v199, s52
v_mov_b32 v201, s52
v_mov_b32 v203, s52
v_mov_b32 v205, s52
v_mov_b32 v207, s52
ds_read_b32 v16, v9 offset:{F_CA}""".split("\n")
    xsetup = [x if x != "s_nop 0" else "" for x in xsetup]
    for x in reads(0, 0): A(x)
    for cc in range(4):
        A("s_waitcnt lgkmcnt(0)")
        if cc == 3:
            A(f"v_mov_b32 v12, 1\nds_write_b32 v13, v12 offset:{F_CA}")
        mm(cc % 2, reads((cc + 1) % 2, cc + 1) if cc < 3 else xsetup, cc == 0)
    A.stamp(9)
    A.lds_wait2("v9", F_CA, 1, pre=True)
    A("s_nop 1")
    A("s_cmp_eq_u32 s60, 0\ns_cbranch_scc1 L_cx0")
    for q in range(4): A(f"ds_write_b128 v6, v[{32+4*q}:{35+4*q}] offset:{q*1024}")
    for r in range(16): A(f"v_mov_b32 v{32+r}, v{48+r}")
    A("s_branch L_cx1\nL_cx0:")
    for q in range(4): A(f"ds_write_b128 v6, v[{48+4*q}:{51+4*q}] offset:{q*1024}")
    A(f"""L_cx1:
s_waitcnt lgkmcnt(0)
ds_write_b32 v13, v12 offset:{F_CB}""")
    A.lds_wait2("v9", F_CB, 1)
    for q in range(4): A(f"ds_read_b128 v[{48+4*q}:{51+4*q}], v7 offset:{q*1024}")
    for q in range(4):
        A(f"s_waitcnt lgkmcnt({3-q})")
        for p in range(4):
            a = 32 + 4*q + p
            A(f"v_add_f32 v{a}, v{a}, v{a+16}")
        A(f"v_cvt_pk_bf16_f32 v{240+2*q}, v{32+4*q}, v{33+4*q}\nv_cvt_pk_bf16_f32 v{241+2*q}, v{34+4*q}, v{35+4*q}")
    for q in range(4):
        A(f"ds_bpermute_b32 v{192+4*q}, v2, v{240+2*q}\nds_bpermute_b32 v{194+4*q}, v2, v{241+2*q}")
    for q in range(4):
        A(f"s_waitcnt lgkmcnt({6-2*q})\nbuffer_store_dwordx4 v[{192+4*q}:{195+4*q}], v4, s[40:43], s57 offen sc1\ns_add_u32 s57, s57, {4*131072}")
    A.stamp(10)

def final(A):
    o = A.o
    A.srd(44, 30, 2097152)
    A(f"""s_lshr_b32 s57, s5, 2
s_xor_b32 s57, s57, {A.o.cbx}
s_lshl_b32 s58, s57, 2
s_add_u32 s58, s58, s3
s_lshl_b32 s63, s58, 12
s_lshl_b32 s64, s33, 17
s_add_u32 s63, s63, s64
s_add_u32 s56, s63, {WS_ST}
s_mul_i32 s65, s61, {CONV_SZ}
s_lshl_b32 s66, s60, 11
s_add_u32 s65, s65, s66
s_add_u32 s65, s65, {L_CONV+S_OFF}
v_lshl_add_u32 v4, v0, 3, s65
v_bfe_u32 v3, v0, 2, 2
v_lshl_add_u32 v3, v11, 3, v3
v_lshlrev_b32 v6, 7, v3
v_and_b32 v3, 3, v0
v_lshl_add_u32 v6, v3, 3, v6
s_lshl_b32 s65, s3, 5
s_add_u32 s65, s65, {L_CONV+S_OFF}
v_add_u32 v6, s65, v6
v_lshl_add_u32 v8, v3, 2, v15
v_lshlrev_b32 v7, 10, v11
v_lshl_add_u32 v7, v10, 4, v7
s_lshl_b32 s65, s61, 13
s_lshl_b32 s66, s60, 8
s_add_u32 s65, s65, s66
s_add_u32 s65, s65, {SLOT}
v_add_u32 v7, s65, v7
v_and_b32 v9, 1, v0
v_lshlrev_b32 v9, 3, v9
s_lshl_b32 s65, s61, 2
v_add3_u32 v9, v9, s65, v15
v_add_u32 v18, 1024, v4
s_waitcnt vmcnt(4)""")
    A.stamp(11)
    for p in range(8): A(f"v_lshlrev_b32 v{80+2*p}, 16, v{248+p}\nv_and_b32 v{81+2*p}, 0xffff0000, v{248+p}")
    if o.mark == 99: A.lds_wait2("v8", F_PD, 1, sleep=2)
    elif o.mark: A.lds_wait2("v8", F_PG, 1 if o.mark < 30 else 3, sleep=2)
    A("L_s_fl:")
    for k in range(4): A(f"buffer_load_dwordx4 v[{112+4*k}:{115+4*k}], v5, s[40:43], s56 offen offset:{1024*k} sc1")
    A("s_waitcnt vmcnt(0)")
    for k in range(8): A(f"v_xor_b32 v{64+k}, s52, v{113+2*k}")
    A(f"""v_or3_b32 v64, v64, v65, v66
v_or3_b32 v67, v67, v68, v69
v_or3_b32 v64, v64, v70, v71
v_or_b32 v64, v64, v67
v_cmp_ne_u32 vcc, 0, v64
s_cbranch_vccz L_s_fld
s_sleep {o.ssleep}""")
    A.tmo("L_s_fl")
    A("L_s_fld:")
    A.stamp(12)
    for k in range(4): A(f"ds_write2_b32 v{4 if k < 2 else 18}, v{112+4*k}, v{114+4*k} offset0:{128*(k%2)} offset1:{128*(k%2)+1}")
    A(f"""s_waitcnt lgkmcnt(0)
ds_write_b32 v13, v12 offset:{F_SS}""")
    A.lds_wait2("v8", F_SS, 1)
    for nt in range(2):
        for h in range(2): A(f"ds_read_b64_tr_b16 v[{72+4*nt+2*h}:{73+4*nt+2*h}], v6 offset:{nt*CONV_SZ+h*512}")
    A(f"s_mov_b32 s64, {LOG2E ^ 0x80000000}\ns_mov_b32 s65, s64\ns_waitcnt lgkmcnt(0)")
    for p in range(8): A(f"v_lshlrev_b32 v{96+2*p}, 16, v{72+p}\nv_and_b32 v{97+2*p}, 0xffff0000, v{72+p}")
    A.stamp(13)
    A.lds_wait2("v9", F_PD, 1)
    A.stamp(14)
    for q in range(4):
        for kh in range(2):
            r = 32 + 16*kh + 4*q
            A(f"ds_read_b128 v[{r}:{r+3}], v7 offset:{kh*20480+(q>>1)*4096+(q&1)*512}")
    for q in range(4):
        A(f"s_waitcnt lgkmcnt({6-2*q})")
        for p in range(2):
            a = 32 + 4*q + 2*p
            A(f"v_pk_add_f32 v[{a}:{a+1}], v[{a}:{a+1}], v[{a+16}:{a+17}]")
        for p in range(2):
            a = 32 + 4*q + 2*p
            A(f"v_pk_mul_f32 v[{a+16}:{a+17}], v[{a}:{a+1}], s[64:65]")
        for e in range(4): A(f"v_exp_f32 v{48+4*q+e}, v{48+4*q+e}")
    for nt in range(2):
        for p in range(4*nt, 4*nt+4): A(f"v_pk_add_f32 v[{48+2*p}:{49+2*p}], v[{48+2*p}:{49+2*p}], 1.0 op_sel_hi:[1,0]")
        for p in range(4*nt, 4*nt+4): A(f"v_pk_mul_f32 v[{32+2*p}:{33+2*p}], v[{32+2*p}:{33+2*p}], v[{96+2*p}:{97+2*p}]")
        for e in range(8*nt, 8*nt+8): A(f"v_rcp_f32 v{48+e}, v{48+e}")
        for p in range(4*nt, 4*nt+4): A(f"v_pk_fma_f32 v[{32+2*p}:{33+2*p}], v[{32+2*p}:{33+2*p}], v[{48+2*p}:{49+2*p}], v[{80+2*p}:{81+2*p}]")
        for p in range(4*nt, 4*nt+4): A(f"v_cvt_pk_bf16_f32 v{64+p}, v{32+2*p}, v{33+2*p}")
        A(f"buffer_store_dwordx4 v[{64+4*nt}:{67+4*nt}], v31, s[44:47], s51 offen offset:{64*nt}{o.opol}")
    A.stamp(15)
    if o.probe >= 0:
        A(f"""s_cmp_lg_u32 s2, {o.probewg}
s_cbranch_scc1 L_prd
s_cmp_lg_u32 s3, 2
s_cbranch_scc1 L_prd
s_waitcnt lgkmcnt(0)
s_sub_u32 s64, s{68+2*o.probe}, s68
s_lshl_b32 s64, s64, 3
s_add_u32 s64, s64, 3000
L_pr:
s_memrealtime s[66:67]
s_waitcnt lgkmcnt(0)
s_sub_u32 s66, s66, s68
s_cmp_lt_u32 s66, s64
s_cbranch_scc1 L_pr
L_prd:""")
    A.put_stamps()
    A("s_endpgm")

NPRE = 13
WR = 64
HR = 168; NH = 18
WF = 240
GA = 116
def gemm2_setup(A):
    A(f"""s_and_b32 s66, s3, 1
s_bfe_u32 s48, s3, 0x10001
v_and_b32 v{GA+9}, 31, v0
v_lshrrev_b32 v{GA+1}, 5, v0
v_bfe_u32 v{GA+2}, v0, 2, 2
v_lshl_add_u32 v{GA+2}, v{GA+1}, 3, v{GA+2}
v_lshlrev_b32 v{GA}, 7, v{GA+2}
v_bfe_u32 v{GA+2}, v0, 3, 1
v_lshl_add_u32 v{GA}, v{GA+2}, 6, v{GA}
v_bfe_u32 v{GA+2}, v0, 4, 1
v_lshl_add_u32 v{GA}, v{GA+2}, 5, v{GA}
v_and_b32 v{GA+2}, 3, v0
v_lshl_add_u32 v{GA}, v{GA+2}, 3, v{GA}
s_mul_i32 s101, s48, 20480
v_add_u32 v{GA}, s101, v{GA}
v_xor_b32 v{GA+1}, 64, v{GA}
v_add_u32 v{GA+2}, {2*SLOT}, v{GA}
v_add_u32 v{GA+3}, {2*SLOT}, v{GA+1}
s_lshl_b32 s67, s48, 2
v_add_u32 v{GA+4}, s67, v15
v_lshlrev_b32 v{GA+5}, 4, v0
s_and_b32 s67, s3, 3
s_lshl_b32 s67, s67, 2
v_add_u32 v{GA+6}, s67, v15
v_xor_b32 v{GA+7}, 4, v{GA+6}
s_lshl_b32 s67, s66, 13
s_add_u32 s101, s101, s67
s_add_u32 s101, s101, {SLOT}
v_add_u32 v{GA+8}, s101, v{GA+5}
v_min_u32 v{GA+9}, 28, v{GA+9}
v_lshlrev_b32 v{GA+9}, 2, v{GA+9}
v_add_u32 v{GA+10}, {WS_FHG-WS_FHL}, v{GA+9}
v_and_b32 v{GA+11}, 1, v0
s_lshl_b32 s67, s66, 3
v_lshl_add_u32 v{GA+11}, v{GA+11}, 2, s67
v_add_u32 v{GA+11}, v{GA+11}, v15
v_mov_b32 v114, 1
v_mov_b32 v115, 2
s_lshl_b32 s101, s33, 1
s_add_u32 s101, s101, s66
s_mul_i32 s101, s101, {86*1024}
s_mul_i32 s67, s48, {43*1024}
s_add_u32 s101, s101, s67
s_add_u32 s101, s101, {WS_H}
s_lshl_b32 s48, s33, 7
s_add_u32 s48, s48, {WS_FHL}""")

def gemm2(A):
    o = A.o
    WRL = [32 + 8*i for i in range(10)] + [128 + 8*i for i in range(3)]
    AC = 152; HR = 184; NH = 18; PD = 3
    def wrd(i, b):
        c, ii = i // 10, i % 10
        sl = (8 + c) % 3
        L = []
        for nt in range(2):
            for t in range(2):
                ad = GA + ((2 + nt) if sl == 2 else nt)
                off = ii * 2048 + t * 512 + (SLOT if sl == 1 else 0)
                L.append(f"ds_read_b64_tr_b16 v[{b+4*nt+2*t}:{b+4*nt+2*t+1}], v{ad} offset:{off}")
        return L
    A("L_g2:")
    if o.g2prio: A(f"s_setprio {o.g2prio}")
    A.lds_wait2(f"v{GA+4}", F_FULL, 10, sleep=2)
    for i in range(NPRE):
        for x in wrd(i, WRL[i]): A(x)
    A(f"s_waitcnt lgkmcnt(0)\nds_write_b32 v{GA+6}, v114 offset:{F_PR}")
    A.stamp(8)
    A("s_cmp_lt_u32 s3, 6\ns_cbranch_scc1 L_g2_nl")
    A.lds_wait2(f"v{GA+11}", F_PR, 1, sleep=1)
    if o.pause == 3:
        A("s_cmp_eq_u32 s32, 1\ns_cbranch_scc1 L_g2_np")
        A.lds_wait2("v11", F_HD, 1, sleep=2, t=18)
        A("L_g2_np:")
    A(f"s_add_u32 s65, s59, {2*SLOT}")
    for i in range(10): wd_block(A, i)
    A(f"s_mov_b32 s65, s59\ns_add_u32 s57, s57, {10*16384}")
    for i in range(3): wd_block(A, i)
    get_nonce(A)
    A("v_mov_b32 v10, 13\ns_waitcnt vmcnt(0)\nds_write_b32 v9, v10\nL_g2_nl:")
    A.stamp(9)
    A.flag_wait(f"v{GA+9}", f"v{GA+10}", "s48", 0 if o.map == 3 else 48, sleep=o.hsleep)
    A.stamp(10)
    if o.g2prio: A(f"s_setprio {o.g2prio2}")
    A("v_mov_b32 v113, 3")
    def hld(i):
        r = HR + 4 * (i % NH)
        L = [f"buffer_load_dwordx4 v[{r}:{r+3}], v{GA+5}, s[40:43], s101 offen offset:{(i%4)*1024}{o.hld}"]
        if i % 4 == 3: L.append("s_add_u32 s101, s101, 4096")
        return L
    AHEAD = o.ahead
    assert AHEAD < NH
    for i in range(AHEAD):
        for x in hld(i): A(x)
    A(f"ds_read_b32 v16, v{GA+4} offset:{F_FULL}\ns_waitcnt vmcnt({AHEAD-1})")
    lds_q = []
    for i in range(43):
        nxt = i + 1
        b = WRL[i % NPRE]
        r = HR + 4 * (i % NH)
        if i + PD == 20: A.lds_wait2(f"v{GA+4}", F_FULL, 13, pre=True); lds_q = []
        w = wrd(i + PD, WRL[(i + PD) % NPRE]) if NPRE <= i + PD < 43 else []
        def mf(nt):
            c = "0" if i == 0 else f"v[{AC+16*nt}:{AC+16*nt+15}]"
            A(f"v_mfma_f32_32x32x16_bf16 v[{AC+16*nt}:{AC+16*nt+15}], v[{b+4*nt}:{b+4*nt+3}], v[{r}:{r+3}], {c}")
        mf(0)
        for x in w[:3]: A(x)
        mf(1)
        for x in w[3:]: A(x)
        lds_q += [i + PD] * len(w)
        if i + AHEAD < 43:
            for x in hld(i + AHEAD): A(x)
        if i == o.mark: A(f"ds_write_b32 v{GA+6}, v{114 if o.mark < 30 else 113} offset:{F_PG}"); lds_q.append(99)
        if i == 30: A(f"ds_write_b32 v{GA+6}, v115 offset:{F_PG}"); lds_q.append(99)
        if i == 41: A(f"ds_read_b32 v16, v{GA+7} offset:{F_PG}"); lds_q.append(99)
        if nxt < 43:
            out = min(43, i + AHEAD + 1) - (nxt + 1)
            lg = ""
            if nxt in lds_q:
                last = len(lds_q) - 1 - lds_q[::-1].index(nxt)
                lg = f" lgkmcnt({len(lds_q) - 1 - last})"
                lds_q = lds_q[last + 1:]
            A(f"s_waitcnt vmcnt({out}){lg}")
    A.stamp(11)
    A.lds_wait2(f"v{GA+7}", F_PG, 2, pre=True)
    A("s_nop 6")
    for q in range(8): A(f"ds_write_b128 v{GA+8}, v[{AC+4*q}:{AC+4*q+3}] offset:{q*1024}")
    A(f"s_waitcnt lgkmcnt(0)\nds_write_b32 v{GA+6}, v114 offset:{F_PD}\ns_waitcnt lgkmcnt(0)")
    A.stamp(12)
    A.put_stamps()
    A("s_endpgm")

def aux_loads(A):
    o = A.o
    A(f"""s_sub_u32 s54, s3, 4
s_lshl_b32 s46, s53, 13
s_lshl_b32 s58, s54, 12
s_add_u32 s46, s46, s58
v_lshlrev_b32 v2, 4, v0
s_lshl_b32 s56, s53, 1
s_add_u32 s56, s56, s54
s_lshl_b32 s57, s56, 1
v_mov_b32 v3, s57
v_mov_b32 v13, 0""")
    sync_in(A)
    A.srd(36, 8, 2097152)
    for r in range(4): A(f"buffer_load_dwordx4 v[{128+4*r}:{131+4*r}], v2, s[36:39], s46 offen offset:{1024*r}{o.lnpol}")
    A("""global_load_ushort v9, v3, s[20:21]
buffer_load_dword v14, v13, s[40:43], 0 offen sc1""")

def kgen(A):
    o = A.o
    A("L_kgen:")
    gemm2_setup(A)
    A(f"""s_mul_i32 s58, s54, {CONV_SZ}
s_add_u32 s58, s58, {L_CONV}
v_mov_b32 v24, 0x3f803f80
v_mov_b32 v25, 0x00003f80
v_mov_b32 v26, 0x3f800000
s_mov_b32 s60, 0x3b000000
s_mov_b32 s59, 0x3727c5ac
v_mul_u32_u24 v4, 144, v0
s_lshl_b32 s57, s54, 3
s_add_u32 s57, s57, {BOUNCE}
v_add_u32 v4, s57, v4
v_lshrrev_b32 v5, 3, v0
v_mul_u32_u24 v5, 144, v5
v_and_b32 v6, 7, v0
v_lshl_add_u32 v5, v6, 4, v5
s_mul_i32 s57, s54, {32*144}
s_add_u32 s57, s57, {BOUNCE}
v_add_u32 v5, s57, v5
s_lshl_b32 s57, s54, 2
v_add_u32 v21, s57, v15
v_mov_b32 v22, 1
v_lshlrev_b32 v3, 3, v0
v_lshrrev_b32 v6, 1, v0""")
    for r in range(4):
        A(f"s_waitcnt vmcnt({5-r})")
        if r == 0: A.stamp(2)
        for i in range(4):
            c1 = "0" if i == 0 else f"v{160+r}"; c2 = "0" if i == 0 else f"v{164+r}"
            A(f"v_dot2_f32_bf16 v{160+r}, v{128+4*r+i}, v24, {c1}\nv_dot2_f32_bf16 v{164+r}, v{128+4*r+i}, v{128+4*r+i}, {c2}")
    for b in (160, 161, 164, 165): A(f"v_permlane32_swap_b32 v{b}, v{b+2}")
    for b in (160, 161, 164, 165): A(f"v_add_f32 v{b}, v{b}, v{b+2}")
    for b in (160, 164): A(f"v_permlane16_swap_b32 v{b}, v{b+1}")
    for b in (160, 164): A(f"v_add_f32 v{b}, v{b}, v{b+1}")
    for sh in (8, 4, 2, 1):
        for reg in (160, 164):
            A(f"v_add_f32_dpp v{reg}, v{reg}, v{reg} row_ror:{sh} row_mask:0xf bank_mask:0xf")
    A("""v_mul_f32 v160, s60, v160
v_mul_f32 v164, s60, v164
v_fma_f32 v164, -v160, v160, v164
v_max_f32 v164, 0, v164
v_cvt_pk_bf16_f32 v161, v164, -v160
v_and_b32 v160, 0xffff0000, v161
v_lshlrev_b32 v164, 16, v161
v_add_f32 v164, s59, v164
v_cvt_pk_bf16_f32 v164, v164, v164
v_and_b32 v164, 0xffff0000, v164
v_sqrt_f32 v164, v164""")
    for r in range(4): A(f"v_readlane_b32 s{8+r}, v160, {16*r}")
    A("""v_cvt_pk_bf16_f32 v112, v164, v160
v_lshlrev_b32 v164, 16, v112
v_rcp_f32 v164, v164""")
    N = 168
    for c in range(8):
        for r in range(4):
            A(f"v_dot2_f32_bf16 v{N+4*c+r}, v{128+4*r+c//2}, {'v25' if c % 2 == 0 else 'v26'}, s{8+r}")
        if c == 0:
            for r in range(4): A(f"v_readlane_b32 s{12+r}, v164, {16*r}")
    for c in range(8):
        for h in range(2): A(f"v_pk_mul_f32 v[{N+4*c+2*h}:{N+4*c+2*h+1}], v[{N+4*c+2*h}:{N+4*c+2*h+1}], s[{12+2*h}:{13+2*h}]")
    for c in range(8):
        for h in range(2): A(f"v_cvt_pk_bf16_f32 v{144+2*c+h}, v{N+4*c+2*h}, v{N+4*c+2*h+1}")
        A(f"ds_write_b64 v4, v[{144+2*c}:{145+2*c}] offset:{16*c}")
    A(f"""s_waitcnt vmcnt(0)
v_readfirstlane_b32 s52, v14
s_mul_i32 s52, s52, 0x9E3779B1
s_add_u32 s52, s52, 0x7F4A7C15
v_mov_b32 v17, s52
s_or_b32 s52, s52, 0x10000
v_mov_b32 v16, s52
s_cmp_lg_u32 s54, 0
s_cbranch_scc1 L_k_nn
ds_write_b64 v15, v[16:17] offset:{F_NONCE}
L_k_nn:
s_waitcnt lgkmcnt(0)
ds_write_b32 v21, v22 offset:{F_LN}""")
    A.lds_wait("v15", F_LN, 2, "lg", 0)
    for k in range(4): A(f"ds_read_b128 v[{96+4*k}:{99+4*k}], v5 offset:{k*8*144}")
    get_nonce(A)
    A(f"""ds_write_b32 v21, v22 offset:{F_BD}
v_mov_b32 v113, s52
s_lshr_b32 s47, s46, 7
s_add_u32 s47, s47, {WS_STATS}
s_mul_i32 s57, s53, {o.xpad}
s_add_u32 s46, s46, s57
s_add_u32 s46, s46, {WS_XNT}""")
    A.stamp(3)
    def ln_stores():
        for k in range(4): A(f"buffer_store_dwordx4 v[{96+4*k}:{99+4*k}], v2, s[40:43], s46 offen offset:{k*1024} sc1")
        A(f"""s_mov_b32 exec_lo, 0x00010001
s_mov_b32 exec_hi, 0x00010001
buffer_store_dwordx2 v[112:113], v6, s[40:43], s47 offen sc1
s_mov_b64 exec, -1""")
    if o.stat == 0: ln_stores()
    D = 32
    A(f"""s_lshl_b32 s57, s54, 3
v_add_u32 v7, s57, v15
v_add_u32 v14, s58, v2""")
    A.lds_wait("v7", F_KP, 2, "lg", 0, sleep=1)
    for q in range(4): A(f"ds_read_b128 v[{D+4*q}:{D+4*q+3}], v14 offset:{1024*q}")
    for q in range(4): A(f"ds_read_b128 v[{D+32+4*q}:{D+32+4*q+3}], v14 offset:{32*KROW+1024*q}")
    A("s_waitcnt lgkmcnt(0)")
    for r in range(16): A(f"v_add_f32 v{D+r}, v{D+r}, v{D+32+r}")
    A(f"""ds_write_b32 v21, v22 offset:{F_KD}
v_lshlrev_b32 v9, 16, v9
v_cmp_eq_u32 vcc, 0, v0
v_cndmask_b32 v9, 0, v9, vcc
v_sub_u32 v12, {4080-3072}, v2
v_add_u32 v12, s58, v12
v_and_b32 v13, 1, v0
v_cmp_eq_u32 vcc, 1, v13
v_mov_b32 v16, 0
v_mov_b32 v17, 0
v_mov_b32 v18, 0
v_mov_b32 v19, 0
v_add_f32 v{D}, v{D}, v9""")
    def wr(grp, k):
        t = 48 + 8 * (grp % 2)
        for u in range(4): A(f"v_cvt_pk_bf16_f32 v{t+u}, v{k[7-2*u]}, v{k[6-2*u]}")
        for u in range(4): A(f"v_cvt_pk_bf16_f32 v{t+4+u}, v{k[8-2*u]}, v{k[7-2*u]}")
        A(f"ds_write_b128 v12, v[{t}:{t+3}] offset:{3072-1024*grp}\nds_write_b128 v12, v[{t+4}:{t+7}] offset:{3072-1024*grp+KT_O}")
    wr(0, [D+i for i in range(9)])
    a, b, c = D+9, D+10, D+11
    wr(1, [a, a, a, b, b, b, c, c, c])
    for grp in (2, 3):
        a, b = D + 12 + 2*(grp-2), D + 13 + 2*(grp-2)
        A(f"v_cndmask_b32 v20, v{a}, v{b}, vcc")
        wr(grp, [a, a, a, a, 20, b, b, b, b])
    A(f"""s_mov_b64 exec, 0xf
ds_write_b128 v14, v[16:19] offset:4096
s_mov_b32 exec_lo, -1
ds_write_b128 v14, v[16:19] offset:{U_OFF}
s_mov_b64 exec, 1
v_cvt_pk_bf16_f32 v16, v{D}, 0
s_mov_b64 exec, 0xf
ds_write_b128 v14, v[16:19] offset:{4096+KT_O}
s_mov_b64 exec, -1""")
    A.stamp(4)
    if o.stat:
        A.lds_wait("v15", F_FULL, 2, "ge", o.stat, sleep=4)
        ln_stores()
    A(f"""s_lshl_b32 s57, s54, 8
s_add_u32 s57, s57, s53
s_lshl_b32 s57, s57, 2
s_add_u32 s57, s57, {WS_FLG}
s_waitcnt vmcnt(0)
s_mov_b64 exec, 1
buffer_store_dword v113, v2, s[40:43], s57 offen sc1
s_mov_b64 exec, -1""")
    A(f"""s_cmp_eq_u32 s32, 1
s_cbranch_scc1 L_k_ed
s_lshl_b32 s61, s6, 10
s_add_u32 s61, s61, {WS_STATS}
s_mul_i32 s62, s7, 1536
s_add_u32 s62, s62, {WS_CS}
s_cmp_eq_u32 s54, 0
s_cselect_b32 s61, s61, s62
s_cselect_b32 s62, 0, 1024
s_add_u32 s62, s62, s61
s_lshl_b32 s63, s54, 9
s_add_u32 s63, s63, {L_EPI}
v_lshl_add_u32 v4, v0, 2, s63""")
    if o.eat:
        A(f"s_cmp_eq_u32 s54, 0\ns_cselect_b32 s57, {o.eat0 or o.eat}, {o.eat}")
        A.lds_wait("v15", F_FULL, 2, "ge", "s57", sleep=o.easl)
    A(f"""L_k_el:
buffer_load_dwordx2 v[96:97], v3, s[40:43], s61 offen sc1
buffer_load_dwordx2 v[98:99], v3, s[40:43], s61 offen offset:512 sc1
buffer_load_dwordx2 v[100:101], v3, s[40:43], s62 offen sc1
s_waitcnt vmcnt(0)
v_xor_b32 v16, s52, v97
v_xor_b32 v17, s52, v99
v_xor_b32 v18, s52, v101
v_or3_b32 v16, v16, v17, v18
v_cmp_ne_u32 vcc, 0, v16
s_cbranch_vccz L_k_eo
s_sleep {o.esleep}""")
    A.tmo("L_k_el")
    A(f"""L_k_eo:
ds_write_b32 v4, v96
ds_write_b32 v4, v98 offset:256
s_cmp_eq_u32 s54, 0
s_cbranch_scc1 L_k_e2
ds_write_b32 v4, v100 offset:512
L_k_e2:
s_waitcnt lgkmcnt(0)
ds_write_b32 v21, v22 offset:{F_EP}
L_k_ed:""")
    A.stamp(7)
    A(f"""s_lshr_b32 s61, s53, 7
s_lshl_b32 s61, s61, 10
s_lshl_b32 s62, s54, 9
s_add_u32 s61, s61, s62
s_add_u32 s61, s61, {WS_FLG}
v_lshrrev_b32 v4, 1, v0
v_mul_u32_u24 v5, {8192+o.xpad}, v4
v_lshl_add_u32 v5, v13, 4, v5
v_mul_u32_u24 v6, {CONV_SZ}, v13
v_lshl_add_u32 v6, v4, 4, v6
s_lshl_b32 s62, s54, 11
s_add_u32 s62, s62, {L_CONV+U_OFF+512}
v_add_u32 v6, s62, v6
s_mul_i32 s62, s54, {128*(8192+o.xpad)}
s_lshl_b32 s63, s53, 5
s_add_u32 s62, s62, s63
s_add_u32 s62, s62, {WS_XNT}""")
    if o.uat: A.lds_wait("v15", F_FULL, 2, "ge", o.uat, sleep=4)
    A(f"""L_k_fl:
buffer_load_dwordx2 v[16:17], v3, s[40:43], s61 offen sc1
s_waitcnt vmcnt(0)
v_xor_b32 v16, s52, v16
v_xor_b32 v17, s52, v17
v_or_b32 v16, v16, v17
v_cmp_ne_u32 vcc, 0, v16
s_cbranch_vccz L_k_fld
s_sleep 16""")
    A.tmo("L_k_fl")
    A("L_k_fld:")
    A.stamp(5)
    for k in range(4):
        A(f"s_add_u32 s63, s62, {k*32*(8192+o.xpad)}\nbuffer_load_dwordx4 v[{96+4*k}:{99+4*k}], v5, s[40:43], s63 offen sc1")
    A.lds_wait("v15", F_KD, 2, "lg", 0)
    for k in range(4):
        A(f"s_waitcnt vmcnt({3-k})\nds_write_b128 v6, v[{96+4*k}:{99+4*k}] offset:{k*512}")
    A(f"""s_waitcnt lgkmcnt(0)
ds_write_b32 v21, v22 offset:{F_KR}""")
    A.stamp(6)
    A(f"""s_cmp_lg_u32 s56, 0
s_cbranch_scc1 L_k_nb""")
    A.lds_wait("v15", F_KR, 2, "lg", 0)
    A(f"""ds_read_b32 v4, v15 offset:{F_NONCE+4}
v_mov_b32 v5, 0
s_waitcnt lgkmcnt(0)
s_mov_b64 exec, 1
buffer_store_dword v4, v5, s[40:43], 0 offen sc1
s_mov_b64 exec, -1
L_k_nb:""")
    gemm2(A)

HEADER = open("header.txt").read().split("; Override launch")[0]

def build(o):
    A = G(o)
    prologue(A)
    loader(A)
    A("L_gemm:")
    gemm(A)
    kgen(A)
    A("L_exit:\ns_endpgm\nL_codeend:")
    lines, probs = hz.fix(A.L, o.verbose)
    for p in hz.check_paths(lines): print("HAZARD on some path:", p, file=sys.stderr)
    txt = HEADER + f"; @launch grid=(256,1,1) block=(512,1,1) lds={LDS_BYTES + (2048 if o.trace else 0)}\n"
    txt += f'.amdgcn_target "amdgcn-amd-amdhsa--gfx950"\n.text\n.globl {KN}\n.p2align 8\n.type {KN},@function\n{KN}:\n'
    txt += "\n".join(lines) + "\n"
    txt += f""".section .rodata,"a"
.p2align 6
.amdhsa_kernel {KN}
  .amdhsa_next_free_vgpr 256
  .amdhsa_next_free_sgpr 102
  .amdhsa_accum_offset 256
  .amdhsa_group_segment_fixed_size 0
  .amdhsa_kernarg_size 112
  .amdhsa_user_sgpr_count 2
  .amdhsa_user_sgpr_kernarg_segment_ptr 1
  .amdhsa_system_sgpr_workgroup_id_x 1
  .amdhsa_float_denorm_mode_32 3
.end_amdhsa_kernel
"""
    return txt

def parser():
    ap = argparse.ArgumentParser()
    ap.add_argument("-o", default="recurrent_scan__ssm_conv_s4d__swiglu_ffn__prompt.s")
    ap.add_argument("--stamps", action="store_true")
    ap.add_argument("--verbose", action="store_true")
    ap.add_argument("--cyc", action="store_true")
    ap.add_argument("--stg", action="store_true")
    ap.add_argument("--trace", action="store_true")
    ap.add_argument("--probe", type=int, default=-1)
    ap.add_argument("--probewg", type=int, default=100)
    ap.add_argument("--noload", action="store_true")
    ap.add_argument("--oob", action="store_true")
    ap.add_argument("--nomm", action="store_true")
    ap.add_argument("--nord", action="store_true")
    ap.add_argument("--ldprio", type=int, default=0)
    ap.add_argument("--kplain", type=int, default=0)
    ap.add_argument("--kprio", type=int, default=0)
    ap.add_argument("--padto", type=int, default=0)
    ap.add_argument("--tmo", type=int, default=200000)
    ap.add_argument("--codepf", type=int, default=1)
    ap.add_argument("--map", type=int, default=2)
    ap.add_argument("--irot", type=int, default=7)
    ap.add_argument("--idir", type=int, default=-1)
    ap.add_argument("--warm", default="1:8")
    ap.add_argument("--stat", type=int, default=2)
    ap.add_argument("--sc", type=int, default=10)
    ap.add_argument("--nohg", type=int, default=0)
    ap.add_argument("--cbx", type=int, default=4)
    ap.add_argument("--xsh", type=int, default=4)
    ap.add_argument("--krot", type=int, default=1)
    ap.add_argument("--wrot", type=int, default=0)
    ap.add_argument("--wdelay", type=int, default=0)
    ap.add_argument("--xpad", type=int, default=384)
    ap.add_argument("--wpf", default="")
    ap.add_argument("--g2prio2", type=int, default=0)
    ap.add_argument("--idelay", type=int, default=0)
    ap.add_argument("--pause", type=int, default=3)
    ap.add_argument("--eat0", type=int, default=0)
    ap.add_argument("--easl", type=int, default=4)
    ap.add_argument("--hpf", type=int, default=0)
    ap.add_argument("--samefc", type=int, default=0)
    ap.add_argument("--rolex", type=int, default=0)
    ap.add_argument("--gprio", type=int, default=0)
    ap.add_argument("--g2s", type=int, default=1)
    ap.add_argument("--wprio", type=int, default=3)
    ap.add_argument("--nokp", type=int, default=0)
    ap.add_argument("--g2prio", type=int, default=3)
    ap.add_argument("--opol", default="")
    ap.add_argument("--wdw", type=int, default=1)
    ap.add_argument("--wdwait", type=int, default=0)
    ap.add_argument("--mark", type=int, default=25)
    ap.add_argument("--ssleep", type=int, default=6)
    ap.add_argument("--p1", type=int, default=16)
    ap.add_argument("--eat", type=int, default=7)
    ap.add_argument("--esleep", type=int, default=8)
    ap.add_argument("--xpol", default="")
    ap.add_argument("--wpol", default="")
    ap.add_argument("--lnpol", default=" nt")
    ap.add_argument("--ppol", default=" nt")
    ap.add_argument("--ra", type=int, default=0)
    ap.add_argument("--rb", type=int, default=0)
    ap.add_argument("--rc", type=int, default=0)
    ap.add_argument("--rm", type=int, default=7)
    ap.add_argument("--ldorder", type=int, default=0)
    ap.add_argument("--flagat", type=int, default=17)
    ap.add_argument("--j1", type=int, default=1)
    ap.add_argument("--j2", type=int, default=3)
    ap.add_argument("--j3", type=int, default=6)
    ap.add_argument("--j4", type=int, default=7)
    ap.add_argument("--rot2", type=int, default=1)
    ap.add_argument("--sigat", type=int, default=10)
    ap.add_argument("--preat", type=int, default=14)
    ap.add_argument("--sig7", type=int, default=1)
    ap.add_argument("--wpre", type=int, default=2)
    ap.add_argument("--lddelay", type=int, default=0)
    ap.add_argument("--lnsleep", type=int, default=2)
    ap.add_argument("--hsleep", type=int, default=2)
    ap.add_argument("--uat", type=int, default=8)
    ap.add_argument("--hflag_at", type=int, default=108)
    ap.add_argument("--hflag_ev", type=int, default=12)
    ap.add_argument("--wsig", type=int, default=5)
    ap.add_argument("--ahead", type=int, default=12)
    ap.add_argument("--hld", default=" sc1")
    ap.add_argument("--xld", default=" sc1")
    return ap

if __name__ == "__main__":
    o = parser().parse_args()
    WS_XNT += o.xsh * 128
    o.jobs = (1 << o.j1) | (1 << o.j2) | (1 << o.j3) | (1 << o.j4)
    open(o.o, "w").write(build(o))
```
